```python
import torch

def _softmax(x, axis=-1):
    return torch.softmax(x, dim=axis)
def _gelu(x):
    return torch.nn.functional.gelu(x, approximate="tanh")
def _silu(x):
    return torch.nn.functional.silu(x)
def _sigmoid(x):
    return torch.sigmoid(x)
def _layernorm(x, axis=-1, eps=1e-5):
    m = x.mean(dim=axis, keepdim=True)
    v = x.var(dim=axis, keepdim=True, unbiased=False)
    return (x - m) / torch.sqrt(v + eps)
def _scatter_add(tgt, idx, src, axis=0):
    return tgt.clone().index_add_(axis, idx, src)
def _segment_sum(src, seg, n):
    out = torch.zeros((n,) + src.shape[1:], dtype=src.dtype)
    return out.index_add_(0, seg, src)
def _pad(x, pw):
    flat = tuple(v for pair in reversed(pw) for v in pair)
    return torch.nn.functional.pad(x, flat)

kernel_name = 'recurrent_scan__ssm_conv_s5__geglu_ffn__prompt'

def setup_inputs():

    _w = (lambda a: (lambda t: t.to(torch.bfloat16) if t.is_floating_point() else t)(torch.as_tensor(a)))
    def _A_setup():
        B, S, D = 1, 2048, 640
        P = D
        Lambda_re = -0.5 * (lambda _x: torch.exp(torch.as_tensor(_x)))((lambda *s: torch.randn(*s, dtype=torch.bfloat16) * 0.2)(P))
        Lambda_im = (lambda *s: torch.randn(*s, dtype=torch.bfloat16) * 0.4)(P) * 1.0
        B_re = (lambda *s: torch.randn(*s, dtype=torch.bfloat16) * 0.2)(P, D) * (D ** -0.5)
        B_im = (lambda *s: torch.randn(*s, dtype=torch.bfloat16) * 0.2)(P, D) * (D ** -0.5)
        C_re = (lambda *s: torch.randn(*s, dtype=torch.bfloat16) * 0.2)(D, P) * (P ** -0.5)
        C_im = (lambda *s: torch.randn(*s, dtype=torch.bfloat16) * 0.2)(D, P) * (P ** -0.5)
        log_dt = (lambda *s: torch.randn(*s, dtype=torch.bfloat16) * 0.2)(P) * 0.3 - 2.0
        Dskip = (lambda *s: torch.randn(*s, dtype=torch.bfloat16) * 0.05)(D)
        return {
            "x": _w((lambda *s: torch.randn(*s, dtype=torch.bfloat16) * 0.05)(B, S, D)),
            "Lambda_re": _w(Lambda_re),
            "Lambda_im": _w(Lambda_im),
            "B_re": _w(B_re),
            "B_im": _w(B_im),
            "C_re": _w(C_re),
            "C_im": _w(C_im),
            "log_dt": _w(log_dt),
            "Dskip": _w(Dskip),
        }
    _A_in = _A_setup()

    def _B_setup():
        B, S, D, F = 1, 2048, 640, 1728
        return {
            "x": _w((lambda *s: torch.randn(*s, dtype=torch.bfloat16) * 0.05)(B, S, D)),
            "w_gate": _w((lambda *s: torch.randn(*s, dtype=torch.bfloat16) * 0.05)(D, F)),
            "w_up": _w((lambda *s: torch.randn(*s, dtype=torch.bfloat16) * 0.05)(D, F)),
            "w_down": _w((lambda *s: torch.randn(*s, dtype=torch.bfloat16) * 0.05)(F, D)),
        }
    _B_in = _B_setup()

    return {
        "A_x": _A_in["x"],
        "A_Lambda_re": _A_in["Lambda_re"],
        "A_Lambda_im": _A_in["Lambda_im"],
        "A_B_re": _A_in["B_re"],
        "A_B_im": _A_in["B_im"],
        "A_C_re": _A_in["C_re"],
        "A_C_im": _A_in["C_im"],
        "A_log_dt": _A_in["log_dt"],
        "A_Dskip": _A_in["Dskip"],
        "B_x": _B_in["x"],
        "B_w_gate": _B_in["w_gate"],
        "B_w_up": _B_in["w_up"],
        "B_w_down": _B_in["w_down"],
    }

def reference(A_x, A_Lambda_re, A_Lambda_im, A_B_re, A_B_im, A_C_re, A_C_im, A_log_dt, A_Dskip, B_x, B_w_gate, B_w_up, B_w_down):
    def _A_ref(x, Lambda_re, Lambda_im, B_re, B_im, C_re, C_im, log_dt, Dskip):
        Bsz, L, H = x.shape
        Lam = Lambda_re + 1j * Lambda_im
        Bmat = B_re + 1j * B_im
        Cmat = C_re + 1j * C_im
        dt = torch.exp(log_dt)
        Lam_bar = torch.exp(dt * Lam)
        B_bar = ((Lam_bar - 1.0) / Lam)[:, None] * Bmat
        Bu = torch.einsum("bld,pd->blp", x + 0j, B_bar)
        h = torch.zeros_like(Bu[:, 0, :])
        hs = []
        for t in range(L):
            h = Lam_bar[None, :] * h + Bu[:, t, :]
            hs.append(h)
        hseq = torch.stack(hs, 1)
        y = 2.0 * torch.einsum("blp,dp->bld", hseq, Cmat).real + x * Dskip[None, None, :]
        return y

    def _B_ref(x, w_gate, w_up, w_down):
        return (_gelu(x @ w_gate) * (x @ w_up)) @ w_down

    x = A_x
    xn = _layernorm(x, axis=-1)
    s = _A_ref(xn, A_Lambda_re, A_Lambda_im, A_B_re, A_B_im, A_C_re, A_C_im, A_log_dt, A_Dskip)
    g = _silu(_B_ref(xn, B_w_gate, B_w_up, B_w_down))
    return x + s * g
```

```python
import re

class Asm:
    def __init__(self):
        self.lines = []
        self._uid = 0
    def __call__(self, s, *more):
        for t in (s,) + more:
            for ln in t.split("\n"):
                ln = ln.strip()
                if ln:
                    self.lines.append("    " + ln)
    def label(self, name):
        self.lines.append(name + ":")
    def comment(self, s):
        self.lines.append("    ; " + s)
    def raw(self, s):
        self.lines.append(s)
    def uid(self, p="L"):
        self._uid += 1
        return f"{p}_{self._uid}"
    def text(self):
        return "\n".join(self.lines) + "\n"

def vr(base, n=1, p="v"):
    return f"{p}{base}" if n == 1 else f"{p}[{base}:{base+n-1}]"
def sr(base, n=1):
    return vr(base, n, "s")
def ar(base, n=1):
    return vr(base, n, "a")

_reg_re = re.compile(r"\b([vas])(?:(\d+)|\[(\d+):(\d+)\])")
def regs_of(op):
    out = []
    for m in _reg_re.finditer(op):
        p = m.group(1)
        if m.group(2) is not None:
            out.append((p, int(m.group(2))))
        else:
            out += [(p, i) for i in range(int(m.group(3)), int(m.group(4)) + 1)]
    if re.search(r"\bvcc\b", op): out += [("s", 106), ("s", 107)]
    if re.search(r"\bm0\b", op): out.append(("m", 0))
    if re.search(r"\bexec\b", op): out.append(("e", 0))
    return out

TRANS = ("v_exp_f32", "v_log_f32", "v_rcp_f32", "v_rsq_f32", "v_sqrt_f32", "v_sin_f32", "v_cos_f32")
def split_ops(s):
    ops, depth, cur = [], 0, ""
    for ch in s:
        if ch == "[": depth += 1
        if ch == "]": depth -= 1
        if ch == "," and depth == 0:
            ops.append(cur.strip()); cur = ""
        else:
            cur += ch
    if cur.strip(): ops.append(cur.strip())
    return ops

def parse(line):
    line = line.split(";")[0].strip()
    if not line or line.endswith(":") or line.startswith("."): return None
    parts = line.split(None, 1)
    mn = parts[0]
    ops = split_ops(parts[1]) if len(parts) > 1 else []
    return mn, ops, line

def classify(mn, ops):
    k = "other"; defs = []; uses = []
    allr = lambda lst: [r for o in lst for r in regs_of(o)]
    if mn.startswith("v_mfma"):
        k = "mfma"; defs = regs_of(ops[0]); uses = allr(ops[1:4])
    elif mn.startswith("v_cmp"):
        k = "valu"; defs = regs_of(ops[0]); uses = allr(ops[1:])
        if mn.startswith("v_cmpx"): defs = defs + [("e", 0)]
    elif mn.startswith("v_readfirstlane") or mn.startswith("v_readlane"):
        k = "valu"; defs = regs_of(ops[0]); uses = allr(ops[1:])
    elif mn.startswith("v_permlane"):
        k = "valu"; defs = allr(ops[:2]); uses = allr(ops[:2])
    elif mn.startswith("v_"):
        k = "valu"; defs = regs_of(ops[0]); uses = allr(ops[1:])
        if mn.startswith(("v_add_co", "v_sub_co", "v_addc_co", "v_subb_co", "v_subrev_co")):
            defs = defs + regs_of(ops[1]); uses = allr(ops[2:])
        if mn.startswith(("v_fmac", "v_dot2c", "v_pk_fmac")) : uses = uses + defs
        if mn.startswith("v_cndmask") and len(ops) == 3: uses = uses + [("s", 106), ("s", 107)]
    elif mn.startswith(("buffer_", "global_", "flat_")):
        k = "vmem"
        lds = " lds" in (" " + " ".join(ops)) or "load_lds" in mn
        if "store" in mn or "atomic" in mn:
            uses = allr(ops)
            if "atomic" in mn and ("sc0" in " ".join(ops)): defs = regs_of(ops[0])
        elif lds:
            uses = allr(ops) + [("m", 0)]
            k = "dma"
        elif mn.startswith(("buffer_wbl2", "buffer_inv")):
            pass
        else:
            defs = regs_of(ops[0]); uses = allr(ops[1:])
    elif mn.startswith("ds_"):
        k = "ds"
        if mn.startswith(("ds_read", "ds_bpermute", "ds_permute", "ds_swizzle")):
            defs = regs_of(ops[0]); uses = allr(ops[1:])
        else:
            uses = allr(ops)
    elif mn.startswith("s_"):
        k = "salu"
        if mn.startswith(("s_cmp", "s_bitcmp", "s_cbranch", "s_branch", "s_waitcnt", "s_barrier", "s_nop", "s_endpgm", "s_setprio", "s_sleep")):
            uses = allr(ops)
        elif mn.startswith(("s_load", "s_memtime", "s_memrealtime")):
            k = "smem"; defs = regs_of(ops[0]); uses = allr(ops[1:])
        else:
            defs = regs_of(ops[0]) if ops else []; uses = allr(ops[1:])
            if "saveexec" in mn: defs = defs + [("e", 0)]
    return k, defs, uses

def lint(text, verbose=True):
    ins = []
    for ln_no, line in enumerate(text.split("\n"), 1):
        p = parse(line)
        if p is None: continue
        mn, ops, l = p
        ins.append((ln_no, mn, ops, l))
    problems = []
    hist = []
    pos = 0
    for ln_no, mn, ops, l in ins:
        k, defs, uses = classify(mn, ops)
        is_dpp = "_dpp" in mn or "row_" in l or "quad_perm" in l
        def need(n, pred, what):
            for (p0, k0, mn0, d0, u0, l0, o0) in reversed(hist):
                dist = pos - p0 - 1
                if dist >= n: break
                if pred(k0, mn0, d0, u0, o0):
                    problems.append(f"line {ln_no}: '{l}' needs {n} wait states after line {l0} '{mn0}' ({what}); has {dist}")
        su = set(uses); sd = set(defs)
        vu = {r for r in su if r[0] in "va"}
        if k == "mfma":
            need(2, lambda k0, m0, d0, u0, o0: k0 == "valu" and set(d0) & su, "VALU->MFMA src")
            need(4, lambda k0, m0, d0, u0, o0: k0 == "valu" and ("e", 0) in d0, "EXEC->MFMA")
            srcab = set(regs_of(ops[1]) + regs_of(ops[2]))
            srcc = set(regs_of(ops[3])) if len(ops) > 3 else set()
            def np_(m0): return 8 if "32x32" in m0 else 4
            for (p0, k0, m0, d0, u0, l0, o0) in reversed(hist):
                dist = pos - p0 - 1
                if dist >= 12: break
                if k0 == "mfma":
                    n = np_(m0)
                    if set(d0) & srcab and dist < n + 4:
                        problems.append(f"line {ln_no}: MFMA srcA/B reads MFMA result line {l0}; dist {dist} < {n+4}")
                    if set(d0) & srcc and set(d0) != srcc and dist < n + 2:
                        problems.append(f"line {ln_no}: MFMA srcC partial overlap line {l0}")
                    if set(d0) == srcc and m0 != mn:
                        problems.append(f"line {ln_no}: MFMA chain different shape line {l0}")
        if k in ("valu", "vmem", "ds", "dma"):
            for (p0, k0, m0, d0, u0, l0, o0) in reversed(hist):
                dist = pos - p0 - 1
                if dist >= 12: break
                if k0 == "mfma":
                    n = (8 if "32x32" in m0 else 4) + 4
                    touch = su | sd
                    if set(d0) & touch and dist < n:
                        problems.append(f"line {ln_no}: '{l}' touches MFMA result of line {l0}; dist {dist} < {n}")
                    if k == "valu" and len(o0) > 3:
                        c = set(regs_of(o0[3]))
                        nn = 7 if "32x32" in m0 else 3
                        if c & sd and dist < nn:
                            problems.append(f"line {ln_no}: VALU writes SrcC of MFMA line {l0}; dist {dist} < {nn}")
        if k == "valu":
            need(1, lambda k0, m0, d0, u0, o0: k0 == "valu" and m0.startswith(TRANS) and set(d0) & su and not mn.startswith(TRANS), "trans->VALU")
            sgu = {r for r in su if r[0] == "s"}
            need(2, lambda k0, m0, d0, u0, o0: k0 == "valu" and set(d0) & sgu, "VALU sgpr -> VALU const")
            if mn.startswith(("v_readfirstlane", "v_readlane")):
                need(1, lambda k0, m0, d0, u0, o0: k0 == "valu" and set(d0) & vu, "VALU->readlane")
                need(4, lambda k0, m0, d0, u0, o0: k0 == "valu" and ("e", 0) in d0, "exec->readlane")
            if is_dpp:
                need(2, lambda k0, m0, d0, u0, o0: k0 == "valu" and set(d0) & set(regs_of(ops[1])), "VALU->DPP")
                need(5, lambda k0, m0, d0, u0, o0: k0 == "valu" and ("e", 0) in d0, "VALU exec->DPP")
            if mn.startswith("v_permlane"):
                need(2, lambda k0, m0, d0, u0, o0: k0 == "valu" and set(d0) & vu, "VALU->permlane")
            need(2, lambda k0, m0, d0, u0, o0: k0 == "vmem" and ("x4" in m0 or "x3" in m0) and "store" in m0 and set(u0) & sd and True and (set(regs_of(o0[0] if m0.startswith("buffer") else o0[1])) & sd), "store data WAR")
        if k in ("vmem", "dma"):
            sgu = {r for r in su if r[0] == "s"}
            need(5, lambda k0, m0, d0, u0, o0: k0 == "valu" and set(d0) & sgu, "VALU sgpr -> VMEM")
        if k == "dma":
            need(1, lambda k0, m0, d0, u0, o0: k0 == "salu" and ("m", 0) in d0, "m0 -> DMA")
        hist.append((pos, k, mn, defs, uses, ln_no, ops))
        if len(hist) > 40: hist.pop(0)
        if mn == "s_nop":
            pos += int(ops[0], 0) + 1
        else:
            pos += 1
    if verbose:
        for p in problems: print("LINT:", p)
    return problems
```

```python
import sys
from asmlib import *

HDR = open("recurrent_scan__ssm_conv_s5__geglu_ffn__prompt.s.ref").read().split("; Override")[0]

XN_OFF = 0
AF_OFF = 4 << 20
BF_OFF = 20 << 20
E_OFF = 28 << 20
XN_SZ = 2048 * 1280
AF_SZ = 32 * 94 * 4096
BF_SZ = 8 * 94 * 5120
E_SZ = 16 * 640 * 8
SRD3 = 0x00020000

def P(i): return 16 + 2 * i
PX, PLRE, PLIM, PBRE, PBIM, PCRE, PCIM, PLDT, PDSK, PBX, PWG, PWU, PWD, POUT, PDBG, PWS = [P(i) for i in range(16)]

def load_args(a):
    a("s_load_dwordx16 s[16:31], s[0:1], 0")
    a("s_load_dwordx16 s[32:47], s[0:1], 64")

def mk_srd(a, d, p, size, off=0):
    if off:
        a(f"s_add_u32 s{d}, s{p}, {off}")
        a(f"s_addc_u32 s{d+1}, s{p+1}, 0")
    else:
        a(f"s_mov_b32 s{d}, s{p}")
        a(f"s_mov_b32 s{d+1}, s{p+1}")
    a(f"s_mov_b32 s{d+2}, {size}")
    a(f"s_mov_b32 s{d+3}, {SRD3:#x}")

def sdiv(a, dst, src, c, tmp=None):
    magic = -(-(1 << 32) // c)
    a(f"s_mul_hi_u32 s{dst}, s{src}, {magic}")

def vdiv(a, dst, src, c, stmp):
    magic = -(-(1 << 32) // c)
    a(f"s_mov_b32 s{stmp}, {magic}")
    a(f"v_mul_hi_u32 v{dst}, v{src}, s{stmp}")

def kernel_begin(a, name):
    a.raw(f".globl {name}")
    a.raw(".p2align 8")
    a.raw(f".type {name},@function")
    a.label(name)

def descriptor(name, vgpr, sgpr, accum):
    return f""".p2align 6
.amdhsa_kernel {name}
  .amdhsa_next_free_vgpr {vgpr}
  .amdhsa_next_free_sgpr {sgpr}
  .amdhsa_accum_offset {accum}
  .amdhsa_group_segment_fixed_size 0
  .amdhsa_kernarg_size 128
  .amdhsa_user_sgpr_count 2
  .amdhsa_user_sgpr_kernarg_segment_ptr 1
  .amdhsa_system_sgpr_workgroup_id_x 1
.end_amdhsa_kernel
"""

def gen_k0(a):
    kernel_begin(a, "k0_kernel")
    a("s_cmp_ge_u32 s2, 256")
    a("s_cbranch_scc1 K0_END")
    load_args(a)
    a("v_lshrrev_b32 v1, 6, v0")
    a("v_and_b32 v2, 63, v0")
    a("s_nop 0")
    a("v_readfirstlane_b32 s3, v1")
    a("s_waitcnt lgkmcnt(0)")
    a("s_cmp_ge_u32 s2, 200")
    a("s_cbranch_scc1 K0_NOC")
    a("s_lshl_b32 s4, s2, 3")
    a("s_add_u32 s4, s4, s3")
    sdiv(a, 5, 4, 200)
    a("s_mul_i32 s6, s5, 200")
    a("s_sub_u32 s6, s4, s6")
    sdiv(a, 7, 6, 5)
    a("s_mul_i32 s8, s7, 5")
    a("s_sub_u32 s8, s6, s8")
    a("s_bitcmp1_b32 s7, 0")
    a(f"s_cselect_b32 s48, s{PCIM}, s{PCRE}")
    a(f"s_cselect_b32 s49, s{PCIM+1}, s{PCRE+1}")
    a(f"s_mov_b32 s50, {640*1280}")
    a(f"s_mov_b32 s51, {SRD3:#x}")
    mk_srd(a, 52, PWS, BF_SZ, BF_OFF)
    a("s_mul_i32 s9, s5, 80")
    a("s_lshl_b32 s10, s8, 4")
    a("s_add_u32 s9, s9, s10")
    a("v_and_b32 v3, 15, v2")
    a("v_add_u32 v3, s9, v3")
    a("v_mul_u32_u24 v3, 1280, v3")
    a("v_lshrrev_b32 v4, 4, v2")
    a("v_lshl_add_u32 v3, v4, 4, v3")
    a("s_lshr_b32 s10, s7, 1")
    a("s_lshl_b32 s10, s10, 6")
    a("buffer_load_dwordx4 v[8:11], v3, s[48:51], s10 offen")
    a("s_mul_i32 s11, s5, 94")
    a("s_add_u32 s11, s11, s7")
    a("s_mul_i32 s11, s11, 5")
    a("s_add_u32 s11, s11, s8")
    a("s_lshl_b32 s11, s11, 10")
    a("v_lshlrev_b32 v5, 4, v2")
    a("s_waitcnt vmcnt(0)")
    a("buffer_store_dwordx4 v[8:11], v5, s[52:55], s11 offen")
    a.label("K0_NOC")
    a("s_cmp_ge_u32 s2, 216")
    a("s_cbranch_scc1 K0_NOW")
    a("s_lshr_b32 s4, s3, 1")
    a("s_cmp_lg_u32 s4, 1")
    a("s_cbranch_scc1 K0_NOW")
    a("s_lshl_b32 s4, s2, 1")
    a("s_and_b32 s5, s3, 1")
    a("s_add_u32 s4, s4, s5")
    sdiv(a, 5, 4, 54)
    a("s_mul_i32 s6, s5, 54")
    a("s_sub_u32 s6, s4, s6")
    mk_srd(a, 48, PWD, 1728 * 1280)
    mk_srd(a, 52, PWS, BF_SZ, BF_OFF)
    a(f"s_mul_i32 s7, s6, {32*1280}")
    a("s_mul_i32 s8, s5, 160")
    a("s_add_u32 s7, s7, s8")
    a("s_and_b32 s9, s3, 1")
    a("s_lshl_b32 s9, s9, 13")
    for i in range(5):
        a(f"v_add_u32 v3, {64*i}, v2")
        vdiv(a, 4, 3, 10, 10)
        a("v_mul_u32_u24 v5, 10, v4")
        a("v_sub_u32 v5, v3, v5")
        a("v_mul_u32_u24 v4, 1280, v4")
        a("v_lshl_add_u32 v4, v5, 4, v4")
        a(f"s_add_u32 m0, s9, {1024*i}")
        a("s_nop 0")
        a("buffer_load_dwordx4 v4, s[48:51], s7 offen lds")
    a("v_lshrrev_b32 v3, 5, v2")
    a("v_lshlrev_b32 v3, 4, v3")
    a("v_bfe_u32 v4, v2, 4, 1")
    a("v_lshl_add_u32 v3, v4, 2, v3")
    a("v_bfe_u32 v4, v2, 2, 2")
    a("v_add_u32 v3, v3, v4")
    a("v_mul_u32_u24 v3, 160, v3")
    a("v_and_b32 v4, 3, v2")
    a("v_lshl_add_u32 v3, v4, 3, v3")
    a("v_add_u32 v3, s9, v3")
    a("s_mul_i32 s11, s5, 94")
    a("s_add_u32 s11, s11, s6")
    a("s_add_u32 s11, s11, 40")
    a("s_mul_i32 s11, s11, 5120")
    a("v_lshlrev_b32 v5, 4, v2")
    a("s_waitcnt vmcnt(0)")
    for j in range(5):
        a(f"ds_read_b64_tr_b16 v[{8+4*j}:{9+4*j}], v3 offset:{32*j}")
        a(f"ds_read_b64_tr_b16 v[{10+4*j}:{11+4*j}], v3 offset:{32*j+8*160}")
    a("s_waitcnt lgkmcnt(0)")
    for j in range(5):
        a(f"s_add_u32 s12, s11, {1024*j}")
        a(f"buffer_store_dwordx4 v[{8+4*j}:{11+4*j}], v5, s[52:55], s12 offen")
    a.label("K0_NOW")
    a("s_cmp_ge_u32 s3, 2")
    a("s_cbranch_scc1 K0_END")
    mk_srd(a, 48, PX, XN_SZ)
    mk_srd(a, 52, PWS, XN_SZ, XN_OFF)
    a("s_lshl_b32 s4, s2, 3")
    a("s_lshl_b32 s5, s3, 2")
    a("s_add_u32 s4, s4, s5")
    a("v_lshrrev_b32 v3, 4, v2")
    a("v_add_u32 v3, s4, v3")
    a("v_mul_u32_u24 v3, 1280, v3")
    a("v_and_b32 v4, 15, v2")
    a("v_lshl_add_u32 v3, v4, 4, v3")
    for i in range(5):
        a(f"buffer_load_dwordx4 v[{8+4*i}:{11+4*i}], v3, s[48:51], 0 offen offset:{256*i}")
    a("s_waitcnt vmcnt(0)")
    for i in range(20):
        a(f"v_lshlrev_b32 v{32+2*i}, 16, v{8+i}")
        a(f"v_and_b32 v{33+2*i}, 0xffff0000, v{8+i}")
    a("v_add_f32 v5, v32, v33")
    for i in range(2, 40):
        a(f"v_add_f32 v5, v5, v{32+i}")
    def dpp_allreduce(reg):
        for sh in (8, 4, 2, 1):
            a("s_nop 1")
            a(f"v_add_f32_dpp v{reg}, v{reg}, v{reg} row_ror:{sh} row_mask:0xf bank_mask:0xf")
    dpp_allreduce(5)
    a(f"v_mul_f32 v5, {1.0/640:.10e}, v5".replace("e-03", "e-03"))
    a("v_sub_f32 v7, v32, v5")
    a("v_mul_f32 v6, v7, v7")
    for i in range(1, 40):
        a(f"v_sub_f32 v7, v{32+i}, v5")
        a("v_fmac_f32 v6, v7, v7")
    dpp_allreduce(6)
    a(f"v_mul_f32 v6, {1.0/640:.10e}, v6")
    a("v_cvt_pk_bf16_f32 v5, v5, v6")
    a("v_and_b32 v6, 0xffff0000, v5")
    a("v_lshlrev_b32 v5, 16, v5")
    a("v_add_f32 v6, 0x3727c5ac, v6")
    a("v_cvt_pk_bf16_f32 v6, v6, v6")
    a("v_and_b32 v6, 0xffff0000, v6")
    a("v_sqrt_f32 v6, v6")
    a("s_nop 0")
    a("v_cvt_pk_bf16_f32 v6, v6, v6")
    a("v_and_b32 v6, 0xffff0000, v6")
    a("v_rcp_f32 v6, v6")
    for i in range(20):
        lo, hi = 32 + 2 * i, 33 + 2 * i
        a(f"v_sub_f32 v{lo}, v{lo}, v5")
        a(f"v_sub_f32 v{hi}, v{hi}, v5")
        a(f"v_cvt_pk_bf16_f32 v7, v{lo}, v{hi}")
        a(f"v_lshlrev_b32 v{lo}, 16, v7")
        a(f"v_and_b32 v{hi}, 0xffff0000, v7")
        a(f"v_mul_f32 v{lo}, v{lo}, v6")
        a(f"v_mul_f32 v{hi}, v{hi}, v6")
        a(f"v_cvt_pk_bf16_f32 v{8+i}, v{lo}, v{hi}")
    for i in range(5):
        a(f"buffer_store_dwordx4 v[{8+4*i}:{11+4*i}], v3, s[52:55], 0 offen offset:{256*i}")
    a.label("K0_END")
    a("s_endpgm")

K2_D = 4
K2_PITCH = 336
K2_TILE = 64 * K2_PITCH
def gen_k2(a):
    D = K2_D
    kernel_begin(a, "k2_kernel")
    a("s_cmp_ge_u32 s2, 256")
    a("s_cbranch_scc1 K2_END")
    load_args(a)
    a("v_lshrrev_b32 v1, 6, v0")
    a("v_and_b32 v2, 63, v0")
    a("s_nop 0")
    a("v_readfirstlane_b32 s3, v1")
    a("s_and_b32 s4, s2, 7")
    a("s_lshr_b32 s5, s2, 3")
    a("s_lshr_b32 s6, s4, 1")
    a("s_lshl_b32 s6, s6, 3")
    a("s_and_b32 s7, s5, 7")
    a("s_add_u32 s6, s6, s7")
    a("s_and_b32 s7, s4, 1")
    a("s_lshl_b32 s7, s7, 2")
    a("s_lshr_b32 s8, s5, 3")
    a("s_add_u32 s7, s7, s8")
    a("s_mul_i32 s8, s3, 20")
    a("s_add_u32 s9, s8, 20")
    a("s_cmp_eq_u32 s3, 3")
    a("s_cselect_b32 s8, 67, s8")
    a("s_cselect_b32 s9, 94, s9")
    a("s_cmp_eq_u32 s3, 2")
    a("s_cselect_b32 s9, 67, s9")
    a("s_waitcnt lgkmcnt(0)")
    mk_srd(a, 48, PWS, AF_SZ, AF_OFF)
    mk_srd(a, 52, PWS, BF_SZ, BF_OFF)
    a("s_mul_i32 s10, s6, 94")
    a("s_add_u32 s10, s10, s8")
    a("s_lshl_b32 s10, s10, 12")
    a("s_mul_i32 s11, s7, 94")
    a("s_add_u32 s11, s11, s8")
    a("s_mul_i32 s11, s11, 5120")
    a("v_lshlrev_b32 v3, 4, v2")
    a("v_add_u32 v4, 4096, v3")
    SET0 = 32
    def setb(i): return SET0 + 36 * i
    def issue(i):
        b = setb(i)
        for t in range(4):
            a(f"buffer_load_dwordx4 v[{b+4*t}:{b+4*t+3}], v3, s[48:51], s10 offen offset:{1024*t}")
        for t in range(4):
            a(f"buffer_load_dwordx4 v[{b+16+4*t}:{b+16+4*t+3}], v3, s[52:55], s11 offen offset:{1024*t}")
        a(f"buffer_load_dwordx4 v[{b+32}:{b+35}], v4, s[52:55], s11 offen")
        a("s_add_u32 s10, s10, 4096")
        a("s_add_u32 s11, s11, 5120")
    for i in range(D):
        issue(i)
    mk_srd(a, 56, PX, XN_SZ)
    mk_srd(a, 60, PWS, XN_SZ, XN_OFF)
    mk_srd(a, 64, PDSK, 1280)
    mk_srd(a, 68, POUT, 2048 * 2560)
    for i in range(80):
        a(f"v_accvgpr_write_b32 a{i}, 0")
    a("s_sub_u32 s12, s9, s8")
    a(f"s_sub_u32 s13, s12, {D}")
    a.label("K2_LOOP")
    for i in range(D):
        b = setb(i)
        l1 = a.uid("K2W"); l2 = a.uid("K2S")
        a("s_cmp_lg_u32 s13, 0")
        a(f"s_cbranch_scc1 {l1}")
        a("s_waitcnt vmcnt(0)")
        a.label(l1)
        a(f"s_waitcnt vmcnt({9*(D-1)})")
        for ti in range(4):
            for j in range(5):
                ac = (ti * 5 + j) * 4
                a(f"v_mfma_f32_16x16x32_bf16 a[{ac}:{ac+3}], v[{b+16+4*j}:{b+16+4*j+3}], v[{b+4*ti}:{b+4*ti+3}], a[{ac}:{ac+3}]")
        a("s_cmp_lg_u32 s13, 0")
        a(f"s_cbranch_scc0 {l2}")
        issue(i)
        a("s_sub_u32 s13, s13, 1")
        a.label(l2)
        a("s_sub_u32 s12, s12, 1")
        a("s_cmp_lg_u32 s12, 0")
        if i < D - 1:
            a("s_cbranch_scc0 K2_DONE")
        else:
            a("s_cbranch_scc1 K2_LOOP")
    a.label("K2_DONE")
    a("v_and_b32 v5, 15, v2")
    a(f"v_mul_u32_u24 v5, {K2_PITCH}, v5")
    a("v_lshrrev_b32 v6, 4, v2")
    a("v_lshl_add_u32 v5, v6, 4, v5")
    a(f"s_mul_i32 s14, s3, {K2_TILE}")
    a("v_add_u32 v5, s14, v5")
    a("s_nop 7")
    for ti in range(4):
        for j in range(5):
            ac = (ti * 5 + j) * 4
            a(f"ds_write_b128 v5, a[{ac}:{ac+3}] offset:{ti*16*K2_PITCH + j*64}")
    for i in range(5):
        a(f"v_add_u32 v6, {256*i}, v0")
        vdiv(a, 7, 6, 20, 14)
        a("v_mul_u32_u24 v8, 20, v7")
        a("v_sub_u32 v8, v6, v8")
        a(f"v_mul_u32_u24 v{16+i}, {K2_PITCH}, v7")
        a(f"v_lshl_add_u32 v{16+i}, v8, 4, v{16+i}")
        a("s_lshl_b32 s15, s6, 6")
        a("v_add_u32 v7, s15, v7")
        a("s_mul_i32 s15, s7, 80")
        a("v_lshl_add_u32 v8, v8, 2, s15")
        a("v_mul_u32_u24 v9, 640, v7")
        a("v_add_u32 v9, v9, v8")
        a(f"v_lshlrev_b32 v{21+i}, 2, v9")
        a("v_lshlrev_b32 v9, 1, v9")
        a("v_lshlrev_b32 v8, 1, v8")
        a(f"buffer_load_dwordx2 v[{32+6*i}:{33+6*i}], v9, s[56:59], 0 offen")
        a(f"buffer_load_dwordx2 v[{34+6*i}:{35+6*i}], v9, s[60:63], 0 offen")
        a(f"buffer_load_dwordx2 v[{36+6*i}:{37+6*i}], v8, s[64:67], 0 offen")
    a("s_waitcnt lgkmcnt(0)")
    a("s_barrier")
    for i in range(5):
        r = 64
        for w in range(4):
            a(f"ds_read_b128 v[{r+4*w}:{r+4*w+3}], v{16+i} offset:{w*K2_TILE}" if w * K2_TILE < 65536 else "")
            if w * K2_TILE >= 65536:
                a(f"v_add_u32 v26, {w*K2_TILE}, v{16+i}")
                a(f"ds_read_b128 v[{r+4*w}:{r+4*w+3}], v26")
        a("s_waitcnt vmcnt(0) lgkmcnt(0)")
        for e in range(4):
            y, y2, f, f2 = r + e, r + 4 + e, r + 8 + e, r + 12 + e
            xw, xnw, dw = 32 + 6 * i + (e >> 1), 34 + 6 * i + (e >> 1), 36 + 6 * i + (e >> 1)
            a(f"v_add_f32 v{y}, v{y}, v{y2}")
            a(f"v_add_f32 v{f}, v{f}, v{f2}")
            if e & 1:
                a(f"v_and_b32 v10, 0xffff0000, v{xw}")
                a(f"v_and_b32 v11, 0xffff0000, v{xnw}")
                a(f"v_and_b32 v12, 0xffff0000, v{dw}")
            else:
                a(f"v_lshlrev_b32 v10, 16, v{xw}")
                a(f"v_lshlrev_b32 v11, 16, v{xnw}")
                a(f"v_lshlrev_b32 v12, 16, v{dw}")
            a(f"v_fmac_f32 v{y}, v11, v12")
            a(f"v_mul_f32 v13, 0xbfb8aa3b, v{f}")
            a("v_exp_f32 v13, v13")
            a("s_nop 0")
            a("v_add_f32 v13, 1.0, v13")
            a("v_rcp_f32 v13, v13")
            a("s_nop 0")
            a(f"v_mul_f32 v13, v13, v{f}")
            a(f"v_fma_f32 v{80+e}, v{y}, v13, v10")
        a(f"buffer_store_dwordx4 v[80:83], v{21+i}, s[68:71], 0 offen")
        a("s_nop 1")
    a.label("K2_END")
    a("s_endpgm")

if __name__ == "__main__":
    pass
```

```python
from asmlib import *
from gen1 import *

SB = 28736
NSLOT = 5
XR = 0
GR = 8192
UR = 8192 + 10240 + 32
IR = 16384
K1_LDS = NSLOT * SB
NST = 20

LOG2E = 1.4426950408889634
def f32hex(x):
    import struct
    return "0x%08x" % struct.unpack("<I", struct.pack("<f", x))[0]

def gen_k1(a):
    kernel_begin(a, "k1_kernel")
    a("s_cmp_ge_u32 s2, 256")
    a("s_cbranch_scc1 K1_END")
    load_args(a)
    a("v_lshrrev_b32 v1, 6, v0")
    a("v_and_b32 v2, 63, v0")
    a("s_nop 0")
    a("v_readfirstlane_b32 s3, v1")
    a("s_and_b32 s8, s2, 7")
    a("s_lshr_b32 s9, s2, 3")
    a("s_and_b32 s6, s8, 1")
    a("s_lshl_b32 s6, s6, 3")
    a("s_and_b32 s10, s9, 7")
    a("s_add_u32 s6, s6, s10")
    a("s_lshr_b32 s7, s8, 1")
    a("s_lshl_b32 s7, s7, 2")
    a("s_lshr_b32 s10, s9, 3")
    a("s_add_u32 s7, s7, s10")
    a("s_and_b32 s4, s3, 3")
    a("s_lshr_b32 s5, s3, 2")
    a("s_waitcnt lgkmcnt(0)")
    mk_srd(a, 48, PWS, XN_SZ, XN_OFF)
    mk_srd(a, 64, PWS, AF_SZ, AF_OFF)
    a("s_lshl_b32 s10, s6, 7")
    a("s_lshl_b32 s11, s3, 4")
    a("s_add_u32 s10, s10, s11")
    a("v_lshrrev_b32 v3, 2, v2")
    a("v_add_u32 v4, s10, v3")
    a("v_mul_u32_u24 v8, 1280, v4")
    a("v_and_b32 v5, 3, v2")
    a("v_bfe_u32 v6, v2, 4, 2")
    a("v_xor_b32 v5, v5, v6")
    a("v_lshl_add_u32 v8, v5, 4, v8")
    a("s_cmp_ge_u32 s7, 11")
    a("s_cbranch_scc1 K1_SSM")

    mk_srd(a, 52, PWG, 640 * 3456)
    a("s_cmp_lt_u32 s3, 2")
    a(f"s_cselect_b32 s56, s{PWG}, s{PWU}")
    a(f"s_cselect_b32 s57, s{PWG+1}, s{PWU+1}")
    a(f"s_mov_b32 s58, {640*3456}")
    a(f"s_mov_b32 s59, {SRD3:#x}")
    mk_srd(a, 60, PWU, 640 * 3456)
    a("s_add_u32 s10, s3, 8")
    a("s_sub_u32 s11, s3, 2")
    a("s_cmp_lt_u32 s3, 2")
    a("s_cselect_b32 s10, s10, s11")
    a(f"s_mov_b32 s12, {UR}")
    a(f"s_cselect_b32 s11, {GR}, s12")
    a("s_lshl_b32 s12, s10, 10")
    a("s_add_u32 s71, s12, s11")
    a("s_lshl_b32 s12, s3, 10")
    a(f"s_add_u32 s70, s12, {GR}")
    a(f"s_add_u32 s72, s12, {UR + 6*1024}")
    a(f"s_add_u32 s69, s12, {XR}")
    def woff(dst, sidx_expr):
        a(f"s_lshl_b32 s12, {sidx_expr}, 6")
        a("v_add_u32 v3, s12, v2")
        vdiv(a, 4, 3, 20, 13)
        a("v_mul_u32_u24 v5, 20, v4")
        a("v_sub_u32 v5, v3, v5")
        a("v_mul_u32_u24 v4, 3456, v4")
        a(f"v_lshl_add_u32 v{dst}, v5, 4, v4")
    woff(9, "s3")
    woff(10, "s10")
    a("s_add_u32 s11, s3, 6")
    woff(11, "s11")
    a("s_mul_i32 s73, s7, 320")
    a("s_mov_b32 s74, 0")
    a("s_mov_b32 s75, 0")
    def dma_ffn():
        a("s_add_u32 m0, s75, s69")
        a("s_nop 0")
        a("buffer_load_dwordx4 v8, s[48:51], s74 offen lds")
        a("s_add_u32 m0, s75, s70")
        a("s_nop 0")
        a("buffer_load_dwordx4 v9, s[52:55], s73 offen lds")
        a("s_add_u32 m0, s75, s71")
        a("s_nop 0")
        a("buffer_load_dwordx4 v10, s[56:59], s73 offen lds")
        l = a.uid("K1F3")
        a("s_cmp_lt_u32 s3, 4")
        a(f"s_cbranch_scc0 {l}")
        a("s_add_u32 m0, s75, s72")
        a("s_nop 0")
        a("buffer_load_dwordx4 v11, s[60:63], s73 offen lds")
        a.label(l)
        a("s_add_u32 s74, s74, 64")
        a(f"s_add_u32 s73, s73, {32*3456}")
        a(f"s_add_u32 s75, s75, {SB}")
        a(f"s_cmp_ge_u32 s75, {NSLOT*SB}")
        a("s_cselect_b32 s75, 0, s75")
    for st in range(NSLOT):
        dma_ffn()
    a("v_and_b32 v3, 31, v2")
    a("s_lshl_b32 s10, s4, 5")
    a("v_add_u32 v3, s10, v3")
    a("v_lshlrev_b32 v12, 6, v3")
    a("v_lshrrev_b32 v4, 5, v2")
    a("v_bfe_u32 v5, v2, 2, 2")
    a("v_xor_b32 v4, v4, v5")
    a("v_lshl_add_u32 v12, v4, 4, v12")
    a("v_xor_b32 v13, 32, v12")
    a("v_lshrrev_b32 v3, 5, v2")
    a("v_lshlrev_b32 v3, 3, v3")
    a("v_bfe_u32 v4, v2, 2, 2")
    a("v_add_u32 v3, v3, v4")
    a("v_mul_u32_u24 v14, 320, v3")
    a("v_and_b32 v4, 3, v2")
    a("v_lshl_add_u32 v14, v4, 3, v14")
    a("v_bfe_u32 v4, v2, 4, 1")
    a(f"v_mul_u32_u24 v4, {UR-GR}, v4")
    a("v_add_u32 v14, v14, v4")
    a("s_mul_i32 s10, s5, 160")
    a(f"s_add_u32 s10, s10, {GR}")
    a("v_add_u32 v14, s10, v14")
    for i in range(80):
        a(f"v_mov_b32 v{128+i}, 0")
    SETS = (32, 80)
    def reads_ffn(setb, ra):
        out = []
        out.append(f"ds_read_b128 v[{setb}:{setb+3}], v15")
        out.append(f"ds_read_b128 v[{setb+4}:{setb+7}], v16")
        for ks in range(2):
            for j in range(5):
                b = setb + 8 + (ks * 5 + j) * 4
                off = ks * 5120 + j * 32
                out.append(f"ds_read_b64_tr_b16 v[{b}:{b+1}], v17 offset:{off}")
                out.append(f"ds_read_b64_tr_b16 v[{b+2}:{b+3}], v17 offset:{off+1280}")
        return out
    def rd_addr():
        a("v_add_u32 v15, s76, v12")
        a("v_add_u32 v16, s76, v13")
        a("v_add_u32 v17, s76, v14")
        a(f"s_add_u32 s76, s76, {SB}")
        a(f"s_cmp_ge_u32 s76, {NSLOT*SB}")
        a("s_cselect_b32 s76, 0, s76")
    def wait_group(n_hi, n_lo):
        l1 = a.uid("K1W"); l2 = a.uid("K1W")
        a("s_cmp_lt_u32 s77, 16")
        a(f"s_cbranch_scc1 {l1}")
        a("s_waitcnt vmcnt(0)")
        a.label(l1)
        if n_hi != n_lo:
            a("s_cmp_lt_u32 s3, 4")
            a(f"s_cbranch_scc1 {l2}")
            a(f"s_waitcnt vmcnt({3*n_lo})")
            a.label(l2)
        a(f"s_waitcnt vmcnt({3*n_hi})")
    a("s_cmp_lt_u32 s3, 4")
    a("s_cbranch_scc1 K1F_P1")
    a("s_waitcnt vmcnt(12)")
    a.label("K1F_P1")
    a("s_waitcnt vmcnt(16)")
    a("s_barrier")
    a("s_mov_b32 s76, 0")
    rd_addr()
    for r in reads_ffn(SETS[0], None): a(r)
    a("s_mov_b32 s77, 0")
    a.label("K1F_LOOP")
    for u in range(2):
        cur, nxt = SETS[u], SETS[1 - u]
        wait_group(4, 3)
        a("s_waitcnt lgkmcnt(0)")
        a("s_barrier")
        l = a.uid("K1D")
        a(f"s_cmp_lt_u32 s77, {NST-NSLOT}")
        a(f"s_cbranch_scc0 {l}")
        dma_ffn()
        a.label(l)
        rd_addr()
        rd = reads_ffn(nxt, None)
        mf = []
        for ks in range(2):
            for j in range(5):
                w = cur + 8 + (ks * 5 + j) * 4
                x = cur + 4 * ks
                ac = 128 + 16 * j
                mf.append(f"v_mfma_f32_32x32x16_bf16 v[{ac}:{ac+15}], v[{w}:{w+3}], v[{x}:{x+3}], v[{ac}:{ac+15}]")
        ri = 0
        for m in mf:
            a(m)
            for _ in range(3):
                if ri < len(rd): a(rd[ri]); ri += 1
        while ri < len(rd): a(rd[ri]); ri += 1
        a("s_add_u32 s77, s77, 1")
    a(f"s_cmp_lt_u32 s77, {NST}")
    a("s_cbranch_scc1 K1F_LOOP")
    a("s_waitcnt lgkmcnt(0)")
    a("s_and_b32 s10, s4, 1")
    a("s_lshl_b32 s10, s10, 11")
    a("v_bfe_u32 v3, v2, 4, 1")
    a("v_lshlrev_b32 v3, 10, v3")
    a("v_and_b32 v4, 15, v2")
    a("v_lshl_add_u32 v3, v4, 4, v3")
    a("v_lshrrev_b32 v4, 5, v2")
    a("v_lshl_add_u32 v3, v4, 8, v3")
    a("v_add_u32 v3, s10, v3")
    a("s_lshl_b32 s10, s6, 1")
    a("s_lshr_b32 s11, s4, 1")
    a("s_add_u32 s10, s10, s11")
    a("s_mul_i32 s10, s10, 94")
    a("s_add_u32 s10, s10, 40")
    a("s_mul_i32 s11, s7, 10")
    a("s_mul_i32 s12, s5, 5")
    a("s_add_u32 s11, s11, s12")
    C1 = -2.0 * LOG2E * 0.7978845608028654
    C2 = C1 * 0.044715
    a(f"s_mov_b32 s14, {f32hex(C1)}")
    a(f"s_mov_b32 s15, {f32hex(C2)}")
    a("v_mov_b32 v40, s14")
    a("s_nop 7")
    for j in range(5):
        ac = 128 + 16 * j
        l = a.uid("K1FS")
        a(f"s_add_u32 s12, s11, {j}")
        a("s_cmp_ge_u32 s12, 108")
        a(f"s_cbranch_scc1 {l}")
        for r in range(8):
            g, u = ac + r, ac + 8 + r
            t = 32 + r
            a(f"v_mul_f32 v{t}, v{g}, v{g}")
            a(f"v_fma_f32 v{t}, v{t}, s15, v40")
            a(f"v_mul_f32 v{t}, v{t}, v{g}")
            a(f"v_exp_f32 v{t}, v{t}")
            a(f"v_mul_f32 v{u}, v{g}, v{u}")
            a(f"v_add_f32 v{t}, 1.0, v{t}")
            a(f"v_rcp_f32 v{t}, v{t}")
            a("s_nop 0")
            a(f"v_mul_f32 v{u}, v{u}, v{t}")
        for r in range(4):
            a(f"v_cvt_pk_bf16_f32 v{44+r}, v{ac+8+2*r}, v{ac+9+2*r}")
        a("s_lshr_b32 s13, s12, 1")
        a("s_add_u32 s13, s13, s10")
        a("s_lshl_b32 s13, s13, 12")
        a("s_and_b32 s12, s12, 1")
        a("s_lshl_b32 s12, s12, 9")
        a("s_add_u32 s13, s13, s12")
        a("buffer_store_dwordx4 v[44:47], v3, s[64:67], s13 offen")
        a("s_nop 1")
        a.label(l)
    a("s_endpgm")

    a.label("K1_SSM")
    a("s_sub_u32 s7, s7, 11")
    mk_srd(a, 52, PBRE, 640 * 1280)
    mk_srd(a, 56, PBIM, 640 * 1280)
    mk_srd(a, 80, PLRE, 1280)
    mk_srd(a, 84, PLIM, 1280)
    mk_srd(a, 88, PLDT, 1280)
    a("s_lshl_b32 s10, s7, 7")
    a("s_lshl_b32 s11, s5, 6")
    a("s_add_u32 s78, s10, s11")
    a("v_and_b32 v3, 31, v2")
    a("v_add_u32 v3, s78, v3")
    a("v_lshlrev_b32 v18, 1, v3")
    for g in range(2):
        a(f"buffer_load_ushort v{224+3*g}, v18, s[80:83], 0 offen offset:{64*g}")
        a(f"buffer_load_ushort v{225+3*g}, v18, s[84:87], 0 offen offset:{64*g}")
        a(f"buffer_load_ushort v{226+3*g}, v18, s[88:91], 0 offen offset:{64*g}")
    a("s_lshl_b32 s10, s7, 7")
    a("s_lshl_b32 s11, s3, 4")
    a("s_add_u32 s10, s10, s11")
    a("v_lshrrev_b32 v3, 2, v2")
    a("v_add_u32 v4, s10, v3")
    a("v_mul_u32_u24 v9, 1280, v4")
    a("v_lshl_add_u32 v9, v5, 4, v9")
    a("s_lshl_b32 s12, s3, 10")
    a(f"s_add_u32 s69, s12, {XR}")
    a(f"s_add_u32 s70, s12, {GR}")
    a(f"s_add_u32 s71, s12, {IR}")
    a("s_mov_b32 s74, 0")
    a("s_mov_b32 s75, 0")
    def dma_ssm():
        a("s_add_u32 m0, s75, s69")
        a("s_nop 0")
        a("buffer_load_dwordx4 v8, s[48:51], s74 offen lds")
        a("s_add_u32 m0, s75, s70")
        a("s_nop 0")
        a("buffer_load_dwordx4 v9, s[52:55], s74 offen lds")
        a("s_add_u32 m0, s75, s71")
        a("s_nop 0")
        a("buffer_load_dwordx4 v9, s[56:59], s74 offen lds")
        a("s_add_u32 s74, s74, 64")
        a(f"s_add_u32 s75, s75, {SB}")
        a(f"s_cmp_ge_u32 s75, {NSLOT*SB}")
        a("s_cselect_b32 s75, 0, s75")
    for st in range(NSLOT):
        dma_ssm()
    a("v_bfe_u32 v3, v2, 2, 1")
    a("v_lshlrev_b32 v3, 4, v3")
    a("v_and_b32 v4, 3, v2")
    a("v_add_u32 v3, v3, v4")
    a("v_bfe_u32 v4, v2, 3, 2")
    a("v_lshl_add_u32 v3, v4, 2, v3")
    a("v_bfe_u32 v6, v3, 2, 2")
    a("s_lshl_b32 s10, s4, 5")
    a("v_add_u32 v3, s10, v3")
    a("v_lshlrev_b32 v12, 6, v3")
    a("v_lshrrev_b32 v4, 5, v2")
    a("v_xor_b32 v6, v4, v6")
    a("v_lshl_add_u32 v12, v6, 4, v12")
    a("v_xor_b32 v13, 32, v12")
    a("v_and_b32 v3, 31, v2")
    a("s_lshl_b32 s10, s5, 6")
    a("v_add_u32 v3, s10, v3")
    a("v_lshlrev_b32 v14, 6, v3")
    a("v_bfe_u32 v6, v2, 2, 2")
    a("v_xor_b32 v6, v4, v6")
    a("v_lshl_add_u32 v14, v6, 4, v14")
    a(f"v_add_u32 v14, {GR}, v14")
    a("v_xor_b32 v19, 32, v14")
    for i in range(64):
        a(f"v_mov_b32 v{128+i}, 0")
    a("s_waitcnt vmcnt(15)")
    PR = lambda g, k: 208 + 8 * g + k
    for g in range(2):
        lre, lim, ldt = 224 + 3 * g, 225 + 3 * g, 226 + 3 * g
        ar_, ai_, cr_, ci_, qr, qi, hr, hi = [PR(g, k) for k in range(8)]
        a(f"v_lshlrev_b32 v{lre}, 16, v{lre}")
        a(f"v_lshlrev_b32 v{lim}, 16, v{lim}")
        a(f"v_lshlrev_b32 v{ldt}, 16, v{ldt}")
        a(f"v_mul_f32 v240, {f32hex(LOG2E)}, v{ldt}")
        a("v_exp_f32 v240, v240")
        a("s_nop 0")
        a("v_cvt_pk_bf16_f32 v240, v240, v240")
        a("v_lshlrev_b32 v240, 16, v240")
        a(f"v_mul_f32 v241, v240, v{lre}")
        a(f"v_mul_f32 v242, v240, v{lim}")
        a(f"v_mul_f32 v241, {f32hex(LOG2E)}, v241")
        a("v_exp_f32 v241, v241")
        a(f"v_mul_f32 v242, {f32hex(0.15915494309189535)}, v242")
        a("v_fract_f32 v242, v242")
        a("v_cos_f32 v243, v242")
        a("v_sin_f32 v244, v242")
        a("s_nop 0")
        a(f"v_mul_f32 v{ar_}, v241, v243")
        a(f"v_mul_f32 v{ai_}, v241, v244")
        a(f"v_add_f32 v243, -1.0, v{ar_}")
        a(f"v_mul_f32 v244, v{lre}, v{lre}")
        a(f"v_fmac_f32 v244, v{lim}, v{lim}")
        a("v_rcp_f32 v244, v244")
        a(f"v_mul_f32 v245, v243, v{lre}")
        a(f"v_fmac_f32 v245, v{ai_}, v{lim}")
        a(f"v_mul_f32 v246, v{ai_}, v{lre}")
        a(f"v_fma_f32 v246, -v243, v{lim}, v246")
        a("v_add_f32 v244, v244, v244")
        a(f"v_mul_f32 v{cr_}, v245, v244")
        a(f"v_mul_f32 v{ci_}, v246, v244")
        def sq(dr, di, sr_, si):
            a(f"v_mul_f32 v240, v{si}, v{si}")
            a(f"v_mul_f32 v241, v{sr_}, v{si}")
            a(f"v_fma_f32 v{dr}, v{sr_}, v{sr_}, -v240")
            a(f"v_add_f32 v{di}, v241, v241")
        sq(qr, qi, ar_, ai_)
        for _ in range(3): sq(qr, qi, qr, qi)
        sq(hr, hi, qr, qi)
        for _ in range(2): sq(hr, hi, hr, hi)
    SETS = (32, 80)
    def reads_ssm(setb):
        out = []
        for ks in range(2):
            b = setb + ks * 20
            out.append(f"ds_read_b128 v[{b}:{b+3}], v{15+ks}")
            for g in range(2):
                for part in range(2):
                    w = b + 4 + (g * 2 + part) * 4
                    out.append(f"ds_read_b128 v[{w}:{w+3}], v{(17, 20)[ks]} offset:{g*2048 + part*8192}")
        return out
    def rd_addr_s():
        a("v_add_u32 v15, s76, v12")
        a("v_add_u32 v16, s76, v13")
        a("v_add_u32 v17, s76, v14")
        a("v_add_u32 v20, s76, v19")
        a(f"s_add_u32 s76, s76, {SB}")
        a(f"s_cmp_ge_u32 s76, {NSLOT*SB}")
        a("s_cselect_b32 s76, 0, s76")
    a("s_waitcnt vmcnt(12)")
    a("s_barrier")
    a("s_mov_b32 s76, 0")
    rd_addr_s()
    for r in reads_ssm(SETS[0]): a(r)
    a("s_mov_b32 s77, 0")
    a.label("K1S_LOOP")
    for u in range(2):
        cur, nxt = SETS[u], SETS[1 - u]
        wait_group(3, 3)
        a("s_waitcnt lgkmcnt(0)")
        a("s_barrier")
        l = a.uid("K1D")
        a(f"s_cmp_lt_u32 s77, {NST-NSLOT}")
        a(f"s_cbranch_scc0 {l}")
        dma_ssm()
        a.label(l)
        rd_addr_s()
        rd = reads_ssm(nxt)
        mf = []
        for ks in range(2):
            b = cur + ks * 20
            for g in range(2):
                for part in range(2):
                    w = b + 4 + (g * 2 + part) * 4
                    ac = 128 + 32 * g + 16 * part
                    mf.append(f"v_mfma_f32_32x32x16_bf16 v[{ac}:{ac+15}], v[{b}:{b+3}], v[{w}:{w+3}], v[{ac}:{ac+15}]")
        ri = 0
        for m in mf:
            a(m)
            for _ in range(2):
                if ri < len(rd): a(rd[ri]); ri += 1
        while ri < len(rd): a(rd[ri]); ri += 1
        a("s_add_u32 s77, s77, 1")
    a(f"s_cmp_lt_u32 s77, {NST}")
    a("s_cbranch_scc1 K1S_LOOP")
    a("s_waitcnt lgkmcnt(0)")
    a("s_nop 7")
    a("s_nop 3")
    RE = lambda g, r: 128 + 32 * g + r
    IM = lambda g, r: 128 + 32 * g + 16 + r
    for r in range(16):
        for g in range(2):
            cr_, ci_ = PR(g, 2), PR(g, 3)
            re, im = RE(g, r), IM(g, r)
            t = 240 + g
            a(f"v_mul_f32 v{t}, v{ci_}, v{re}")
            a(f"v_mul_f32 v{re}, v{cr_}, v{re}")
            a(f"v_fma_f32 v{re}, -v{ci_}, v{im}, v{re}")
            a(f"v_fma_f32 v{im}, v{cr_}, v{im}, v{t}")
    for g in range(2):
        a(f"v_mov_b32 v{224+2*g}, v{RE(g,0)}")
        a(f"v_mov_b32 v{225+2*g}, v{IM(g,0)}")
    def cstep(dr, di, mr, mi, sr_, si, ur, ui, t0, t1):
        a(f"v_fma_f32 v{t0}, v{mr}, v{sr_}, v{ur}")
        a(f"v_fma_f32 v{t1}, v{mr}, v{si}, v{ui}")
        a(f"v_fma_f32 v{t0}, -v{mi}, v{si}, v{t0}")
        a(f"v_fma_f32 v{di}, v{mi}, v{sr_}, v{t1}")
        a(f"v_mov_b32 v{dr}, v{t0}")
    for r in range(1, 16):
        for g in range(2):
            er, ei = 224 + 2 * g, 225 + 2 * g
            cstep(er, ei, PR(g, 0), PR(g, 1), er, ei, RE(g, r), IM(g, r), 240 + 2 * g, 241 + 2 * g)
    a("s_barrier")
    a("v_lshrrev_b32 v4, 5, v2")
    a("s_lshl_b32 s10, s4, 1")
    a("v_add_u32 v21, s10, v4")
    a("v_and_b32 v3, 31, v2")
    a("s_lshl_b32 s10, s5, 6")
    a("v_add_u32 v3, s10, v3")
    a("v_lshlrev_b32 v22, 3, v3")
    a("v_lshl_add_u32 v23, v21, 10, v22")
    for g in range(2):
        a(f"ds_write_b64 v23, v[{224+2*g}:{225+2*g}] offset:{256*g}")
    a("s_waitcnt lgkmcnt(0)")
    a("s_barrier")
    for g in range(2):
        for j in range(8):
            a(f"ds_read_b64 v[{32+16*g+2*j}:{33+16*g+2*j}], v22 offset:{1024*j + 256*g}")
    for g in range(2):
        a(f"v_mov_b32 v{228+2*g}, 0")
        a(f"v_mov_b32 v{229+2*g}, 0")
        a(f"v_mov_b32 v{232+2*g}, 1.0")
        a(f"v_mov_b32 v{233+2*g}, 0")
    a("s_waitcnt lgkmcnt(0)")
    for j in range(7):
        a(f"v_cmp_lt_u32 vcc, {j}, v21")
        for g in range(2):
            qr, qi = PR(g, 4), PR(g, 5)
            Pr, Pi, wr, wi = 228 + 2 * g, 229 + 2 * g, 232 + 2 * g, 233 + 2 * g
            er, ei = 32 + 16 * g + 2 * j, 33 + 16 * g + 2 * j
            a(f"v_fma_f32 v240, v{qr}, v{Pr}, v{er}")
            a(f"v_fma_f32 v241, v{qr}, v{Pi}, v{ei}")
            a(f"v_fma_f32 v240, -v{qi}, v{Pi}, v240")
            a(f"v_fma_f32 v241, v{qi}, v{Pr}, v241")
            a(f"v_mul_f32 v242, v{qr}, v{wr}")
            a(f"v_mul_f32 v243, v{qr}, v{wi}")
            a(f"v_fma_f32 v242, -v{qi}, v{wi}, v242")
            a(f"v_fma_f32 v243, v{qi}, v{wr}, v243")
            a(f"v_cndmask_b32 v{Pr}, v{Pr}, v240, vcc")
            a(f"v_cndmask_b32 v{Pi}, v{Pi}, v241, vcc")
            a(f"v_cndmask_b32 v{wr}, v{wr}, v242, vcc")
            a(f"v_cndmask_b32 v{wi}, v{wi}, v243, vcc")
    mk_srd(a, 80, PWS, E_SZ, E_OFF)
    a("s_cmp_eq_u32 s4, 3")
    a("s_cbranch_scc0 K1S_NOPUB")
    for g in range(2):
        qr, qi = PR(g, 4), PR(g, 5)
        Pr, Pi = 228 + 2 * g, 229 + 2 * g
        er, ei = 224 + 2 * g, 225 + 2 * g
        a(f"v_fma_f32 v{240+2*g}, v{qr}, v{Pr}, v{er}")
        a(f"v_fma_f32 v{241+2*g}, v{qr}, v{Pi}, v{ei}")
        a(f"v_fma_f32 v{240+2*g}, -v{qi}, v{Pi}, v{240+2*g}")
        a(f"v_fma_f32 v{241+2*g}, v{qi}, v{Pr}, v{241+2*g}")
    a("v_lshlrev_b32 v24, 2, v18")
    a(f"s_mul_i32 s10, s6, {640*8}")
    a("s_mov_b64 s[12:13], exec")
    a("s_mov_b32 exec_lo, 0")
    for g in range(2):
        a(f"buffer_store_dwordx2 v[{240+2*g}:{241+2*g}], v24, s[80:83], s10 offen offset:{256*g} sc1")
    a("s_mov_b64 exec, s[12:13]")
    a("s_waitcnt vmcnt(0)")
    a.label("K1S_NOPUB")
    a("s_barrier")
    a("s_cmp_eq_u32 s3, 0")
    a("s_cbranch_scc0 K1S_NOPOLL")
    a("s_lshl_b32 s10, s7, 2")
    a("v_mov_b32 v25, s10")
    a("s_lshl_b32 s11, 1, s6")
    a("v_mov_b32 v26, s11")
    a("s_mov_b64 s[12:13], exec")
    a("s_mov_b64 exec, 1")
    a(f"global_atomic_add v25, v26, s[{PDBG}:{PDBG+1}] sc1")
    a("s_sub_u32 s11, s11, 1")
    a("s_mov_b32 s14, 100000")
    a.label("K1S_POLL")
    a("s_sub_u32 s14, s14, 1")
    a("s_cmp_eq_u32 s14, 0")
    a("s_cbranch_scc1 K1S_POLLED")
    a(f"global_load_dword v27, v25, s[{PDBG}:{PDBG+1}] sc1")
    a("s_waitcnt vmcnt(0)")
    a("v_readfirstlane_b32 s10, v27")
    a("s_and_b32 s10, s10, s11")
    a("s_cmp_eq_u32 s10, s11")
    a("s_cbranch_scc1 K1S_POLLED")
    a("s_sleep 2")
    a("s_branch K1S_POLL")
    a.label("K1S_POLLED")
    a("s_mov_b64 exec, s[12:13]")
    a.label("K1S_NOPOLL")
    a("s_barrier")
    a("v_lshlrev_b32 v24, 2, v18")
    for j in range(15):
        l = a.uid("K1SL")
        a(f"s_cmp_le_u32 s6, {j}")
        a(f"s_cbranch_scc1 K1S_LOADED")
        a(f"s_mov_b32 s10, {j*640*8}")
        for g in range(2):
            a(f"buffer_load_dwordx2 v[{64+32*g+2*j}:{65+32*g+2*j}], v24, s[80:83], s10 offen offset:{256*g} sc1")
    a.label("K1S_LOADED")
    for g in range(2):
        a(f"v_mov_b32 v{236+2*g}, 0")
        a(f"v_mov_b32 v{237+2*g}, 0")
    a("s_waitcnt vmcnt(0)")
    for j in range(15):
        a(f"s_cmp_le_u32 s6, {j}")
        a(f"s_cbranch_scc1 K1S_HDONE")
        for g in range(2):
            Hr, Hi = 236 + 2 * g, 237 + 2 * g
            cstep(Hr, Hi, PR(g, 6), PR(g, 7), Hr, Hi, 64 + 32 * g + 2 * j, 65 + 32 * g + 2 * j, 240 + 2 * g, 241 + 2 * g)
    a.label("K1S_HDONE")
    for g in range(2):
        Pr, Pi, wr, wi, Hr, Hi = 228 + 2 * g, 229 + 2 * g, 232 + 2 * g, 233 + 2 * g, 236 + 2 * g, 237 + 2 * g
        cstep(Pr, Pi, wr, wi, Hr, Hi, Pr, Pi, 240 + 2 * g, 241 + 2 * g)
    for r in range(16):
        for g in range(2):
            pr_, pi_ = (228 + 2 * g, 229 + 2 * g) if r == 0 else (RE(g, r - 1), IM(g, r - 1))
            mr, mi = PR(g, 0), PR(g, 1)
            re, im = RE(g, r), IM(g, r)
            a(f"v_fma_f32 v{re}, v{mr}, v{pr_}, v{re}")
            a(f"v_fma_f32 v{im}, v{mr}, v{pi_}, v{im}")
            a(f"v_fma_f32 v{re}, -v{mi}, v{pi_}, v{re}")
            a(f"v_fma_f32 v{im}, v{mi}, v{pr_}, v{im}")
    a("s_mul_i32 s10, s3, 10240")
    a("s_add_u32 s10, s10, 8192")
    a("v_and_b32 v3, 31, v2")
    a("v_mul_u32_u24 v3, 80, v3")
    a("v_lshrrev_b32 v4, 5, v2")
    a("v_lshl_add_u32 v3, v4, 5, v3")
    a("v_add_u32 v28, s10, v3")
    for g in range(2):
        for part in range(2):
            src = 128 + 32 * g + 16 * part
            neg = "-" if part else ""
            for i in range(8):
                a(f"v_cvt_pk_bf16_f32 v{32+i}, {neg}v{src+2*i}, {neg}v{src+2*i+1}")
            off = (g * 2 + part) * 2560
            a(f"ds_write_b128 v28, v[32:35] offset:{off}")
            a(f"ds_write_b128 v28, v[36:39] offset:{off+16}")
            a("s_nop 1")
    a("v_lshrrev_b32 v3, 4, v2")
    a("v_lshlrev_b32 v3, 3, v3")
    a("v_bfe_u32 v4, v2, 2, 2")
    a("v_add_u32 v3, v3, v4")
    a("v_mul_u32_u24 v3, 80, v3")
    a("v_and_b32 v4, 3, v2")
    a("v_lshl_add_u32 v3, v4, 3, v3")
    a("v_add_u32 v29, s10, v3")
    a("v_lshlrev_b32 v30, 4, v2")
    a("s_lshl_b32 s10, s6, 1")
    a("s_lshr_b32 s11, s4, 1")
    a("s_add_u32 s10, s10, s11")
    a("s_mul_i32 s10, s10, 94")
    a("s_lshr_b32 s11, s78, 4")
    a("s_add_u32 s10, s10, s11")
    a("s_lshl_b32 s10, s10, 12")
    a("s_and_b32 s11, s4, 1")
    a("s_lshl_b32 s11, s11, 11")
    a("s_add_u32 s10, s10, s11")
    a("s_waitcnt lgkmcnt(0)")
    for g in range(2):
        for part in range(2):
            off = (g * 2 + part) * 2560
            for i in range(2):
                b = 64 + ((g * 2 + part) * 2 + i) * 4
                a(f"ds_read_b64_tr_b16 v[{b}:{b+1}], v29 offset:{off + 32*i}")
                a(f"ds_read_b64_tr_b16 v[{b+2}:{b+3}], v29 offset:{off + 32*i + 320}")
    a("s_waitcnt lgkmcnt(0)")
    for g in range(2):
        for part in range(2):
            for i in range(2):
                b = 64 + ((g * 2 + part) * 2 + i) * 4
                a(f"s_add_u32 s11, s10, {(2*g + part)*4096 + i*1024}")
                a(f"buffer_store_dwordx4 v[{b}:{b+3}], v30, s[64:67], s11 offen")
    a.label("K1_END")
    a("s_endpgm")

def build(path):
    a = Asm()
    a.raw(HDR.rstrip("\n"))
    a.raw("; @launch kernel=k0_kernel grid=(256,1,1) block=(512,1,1) lds=16384")
    a.raw(f"; @launch kernel=k1_kernel grid=(256,1,1) block=(512,1,1) lds={K1_LDS}")
    a.raw(f"; @launch kernel=k2_kernel grid=(256,1,1) block=(256,1,1) lds={4*K2_TILE}")
    a.raw('.amdgcn_target "amdgcn-amd-amdhsa--gfx950"')
    a.raw(".text")
    gen_k0(a); gen_k1(a); gen_k2(a)
    a.raw('.section .rodata,"a"')
    a.raw(descriptor("k0_kernel", 128, 96, 128))
    a.raw(descriptor("k1_kernel", 256, 96, 256))
    a.raw(descriptor("k2_kernel", 256 + 80, 96, 256))
    t = a.text()
    open(path, "w").write(t)
    lint(t)

if __name__ == "__main__":
    import sys
    build(sys.argv[1] if len(sys.argv) > 1 else "v1.s")
```

```python
import sys
from asmlib import *

HDR = open("recurrent_scan__ssm_conv_s5__geglu_ffn__prompt.s.ref").read().split("; Override")[0]

XN_OFF = 0
AF_OFF = 4 << 20
BF_OFF = 20 << 20
E_OFF = 28 << 20
XN_SZ = 2048 * 1280
AF_SZ = 32 * 94 * 4096
BF_SZ = 8 * 94 * 5120
E_SZ = 16 * 640 * 8
SRD3 = 0x00020000

def P(i): return 16 + 2 * i
PX, PLRE, PLIM, PBRE, PBIM, PCRE, PCIM, PLDT, PDSK, PBX, PWG, PWU, PWD, POUT, PDBG, PWS = [P(i) for i in range(16)]

def load_args(a):
    a("s_load_dwordx16 s[16:31], s[0:1], 0")
    a("s_load_dwordx16 s[32:47], s[0:1], 64")

def mk_srd(a, d, p, size, off=0):
    if off:
        a(f"s_add_u32 s{d}, s{p}, {off}")
        a(f"s_addc_u32 s{d+1}, s{p+1}, 0")
    else:
        a(f"s_mov_b32 s{d}, s{p}")
        a(f"s_mov_b32 s{d+1}, s{p+1}")
    a(f"s_mov_b32 s{d+2}, {size}")
    a(f"s_mov_b32 s{d+3}, {SRD3:#x}")

def sdiv(a, dst, src, c, tmp=None):
    magic = -(-(1 << 32) // c)
    a(f"s_mul_hi_u32 s{dst}, s{src}, {magic}")

def vdiv(a, dst, src, c, stmp):
    magic = -(-(1 << 32) // c)
    a(f"s_mov_b32 s{stmp}, {magic}")
    a(f"v_mul_hi_u32 v{dst}, v{src}, s{stmp}")

import os
STAMP = int(os.environ.get("STAMP", "0"))
STAMP_OFF = 64 << 20
def stamp(a, slot, neg=False, vt=255):
    if not STAMP: return
    a("s_memrealtime s[92:93]")
    a("s_waitcnt lgkmcnt(0)")
    a(f"v_writelane_b32 v{vt}, s92, {slot}")
def stamp_flush(a, kidx, vt=255):
    if not STAMP: return
    if STAMP == 2:
        l = a.uid("SF")
        a(f"s_cmp_eq_u32 s2, {int(os.environ.get('DBGWG', '0'))}")
        a(f"s_cbranch_scc0 {l}")
        a("s_cmp_eq_u32 s3, 0")
        a(f"s_cbranch_scc0 {l}")
        a(f"s_add_u32 s92, s{PDBG}, {512*(2-kidx)}")
        a(f"s_addc_u32 s93, s{PDBG+1}, 0")
        a(f"v_mbcnt_lo_u32_b32 v{vt-1}, -1, 0")
        a(f"v_mbcnt_hi_u32_b32 v{vt-1}, -1, v{vt-1}")
        a(f"v_lshlrev_b32 v{vt-1}, 2, v{vt-1}")
        a(f"v_add_u32 v{vt-1}, {[0,8,32][kidx]}, v{vt-1}")
        a(f"s_mov_b64 exec, {[3, 63, 15][kidx]}")
        a(f"global_store_dword v{vt-1}, v{vt}, s[92:93]")
        a.label(l)
        return
    a(f"s_add_u32 s92, s{PWS}, {STAMP_OFF}")
    a(f"s_addc_u32 s93, s{PWS+1}, 0")
    a(f"s_lshl_b32 s94, s2, 3")
    a(f"s_and_b32 s95, s3, 7")
    a(f"s_add_u32 s94, s94, s95")
    a(f"s_add_u32 s94, s94, {kidx*2048}")
    a(f"s_lshl_b32 s94, s94, 8")
    a(f"v_mbcnt_lo_u32_b32 v{vt-1}, -1, 0")
    a(f"v_mbcnt_hi_u32_b32 v{vt-1}, -1, v{vt-1}")
    a(f"v_lshlrev_b32 v{vt-1}, 2, v{vt-1}")
    a(f"v_add_u32 v{vt-1}, s94, v{vt-1}")
    a(f"global_store_dword v{vt-1}, v{vt}, s[92:93]")

def kernel_begin(a, name):
    a.raw(f".globl {name}")
    a.raw(".p2align 8")
    a.raw(f".type {name},@function")
    a.label(name)

def descriptor(name, vgpr, sgpr, accum):
    return f""".p2align 6
.amdhsa_kernel {name}
  .amdhsa_next_free_vgpr {vgpr}
  .amdhsa_next_free_sgpr {sgpr}
  .amdhsa_accum_offset {accum}
  .amdhsa_group_segment_fixed_size 0
  .amdhsa_kernarg_size 128
  .amdhsa_user_sgpr_count 2
  .amdhsa_user_sgpr_kernarg_segment_ptr 1
  .amdhsa_system_sgpr_workgroup_id_x 1
.end_amdhsa_kernel
"""

def gen_k0(a):
    kernel_begin(a, "k0_kernel")
    a("s_cmp_ge_u32 s2, 256")
    a("s_cbranch_scc1 K0_END")
    load_args(a)
    a("v_lshrrev_b32 v1, 6, v0")
    a("v_and_b32 v2, 63, v0")
    a("s_nop 0")
    a("v_readfirstlane_b32 s3, v1")
    a("s_waitcnt lgkmcnt(0)")
    a('v_mov_b32 v127, 0') if STAMP else None; stamp(a, 0, vt=127)
    a("s_cmp_ge_u32 s2, 200")
    a("s_cbranch_scc1 K0_NOC")
    a("s_lshl_b32 s4, s2, 3")
    a("s_add_u32 s4, s4, s3")
    sdiv(a, 5, 4, 200)
    a("s_mul_i32 s6, s5, 200")
    a("s_sub_u32 s6, s4, s6")
    sdiv(a, 7, 6, 5)
    a("s_mul_i32 s8, s7, 5")
    a("s_sub_u32 s8, s6, s8")
    a("s_bitcmp1_b32 s7, 0")
    a(f"s_cselect_b32 s48, s{PCIM}, s{PCRE}")
    a(f"s_cselect_b32 s49, s{PCIM+1}, s{PCRE+1}")
    a(f"s_mov_b32 s50, {640*1280}")
    a(f"s_mov_b32 s51, {SRD3:#x}")
    mk_srd(a, 52, PWS, BF_SZ, BF_OFF)
    a("s_mul_i32 s9, s5, 80")
    a("s_lshl_b32 s10, s8, 4")
    a("s_add_u32 s9, s9, s10")
    a("v_and_b32 v3, 15, v2")
    a("v_add_u32 v3, s9, v3")
    a("v_mul_u32_u24 v3, 1280, v3")
    a("v_lshrrev_b32 v4, 4, v2")
    a("v_lshl_add_u32 v3, v4, 4, v3")
    a("s_lshr_b32 s10, s7, 1")
    a("s_lshl_b32 s10, s10, 6")
    a("buffer_load_dwordx4 v[8:11], v3, s[48:51], s10 offen")
    a("s_mul_i32 s11, s5, 94")
    a("s_add_u32 s11, s11, s7")
    a("s_mul_i32 s11, s11, 5")
    a("s_add_u32 s11, s11, s8")
    a("s_lshl_b32 s11, s11, 10")
    a("v_lshlrev_b32 v5, 4, v2")
    a("s_waitcnt vmcnt(0)")
    a("buffer_store_dwordx4 v[8:11], v5, s[52:55], s11 offen")
    a.label("K0_NOC")
    a("s_cmp_ge_u32 s2, 216")
    a("s_cbranch_scc1 K0_NOW")
    a("s_lshr_b32 s4, s3, 1")
    a("s_cmp_lg_u32 s4, 1")
    a("s_cbranch_scc1 K0_NOW")
    a("s_lshl_b32 s4, s2, 1")
    a("s_and_b32 s5, s3, 1")
    a("s_add_u32 s4, s4, s5")
    sdiv(a, 5, 4, 54)
    a("s_mul_i32 s6, s5, 54")
    a("s_sub_u32 s6, s4, s6")
    mk_srd(a, 48, PWD, 1728 * 1280)
    mk_srd(a, 52, PWS, BF_SZ, BF_OFF)
    a(f"s_mul_i32 s7, s6, {32*1280}")
    a("s_mul_i32 s8, s5, 160")
    a("s_add_u32 s7, s7, s8")
    a("s_and_b32 s9, s3, 1")
    a("s_lshl_b32 s9, s9, 13")
    for i in range(5):
        a(f"v_add_u32 v3, {64*i}, v2")
        vdiv(a, 4, 3, 10, 10)
        a("v_mul_u32_u24 v5, 10, v4")
        a("v_sub_u32 v5, v3, v5")
        a("v_mul_u32_u24 v4, 1280, v4")
        a("v_lshl_add_u32 v4, v5, 4, v4")
        a(f"s_add_u32 m0, s9, {1024*i}")
        a("s_nop 0")
        a("buffer_load_dwordx4 v4, s[48:51], s7 offen lds")
    a("v_lshrrev_b32 v3, 5, v2")
    a("v_lshlrev_b32 v3, 4, v3")
    a("v_bfe_u32 v4, v2, 4, 1")
    a("v_lshl_add_u32 v3, v4, 2, v3")
    a("v_bfe_u32 v4, v2, 2, 2")
    a("v_add_u32 v3, v3, v4")
    a("v_mul_u32_u24 v3, 160, v3")
    a("v_and_b32 v4, 3, v2")
    a("v_lshl_add_u32 v3, v4, 3, v3")
    a("v_add_u32 v3, s9, v3")
    a("s_mul_i32 s11, s5, 94")
    a("s_add_u32 s11, s11, s6")
    a("s_add_u32 s11, s11, 40")
    a("s_mul_i32 s11, s11, 5120")
    a("v_lshlrev_b32 v5, 4, v2")
    a("s_waitcnt vmcnt(0)")
    for j in range(5):
        a(f"ds_read_b64_tr_b16 v[{8+4*j}:{9+4*j}], v3 offset:{32*j}")
        a(f"ds_read_b64_tr_b16 v[{10+4*j}:{11+4*j}], v3 offset:{32*j+8*160}")
    a("s_waitcnt lgkmcnt(0)")
    for j in range(5):
        a(f"s_add_u32 s12, s11, {1024*j}")
        a(f"buffer_store_dwordx4 v[{8+4*j}:{11+4*j}], v5, s[52:55], s12 offen")
    a.label("K0_NOW")
    a("s_cmp_ge_u32 s3, 2")
    a("s_cbranch_scc1 K0_END")
    mk_srd(a, 48, PX, XN_SZ)
    mk_srd(a, 52, PWS, XN_SZ, XN_OFF)
    a("s_lshl_b32 s4, s2, 3")
    a("s_lshl_b32 s5, s3, 2")
    a("s_add_u32 s4, s4, s5")
    a("v_lshrrev_b32 v3, 4, v2")
    a("v_add_u32 v3, s4, v3")
    a("v_mul_u32_u24 v3, 1280, v3")
    a("v_and_b32 v4, 15, v2")
    a("v_lshl_add_u32 v3, v4, 4, v3")
    for i in range(5):
        a(f"buffer_load_dwordx4 v[{8+4*i}:{11+4*i}], v3, s[48:51], 0 offen offset:{256*i}")
    a("s_waitcnt vmcnt(0)")
    for i in range(20):
        a(f"v_lshlrev_b32 v{32+2*i}, 16, v{8+i}")
        a(f"v_and_b32 v{33+2*i}, 0xffff0000, v{8+i}")
    a("v_add_f32 v5, v32, v33")
    for i in range(2, 40):
        a(f"v_add_f32 v5, v5, v{32+i}")
    def dpp_allreduce(reg):
        for sh in (8, 4, 2, 1):
            a("s_nop 1")
            a(f"v_add_f32_dpp v{reg}, v{reg}, v{reg} row_ror:{sh} row_mask:0xf bank_mask:0xf")
    dpp_allreduce(5)
    a(f"v_mul_f32 v5, {1.0/640:.10e}, v5".replace("e-03", "e-03"))
    a("v_sub_f32 v7, v32, v5")
    a("v_mul_f32 v6, v7, v7")
    for i in range(1, 40):
        a(f"v_sub_f32 v7, v{32+i}, v5")
        a("v_fmac_f32 v6, v7, v7")
    dpp_allreduce(6)
    a(f"v_mul_f32 v6, {1.0/640:.10e}, v6")
    a("v_cvt_pk_bf16_f32 v5, v5, v6")
    a("v_and_b32 v6, 0xffff0000, v5")
    a("v_lshlrev_b32 v5, 16, v5")
    a("v_add_f32 v6, 0x3727c5ac, v6")
    a("v_cvt_pk_bf16_f32 v6, v6, v6")
    a("v_and_b32 v6, 0xffff0000, v6")
    a("v_sqrt_f32 v6, v6")
    a("s_nop 0")
    a("v_cvt_pk_bf16_f32 v6, v6, v6")
    a("v_and_b32 v6, 0xffff0000, v6")
    a("v_rcp_f32 v6, v6")
    for i in range(20):
        lo, hi = 32 + 2 * i, 33 + 2 * i
        a(f"v_sub_f32 v{lo}, v{lo}, v5")
        a(f"v_sub_f32 v{hi}, v{hi}, v5")
        a(f"v_cvt_pk_bf16_f32 v7, v{lo}, v{hi}")
        a(f"v_lshlrev_b32 v{lo}, 16, v7")
        a(f"v_and_b32 v{hi}, 0xffff0000, v7")
        a(f"v_mul_f32 v{lo}, v{lo}, v6")
        a(f"v_mul_f32 v{hi}, v{hi}, v6")
        a(f"v_cvt_pk_bf16_f32 v{8+i}, v{lo}, v{hi}")
    for i in range(5):
        a(f"buffer_store_dwordx4 v[{8+4*i}:{11+4*i}], v3, s[52:55], 0 offen offset:{256*i}")
    a("s_waitcnt vmcnt(0)")
    stamp(a, 1, vt=127); stamp_flush(a, 0, 127)
    a.label("K0_END")
    a("s_endpgm")

K2_D = 4
K2_PITCH = 336
K2_TILE = 64 * K2_PITCH
def gen_k2(a):
    D = K2_D
    kernel_begin(a, "k2_kernel")
    a("s_cmp_ge_u32 s2, 256")
    a("s_cbranch_scc1 K2_END")
    load_args(a)
    a("v_lshrrev_b32 v1, 6, v0")
    a("v_and_b32 v2, 63, v0")
    a("s_nop 0")
    a("v_readfirstlane_b32 s3, v1")
    a("s_and_b32 s4, s2, 7")
    a("s_lshr_b32 s5, s2, 3")
    a("s_lshr_b32 s6, s4, 1")
    a("s_lshl_b32 s6, s6, 3")
    a("s_and_b32 s7, s5, 7")
    a("s_add_u32 s6, s6, s7")
    a("s_and_b32 s7, s4, 1")
    a("s_lshl_b32 s7, s7, 2")
    a("s_lshr_b32 s8, s5, 3")
    a("s_add_u32 s7, s7, s8")
    a("s_mul_i32 s8, s3, 20")
    a("s_add_u32 s9, s8, 20")
    a("s_cmp_eq_u32 s3, 3")
    a("s_cselect_b32 s8, 67, s8")
    a("s_cselect_b32 s9, 94, s9")
    a("s_cmp_eq_u32 s3, 2")
    a("s_cselect_b32 s9, 67, s9")
    a("s_waitcnt lgkmcnt(0)")
    a('v_mov_b32 v255, 0') if STAMP else None; stamp(a, 0)
    mk_srd(a, 48, PWS, AF_SZ, AF_OFF)
    mk_srd(a, 52, PWS, BF_SZ, BF_OFF)
    a("s_mul_i32 s10, s6, 94")
    a("s_add_u32 s10, s10, s8")
    a("s_lshl_b32 s10, s10, 12")
    a("s_mul_i32 s11, s7, 94")
    a("s_add_u32 s11, s11, s8")
    a("s_mul_i32 s11, s11, 5120")
    a("v_lshlrev_b32 v3, 4, v2")
    a("v_add_u32 v4, 4096, v3")
    SET0 = 32
    def setb(i): return SET0 + 36 * i
    def issue(i):
        b = setb(i)
        for t in range(4):
            a(f"buffer_load_dwordx4 v[{b+4*t}:{b+4*t+3}], v3, s[48:51], s10 offen offset:{1024*t}")
        for t in range(4):
            a(f"buffer_load_dwordx4 v[{b+16+4*t}:{b+16+4*t+3}], v3, s[52:55], s11 offen offset:{1024*t}")
        a(f"buffer_load_dwordx4 v[{b+32}:{b+35}], v4, s[52:55], s11 offen")
        a("s_add_u32 s10, s10, 4096")
        a("s_add_u32 s11, s11, 5120")
    for i in range(D):
        issue(i)
    mk_srd(a, 56, PX, XN_SZ)
    mk_srd(a, 60, PWS, XN_SZ, XN_OFF)
    mk_srd(a, 64, PDSK, 1280)
    mk_srd(a, 68, POUT, 2048 * 2560)
    for i in range(80):
        a(f"v_accvgpr_write_b32 a{i}, 0")
    a("s_sub_u32 s12, s9, s8")
    a(f"s_sub_u32 s13, s12, {D}")
    a.label("K2_LOOP")
    for i in range(D):
        b = setb(i)
        l1 = a.uid("K2W"); l2 = a.uid("K2S")
        a("s_cmp_lg_u32 s13, 0")
        a(f"s_cbranch_scc1 {l1}")
        a("s_waitcnt vmcnt(0)")
        a.label(l1)
        a(f"s_waitcnt vmcnt({9*(D-1)})")
        for ti in range(4):
            for j in range(5):
                ac = (ti * 5 + j) * 4
                a(f"v_mfma_f32_16x16x32_bf16 a[{ac}:{ac+3}], v[{b+16+4*j}:{b+16+4*j+3}], v[{b+4*ti}:{b+4*ti+3}], a[{ac}:{ac+3}]")
        a("s_cmp_lg_u32 s13, 0")
        a(f"s_cbranch_scc0 {l2}")
        issue(i)
        a("s_sub_u32 s13, s13, 1")
        a.label(l2)
        a("s_sub_u32 s12, s12, 1")
        a("s_cmp_lg_u32 s12, 0")
        if i < D - 1:
            a("s_cbranch_scc0 K2_DONE")
        else:
            a("s_cbranch_scc1 K2_LOOP")
    a.label("K2_DONE")
    stamp(a, 1)
    a("v_and_b32 v5, 15, v2")
    a(f"v_mul_u32_u24 v5, {K2_PITCH}, v5")
    a("v_lshrrev_b32 v6, 4, v2")
    a("v_lshl_add_u32 v5, v6, 4, v5")
    a(f"s_mul_i32 s14, s3, {K2_TILE}")
    a("v_add_u32 v5, s14, v5")
    a("s_nop 7")
    for ti in range(4):
        for j in range(5):
            ac = (ti * 5 + j) * 4
            a(f"ds_write_b128 v5, a[{ac}:{ac+3}] offset:{ti*16*K2_PITCH + j*64}")
    for i in range(5):
        a(f"v_add_u32 v6, {256*i}, v0")
        vdiv(a, 7, 6, 20, 14)
        a("v_mul_u32_u24 v8, 20, v7")
        a("v_sub_u32 v8, v6, v8")
        a(f"v_mul_u32_u24 v{16+i}, {K2_PITCH}, v7")
        a(f"v_lshl_add_u32 v{16+i}, v8, 4, v{16+i}")
        a("s_lshl_b32 s15, s6, 6")
        a("v_add_u32 v7, s15, v7")
        a("s_mul_i32 s15, s7, 80")
        a("v_lshl_add_u32 v8, v8, 2, s15")
        a("v_mul_u32_u24 v9, 640, v7")
        a("v_add_u32 v9, v9, v8")
        a(f"v_lshlrev_b32 v{21+i}, 2, v9")
        a("v_lshlrev_b32 v9, 1, v9")
        a("v_lshlrev_b32 v8, 1, v8")
        a(f"buffer_load_dwordx2 v[{32+6*i}:{33+6*i}], v9, s[56:59], 0 offen")
        a(f"buffer_load_dwordx2 v[{34+6*i}:{35+6*i}], v9, s[60:63], 0 offen")
        a(f"buffer_load_dwordx2 v[{36+6*i}:{37+6*i}], v8, s[64:67], 0 offen")
    a("s_waitcnt lgkmcnt(0)")
    a("s_barrier")
    stamp(a, 2)
    for i in range(5):
        r = 64
        for w in range(4):
            a(f"ds_read_b128 v[{r+4*w}:{r+4*w+3}], v{16+i} offset:{w*K2_TILE}" if w * K2_TILE < 65536 else "")
            if w * K2_TILE >= 65536:
                a(f"v_add_u32 v26, {w*K2_TILE}, v{16+i}")
                a(f"ds_read_b128 v[{r+4*w}:{r+4*w+3}], v26")
        a("s_waitcnt vmcnt(0) lgkmcnt(0)")
        for e in range(4):
            y, y2, f, f2 = r + e, r + 4 + e, r + 8 + e, r + 12 + e
            xw, xnw, dw = 32 + 6 * i + (e >> 1), 34 + 6 * i + (e >> 1), 36 + 6 * i + (e >> 1)
            a(f"v_add_f32 v{y}, v{y}, v{y2}")
            a(f"v_add_f32 v{f}, v{f}, v{f2}")
            if e & 1:
                a(f"v_and_b32 v10, 0xffff0000, v{xw}")
                a(f"v_and_b32 v11, 0xffff0000, v{xnw}")
                a(f"v_and_b32 v12, 0xffff0000, v{dw}")
            else:
                a(f"v_lshlrev_b32 v10, 16, v{xw}")
                a(f"v_lshlrev_b32 v11, 16, v{xnw}")
                a(f"v_lshlrev_b32 v12, 16, v{dw}")
            a(f"v_fmac_f32 v{y}, v11, v12")
            a(f"v_mul_f32 v13, 0xbfb8aa3b, v{f}")
            a("v_exp_f32 v13, v13")
            a("s_nop 0")
            a("v_add_f32 v13, 1.0, v13")
            a("v_rcp_f32 v13, v13")
            a("s_nop 0")
            a(f"v_mul_f32 v13, v13, v{f}")
            a(f"v_fma_f32 v{80+e}, v{y}, v13, v10")
        a(f"buffer_store_dwordx4 v[80:83], v{21+i}, s[68:71], 0 offen")
        a("s_nop 1")
    a("s_waitcnt vmcnt(0)")
    stamp(a, 3); stamp_flush(a, 2)
    a.label("K2_END")
    a("s_endpgm")

if __name__ == "__main__":
    pass
```

```python
from asmlib import *
from gen1 import *

SB = 28736
NSLOT = 5
XR = 0
GR = 8192
UR = 8192 + 10240 + 32
IR = 16384
K1_LDS = NSLOT * SB
NST = 20

LOG2E = 1.4426950408889634
def f32hex(x):
    import struct
    return "0x%08x" % struct.unpack("<I", struct.pack("<f", x))[0]

def gen_k1(a):
    kernel_begin(a, "k1_kernel")
    a("s_cmp_ge_u32 s2, 256")
    a("s_cbranch_scc1 K1_END")
    load_args(a)
    a("v_lshrrev_b32 v1, 6, v0")
    a("v_and_b32 v2, 63, v0")
    a("s_nop 0")
    a("v_readfirstlane_b32 s3, v1")
    a("s_and_b32 s8, s2, 7")
    a("s_lshr_b32 s9, s2, 3")
    a("s_and_b32 s6, s8, 1")
    a("s_lshl_b32 s6, s6, 3")
    a("s_and_b32 s10, s9, 7")
    a("s_add_u32 s6, s6, s10")
    a("s_lshr_b32 s7, s8, 1")
    a("s_lshl_b32 s7, s7, 2")
    a("s_lshr_b32 s10, s9, 3")
    a("s_add_u32 s7, s7, s10")
    a("s_and_b32 s4, s3, 3")
    a("s_lshr_b32 s5, s3, 2")
    a("s_waitcnt lgkmcnt(0)")
    a('v_mov_b32 v255, 0') if STAMP else None; stamp(a, 0)
    mk_srd(a, 48, PWS, XN_SZ, XN_OFF)
    mk_srd(a, 64, PWS, AF_SZ, AF_OFF)
    a("s_lshl_b32 s10, s6, 7")
    a("s_lshl_b32 s11, s3, 4")
    a("s_add_u32 s10, s10, s11")
    a("v_lshrrev_b32 v3, 2, v2")
    a("v_add_u32 v4, s10, v3")
    a("v_mul_u32_u24 v8, 1280, v4")
    a("v_and_b32 v5, 3, v2")
    a("v_bfe_u32 v6, v2, 4, 2")
    a("v_xor_b32 v5, v5, v6")
    a("v_lshl_add_u32 v8, v5, 4, v8")
    a("s_cmp_ge_u32 s7, 11")
    a("s_cbranch_scc1 K1_SSM")

    mk_srd(a, 52, PWG, 640 * 3456)
    a("s_cmp_lt_u32 s3, 2")
    a(f"s_cselect_b32 s56, s{PWG}, s{PWU}")
    a(f"s_cselect_b32 s57, s{PWG+1}, s{PWU+1}")
    a(f"s_mov_b32 s58, {640*3456}")
    a(f"s_mov_b32 s59, {SRD3:#x}")
    mk_srd(a, 60, PWU, 640 * 3456)
    a("s_add_u32 s10, s3, 8")
    a("s_sub_u32 s11, s3, 2")
    a("s_cmp_lt_u32 s3, 2")
    a("s_cselect_b32 s10, s10, s11")
    a(f"s_mov_b32 s12, {UR}")
    a(f"s_cselect_b32 s11, {GR}, s12")
    a("s_lshl_b32 s12, s10, 10")
    a("s_add_u32 s71, s12, s11")
    a("s_lshl_b32 s12, s3, 10")
    a(f"s_add_u32 s70, s12, {GR}")
    a(f"s_add_u32 s72, s12, {UR + 6*1024}")
    a(f"s_add_u32 s69, s12, {XR}")
    def woff(dst, sidx_expr):
        a(f"s_lshl_b32 s12, {sidx_expr}, 6")
        a("v_add_u32 v3, s12, v2")
        vdiv(a, 4, 3, 20, 13)
        a("v_mul_u32_u24 v5, 20, v4")
        a("v_sub_u32 v5, v3, v5")
        a("v_mul_u32_u24 v4, 3456, v4")
        a(f"v_lshl_add_u32 v{dst}, v5, 4, v4")
    woff(9, "s3")
    woff(10, "s10")
    a("s_add_u32 s11, s3, 6")
    woff(11, "s11")
    a("s_mul_i32 s73, s7, 320")
    a("s_mov_b32 s74, 0")
    a("s_mov_b32 s75, 0")
    def dma_ffn():
        a("s_add_u32 m0, s75, s69")
        a("s_nop 0")
        a("buffer_load_dwordx4 v8, s[48:51], s74 offen lds")
        a("s_add_u32 m0, s75, s70")
        a("s_nop 0")
        a("buffer_load_dwordx4 v9, s[52:55], s73 offen lds")
        a("s_add_u32 m0, s75, s71")
        a("s_nop 0")
        a("buffer_load_dwordx4 v10, s[56:59], s73 offen lds")
        l = a.uid("K1F3")
        a("s_cmp_lt_u32 s3, 4")
        a(f"s_cbranch_scc0 {l}")
        a("s_add_u32 m0, s75, s72")
        a("s_nop 0")
        a("buffer_load_dwordx4 v11, s[60:63], s73 offen lds")
        a.label(l)
        a("s_add_u32 s74, s74, 64")
        a(f"s_add_u32 s73, s73, {32*3456}")
        a(f"s_add_u32 s75, s75, {SB}")
        a(f"s_cmp_ge_u32 s75, {NSLOT*SB}")
        a("s_cselect_b32 s75, 0, s75")
    for st in range(NSLOT):
        dma_ffn()
    a("v_and_b32 v3, 31, v2")
    a("s_lshl_b32 s10, s4, 5")
    a("v_add_u32 v3, s10, v3")
    a("v_lshlrev_b32 v12, 6, v3")
    a("v_lshrrev_b32 v4, 5, v2")
    a("v_bfe_u32 v5, v2, 2, 2")
    a("v_xor_b32 v4, v4, v5")
    a("v_lshl_add_u32 v12, v4, 4, v12")
    a("v_xor_b32 v13, 32, v12")
    a("v_lshrrev_b32 v3, 5, v2")
    a("v_lshlrev_b32 v3, 3, v3")
    a("v_bfe_u32 v4, v2, 2, 2")
    a("v_add_u32 v3, v3, v4")
    a("v_mul_u32_u24 v14, 320, v3")
    a("v_and_b32 v4, 3, v2")
    a("v_lshl_add_u32 v14, v4, 3, v14")
    a("v_bfe_u32 v4, v2, 4, 1")
    a(f"v_mul_u32_u24 v4, {UR-GR}, v4")
    a("v_add_u32 v14, v14, v4")
    a("s_mul_i32 s10, s5, 160")
    a(f"s_add_u32 s10, s10, {GR}")
    a("v_add_u32 v14, s10, v14")
    for i in range(80):
        a(f"v_mov_b32 v{128+i}, 0")
    SETS = (32, 80)
    def reads_ffn(setb, ra):
        out = []
        out.append(f"ds_read_b128 v[{setb}:{setb+3}], v15")
        out.append(f"ds_read_b128 v[{setb+4}:{setb+7}], v16")
        for ks in range(2):
            for j in range(5):
                b = setb + 8 + (ks * 5 + j) * 4
                off = ks * 5120 + j * 32
                out.append(f"ds_read_b64_tr_b16 v[{b}:{b+1}], v17 offset:{off}")
                out.append(f"ds_read_b64_tr_b16 v[{b+2}:{b+3}], v17 offset:{off+1280}")
        return out
    def rd_addr():
        a("v_add_u32 v15, s76, v12")
        a("v_add_u32 v16, s76, v13")
        a("v_add_u32 v17, s76, v14")
        a(f"s_add_u32 s76, s76, {SB}")
        a(f"s_cmp_ge_u32 s76, {NSLOT*SB}")
        a("s_cselect_b32 s76, 0, s76")
    def wait_group(n_hi, n_lo):
        l1 = a.uid("K1W"); l2 = a.uid("K1W")
        a("s_cmp_lt_u32 s77, 16")
        a(f"s_cbranch_scc1 {l1}")
        a("s_waitcnt vmcnt(0)")
        a.label(l1)
        if n_hi != n_lo:
            a("s_cmp_lt_u32 s3, 4")
            a(f"s_cbranch_scc1 {l2}")
            a(f"s_waitcnt vmcnt({3*n_lo})")
            a.label(l2)
        a(f"s_waitcnt vmcnt({3*n_hi})")
    a("s_cmp_lt_u32 s3, 4")
    a("s_cbranch_scc1 K1F_P1")
    a("s_waitcnt vmcnt(12)")
    a.label("K1F_P1")
    a("s_waitcnt vmcnt(16)")
    a("s_barrier")
    stamp(a, 1)
    a("s_mov_b32 s76, 0")
    rd_addr()
    for r in reads_ffn(SETS[0], None): a(r)
    a("s_mov_b32 s77, 0")
    a.label("K1F_LOOP")
    for u in range(2):
        cur, nxt = SETS[u], SETS[1 - u]
        wait_group(4, 3)
        a("s_waitcnt lgkmcnt(0)")
        a("s_barrier")
        l = a.uid("K1D")
        a(f"s_cmp_lt_u32 s77, {NST-NSLOT}")
        a(f"s_cbranch_scc0 {l}")
        dma_ffn()
        a.label(l)
        rd_addr()
        rd = reads_ffn(nxt, None)
        mf = []
        for ks in range(2):
            for j in range(5):
                w = cur + 8 + (ks * 5 + j) * 4
                x = cur + 4 * ks
                ac = 128 + 16 * j
                mf.append(f"v_mfma_f32_32x32x16_bf16 v[{ac}:{ac+15}], v[{w}:{w+3}], v[{x}:{x+3}], v[{ac}:{ac+15}]")
        ri = 0
        for m in mf:
            a(m)
            for _ in range(3):
                if ri < len(rd): a(rd[ri]); ri += 1
        while ri < len(rd): a(rd[ri]); ri += 1
        a("s_add_u32 s77, s77, 1")
    a(f"s_cmp_lt_u32 s77, {NST}")
    a("s_cbranch_scc1 K1F_LOOP")
    a("s_waitcnt lgkmcnt(0)")
    stamp(a, 2)
    a("s_and_b32 s10, s4, 1")
    a("s_lshl_b32 s10, s10, 11")
    a("v_bfe_u32 v3, v2, 4, 1")
    a("v_lshlrev_b32 v3, 10, v3")
    a("v_and_b32 v4, 15, v2")
    a("v_lshl_add_u32 v3, v4, 4, v3")
    a("v_lshrrev_b32 v4, 5, v2")
    a("v_lshl_add_u32 v3, v4, 8, v3")
    a("v_add_u32 v3, s10, v3")
    a("s_lshl_b32 s10, s6, 1")
    a("s_lshr_b32 s11, s4, 1")
    a("s_add_u32 s10, s10, s11")
    a("s_mul_i32 s10, s10, 94")
    a("s_add_u32 s10, s10, 40")
    a("s_mul_i32 s11, s7, 10")
    a("s_mul_i32 s12, s5, 5")
    a("s_add_u32 s11, s11, s12")
    C1 = -2.0 * LOG2E * 0.7978845608028654
    C2 = C1 * 0.044715
    a(f"s_mov_b32 s14, {f32hex(C1)}")
    a(f"s_mov_b32 s15, {f32hex(C2)}")
    a("v_mov_b32 v40, s14")
    a("s_nop 7")
    for j in range(5):
        ac = 128 + 16 * j
        l = a.uid("K1FS")
        a(f"s_add_u32 s12, s11, {j}")
        a("s_cmp_ge_u32 s12, 108")
        a(f"s_cbranch_scc1 {l}")
        for r in range(8):
            g, u = ac + r, ac + 8 + r
            t = 32 + r
            a(f"v_mul_f32 v{t}, v{g}, v{g}")
            a(f"v_fma_f32 v{t}, v{t}, s15, v40")
            a(f"v_mul_f32 v{t}, v{t}, v{g}")
            a(f"v_exp_f32 v{t}, v{t}")
            a(f"v_mul_f32 v{u}, v{g}, v{u}")
            a(f"v_add_f32 v{t}, 1.0, v{t}")
            a(f"v_rcp_f32 v{t}, v{t}")
            a("s_nop 0")
            a(f"v_mul_f32 v{u}, v{u}, v{t}")
        for r in range(4):
            a(f"v_cvt_pk_bf16_f32 v{44+r}, v{ac+8+2*r}, v{ac+9+2*r}")
        a("s_lshr_b32 s13, s12, 1")
        a("s_add_u32 s13, s13, s10")
        a("s_lshl_b32 s13, s13, 12")
        a("s_and_b32 s12, s12, 1")
        a("s_lshl_b32 s12, s12, 9")
        a("s_add_u32 s13, s13, s12")
        a("buffer_store_dwordx4 v[44:47], v3, s[64:67], s13 offen")
        a("s_nop 1")
        a.label(l)
    a("s_waitcnt vmcnt(0)")
    stamp(a, 3); stamp_flush(a, 1)
    a("s_endpgm")

    a.label("K1_SSM")
    a("s_sub_u32 s7, s7, 11")
    mk_srd(a, 52, PBRE, 640 * 1280)
    mk_srd(a, 56, PBIM, 640 * 1280)
    mk_srd(a, 80, PLRE, 1280)
    mk_srd(a, 84, PLIM, 1280)
    mk_srd(a, 88, PLDT, 1280)
    a("s_lshl_b32 s10, s7, 7")
    a("s_lshl_b32 s11, s5, 6")
    a("s_add_u32 s78, s10, s11")
    a("v_and_b32 v3, 31, v2")
    a("v_add_u32 v3, s78, v3")
    a("v_lshlrev_b32 v18, 1, v3")
    for g in range(2):
        a(f"buffer_load_ushort v{224+3*g}, v18, s[80:83], 0 offen offset:{64*g}")
        a(f"buffer_load_ushort v{225+3*g}, v18, s[84:87], 0 offen offset:{64*g}")
        a(f"buffer_load_ushort v{226+3*g}, v18, s[88:91], 0 offen offset:{64*g}")
    a("s_lshl_b32 s10, s7, 7")
    a("s_lshl_b32 s11, s3, 4")
    a("s_add_u32 s10, s10, s11")
    a("v_lshrrev_b32 v3, 2, v2")
    a("v_add_u32 v4, s10, v3")
    a("v_mul_u32_u24 v9, 1280, v4")
    a("v_lshl_add_u32 v9, v5, 4, v9")
    a("s_lshl_b32 s12, s3, 10")
    a(f"s_add_u32 s69, s12, {XR}")
    a(f"s_add_u32 s70, s12, {GR}")
    a(f"s_add_u32 s71, s12, {IR}")
    a("s_mov_b32 s74, 0")
    a("s_mov_b32 s75, 0")
    def dma_ssm():
        a("s_add_u32 m0, s75, s69")
        a("s_nop 0")
        a("buffer_load_dwordx4 v8, s[48:51], s74 offen lds")
        a("s_add_u32 m0, s75, s70")
        a("s_nop 0")
        a("buffer_load_dwordx4 v9, s[52:55], s74 offen lds")
        a("s_add_u32 m0, s75, s71")
        a("s_nop 0")
        a("buffer_load_dwordx4 v9, s[56:59], s74 offen lds")
        a("s_add_u32 s74, s74, 64")
        a(f"s_add_u32 s75, s75, {SB}")
        a(f"s_cmp_ge_u32 s75, {NSLOT*SB}")
        a("s_cselect_b32 s75, 0, s75")
    for st in range(NSLOT):
        dma_ssm()
    a("v_bfe_u32 v3, v2, 2, 1")
    a("v_lshlrev_b32 v3, 4, v3")
    a("v_and_b32 v4, 3, v2")
    a("v_add_u32 v3, v3, v4")
    a("v_bfe_u32 v4, v2, 3, 2")
    a("v_lshl_add_u32 v3, v4, 2, v3")
    a("v_bfe_u32 v6, v3, 2, 2")
    a("s_lshl_b32 s10, s4, 5")
    a("v_add_u32 v3, s10, v3")
    a("v_lshlrev_b32 v12, 6, v3")
    a("v_lshrrev_b32 v4, 5, v2")
    a("v_xor_b32 v6, v4, v6")
    a("v_lshl_add_u32 v12, v6, 4, v12")
    a("v_xor_b32 v13, 32, v12")
    a("v_and_b32 v3, 31, v2")
    a("s_lshl_b32 s10, s5, 6")
    a("v_add_u32 v3, s10, v3")
    a("v_lshlrev_b32 v14, 6, v3")
    a("v_bfe_u32 v6, v2, 2, 2")
    a("v_xor_b32 v6, v4, v6")
    a("v_lshl_add_u32 v14, v6, 4, v14")
    a(f"v_add_u32 v14, {GR}, v14")
    a("v_xor_b32 v19, 32, v14")
    for i in range(64):
        a(f"v_mov_b32 v{128+i}, 0")
    a("s_waitcnt vmcnt(15)")
    PR = lambda g, k: 208 + 8 * g + k
    for g in range(2):
        lre, lim, ldt = 224 + 3 * g, 225 + 3 * g, 226 + 3 * g
        ar_, ai_, cr_, ci_, qr, qi, hr, hi = [PR(g, k) for k in range(8)]
        a(f"v_lshlrev_b32 v{lre}, 16, v{lre}")
        a(f"v_lshlrev_b32 v{lim}, 16, v{lim}")
        a(f"v_lshlrev_b32 v{ldt}, 16, v{ldt}")
        a(f"v_mul_f32 v240, {f32hex(LOG2E)}, v{ldt}")
        a("v_exp_f32 v240, v240")
        a("s_nop 0")
        a("v_cvt_pk_bf16_f32 v240, v240, v240")
        a("v_lshlrev_b32 v240, 16, v240")
        a(f"v_mul_f32 v241, v240, v{lre}")
        a(f"v_mul_f32 v242, v240, v{lim}")
        a(f"v_mul_f32 v241, {f32hex(LOG2E)}, v241")
        a("v_exp_f32 v241, v241")
        a(f"v_mul_f32 v242, {f32hex(0.15915494309189535)}, v242")
        a("v_fract_f32 v242, v242")
        a("v_cos_f32 v243, v242")
        a("v_sin_f32 v244, v242")
        a("s_nop 0")
        a(f"v_mul_f32 v{ar_}, v241, v243")
        a(f"v_mul_f32 v{ai_}, v241, v244")
        a(f"v_add_f32 v243, -1.0, v{ar_}")
        a(f"v_mul_f32 v244, v{lre}, v{lre}")
        a(f"v_fmac_f32 v244, v{lim}, v{lim}")
        a("v_rcp_f32 v244, v244")
        a(f"v_mul_f32 v245, v243, v{lre}")
        a(f"v_fmac_f32 v245, v{ai_}, v{lim}")
        a(f"v_mul_f32 v246, v{ai_}, v{lre}")
        a(f"v_fma_f32 v246, -v243, v{lim}, v246")
        a("v_add_f32 v244, v244, v244")
        a(f"v_mul_f32 v{cr_}, v245, v244")
        a(f"v_mul_f32 v{ci_}, v246, v244")
        def sq(dr, di, sr_, si):
            a(f"v_mul_f32 v240, v{si}, v{si}")
            a(f"v_mul_f32 v241, v{sr_}, v{si}")
            a(f"v_fma_f32 v{dr}, v{sr_}, v{sr_}, -v240")
            a(f"v_add_f32 v{di}, v241, v241")
        sq(qr, qi, ar_, ai_)
        for _ in range(3): sq(qr, qi, qr, qi)
        sq(hr, hi, qr, qi)
        for _ in range(2): sq(hr, hi, hr, hi)
    SETS = (32, 80)
    def reads_ssm(setb):
        out = []
        for ks in range(2):
            b = setb + ks * 20
            out.append(f"ds_read_b128 v[{b}:{b+3}], v{15+ks}")
            for g in range(2):
                for part in range(2):
                    w = b + 4 + (g * 2 + part) * 4
                    out.append(f"ds_read_b128 v[{w}:{w+3}], v{(17, 20)[ks]} offset:{g*2048 + part*8192}")
        return out
    def rd_addr_s():
        a("v_add_u32 v15, s76, v12")
        a("v_add_u32 v16, s76, v13")
        a("v_add_u32 v17, s76, v14")
        a("v_add_u32 v20, s76, v19")
        a(f"s_add_u32 s76, s76, {SB}")
        a(f"s_cmp_ge_u32 s76, {NSLOT*SB}")
        a("s_cselect_b32 s76, 0, s76")
    a("s_waitcnt vmcnt(12)")
    a("s_barrier")
    stamp(a, 1)
    a("s_mov_b32 s76, 0")
    rd_addr_s()
    for r in reads_ssm(SETS[0]): a(r)
    a("s_mov_b32 s77, 0")
    a.label("K1S_LOOP")
    for u in range(2):
        cur, nxt = SETS[u], SETS[1 - u]
        wait_group(3, 3)
        a("s_waitcnt lgkmcnt(0)")
        a("s_barrier")
        l = a.uid("K1D")
        a(f"s_cmp_lt_u32 s77, {NST-NSLOT}")
        a(f"s_cbranch_scc0 {l}")
        dma_ssm()
        a.label(l)
        rd_addr_s()
        rd = reads_ssm(nxt)
        mf = []
        for ks in range(2):
            b = cur + ks * 20
            for g in range(2):
                for part in range(2):
                    w = b + 4 + (g * 2 + part) * 4
                    ac = 128 + 32 * g + 16 * part
                    mf.append(f"v_mfma_f32_32x32x16_bf16 v[{ac}:{ac+15}], v[{b}:{b+3}], v[{w}:{w+3}], v[{ac}:{ac+15}]")
        ri = 0
        for m in mf:
            a(m)
            for _ in range(2):
                if ri < len(rd): a(rd[ri]); ri += 1
        while ri < len(rd): a(rd[ri]); ri += 1
        a("s_add_u32 s77, s77, 1")
    a(f"s_cmp_lt_u32 s77, {NST}")
    a("s_cbranch_scc1 K1S_LOOP")
    a("s_waitcnt lgkmcnt(0)")
    stamp(a, 2)
    a("s_nop 7")
    a("s_nop 3")
    RE = lambda g, r: 128 + 32 * g + r
    IM = lambda g, r: 128 + 32 * g + 16 + r
    for r in range(16):
        for g in range(2):
            cr_, ci_ = PR(g, 2), PR(g, 3)
            re, im = RE(g, r), IM(g, r)
            t = 240 + g
            a(f"v_mul_f32 v{t}, v{ci_}, v{re}")
            a(f"v_mul_f32 v{re}, v{cr_}, v{re}")
            a(f"v_fma_f32 v{re}, -v{ci_}, v{im}, v{re}")
            a(f"v_fma_f32 v{im}, v{cr_}, v{im}, v{t}")
    for g in range(2):
        a(f"v_mov_b32 v{224+2*g}, v{RE(g,0)}")
        a(f"v_mov_b32 v{225+2*g}, v{IM(g,0)}")
    def cstep(dr, di, mr, mi, sr_, si, ur, ui, t0, t1):
        a(f"v_fma_f32 v{t0}, v{mr}, v{sr_}, v{ur}")
        a(f"v_fma_f32 v{t1}, v{mr}, v{si}, v{ui}")
        a(f"v_fma_f32 v{t0}, -v{mi}, v{si}, v{t0}")
        a(f"v_fma_f32 v{di}, v{mi}, v{sr_}, v{t1}")
        a(f"v_mov_b32 v{dr}, v{t0}")
    for r in range(1, 16):
        for g in range(2):
            er, ei = 224 + 2 * g, 225 + 2 * g
            cstep(er, ei, PR(g, 0), PR(g, 1), er, ei, RE(g, r), IM(g, r), 240 + 2 * g, 241 + 2 * g)
    a("s_barrier")
    a("v_lshrrev_b32 v4, 5, v2")
    a("s_lshl_b32 s10, s4, 1")
    a("v_add_u32 v21, s10, v4")
    a("v_and_b32 v3, 31, v2")
    a("s_lshl_b32 s10, s5, 6")
    a("v_add_u32 v3, s10, v3")
    a("v_lshlrev_b32 v22, 3, v3")
    a("v_lshl_add_u32 v23, v21, 10, v22")
    for g in range(2):
        a(f"ds_write_b64 v23, v[{224+2*g}:{225+2*g}] offset:{256*g}")
    a("s_waitcnt lgkmcnt(0)")
    a("s_barrier")
    for g in range(2):
        for j in range(8):
            a(f"ds_read_b64 v[{32+16*g+2*j}:{33+16*g+2*j}], v22 offset:{1024*j + 256*g}")
    for g in range(2):
        a(f"v_mov_b32 v{228+2*g}, 0")
        a(f"v_mov_b32 v{229+2*g}, 0")
        a(f"v_mov_b32 v{232+2*g}, 1.0")
        a(f"v_mov_b32 v{233+2*g}, 0")
    a("s_waitcnt lgkmcnt(0)")
    for j in range(7):
        a(f"v_cmp_lt_u32 vcc, {j}, v21")
        for g in range(2):
            qr, qi = PR(g, 4), PR(g, 5)
            Pr, Pi, wr, wi = 228 + 2 * g, 229 + 2 * g, 232 + 2 * g, 233 + 2 * g
            er, ei = 32 + 16 * g + 2 * j, 33 + 16 * g + 2 * j
            a(f"v_fma_f32 v240, v{qr}, v{Pr}, v{er}")
            a(f"v_fma_f32 v241, v{qr}, v{Pi}, v{ei}")
            a(f"v_fma_f32 v240, -v{qi}, v{Pi}, v240")
            a(f"v_fma_f32 v241, v{qi}, v{Pr}, v241")
            a(f"v_mul_f32 v242, v{qr}, v{wr}")
            a(f"v_mul_f32 v243, v{qr}, v{wi}")
            a(f"v_fma_f32 v242, -v{qi}, v{wi}, v242")
            a(f"v_fma_f32 v243, v{qi}, v{wr}, v243")
            a(f"v_cndmask_b32 v{Pr}, v{Pr}, v240, vcc")
            a(f"v_cndmask_b32 v{Pi}, v{Pi}, v241, vcc")
            a(f"v_cndmask_b32 v{wr}, v{wr}, v242, vcc")
            a(f"v_cndmask_b32 v{wi}, v{wi}, v243, vcc")
    mk_srd(a, 80, PWS, E_SZ, E_OFF)
    a("s_cmp_eq_u32 s4, 3")
    a("s_cbranch_scc0 K1S_NOPUB")
    for g in range(2):
        qr, qi = PR(g, 4), PR(g, 5)
        Pr, Pi = 228 + 2 * g, 229 + 2 * g
        er, ei = 224 + 2 * g, 225 + 2 * g
        a(f"v_fma_f32 v{240+2*g}, v{qr}, v{Pr}, v{er}")
        a(f"v_fma_f32 v{241+2*g}, v{qr}, v{Pi}, v{ei}")
        a(f"v_fma_f32 v{240+2*g}, -v{qi}, v{Pi}, v{240+2*g}")
        a(f"v_fma_f32 v{241+2*g}, v{qi}, v{Pr}, v{241+2*g}")
    a("v_lshlrev_b32 v24, 2, v18")
    a(f"s_mul_i32 s10, s6, {640*8}")
    a("s_mov_b64 s[12:13], exec")
    a("s_mov_b32 exec_lo, 0")
    for g in range(2):
        a(f"buffer_store_dwordx2 v[{240+2*g}:{241+2*g}], v24, s[80:83], s10 offen offset:{256*g} sc1")
    a("s_mov_b64 exec, s[12:13]")
    a("s_waitcnt vmcnt(0)")
    a.label("K1S_NOPUB")
    a("s_barrier")
    stamp(a, 4)
    a("s_cmp_eq_u32 s3, 0")
    a("s_cbranch_scc0 K1S_NOPOLL")
    a("s_lshl_b32 s10, s7, 2")
    a("v_mov_b32 v25, s10")
    a("s_lshl_b32 s11, 1, s6")
    a("v_mov_b32 v26, s11")
    a("s_mov_b64 s[12:13], exec")
    a("s_mov_b64 exec, 1")
    a(f"global_atomic_add v25, v26, s[{PDBG}:{PDBG+1}] sc1")
    a("s_sub_u32 s11, s11, 1")
    a("s_mov_b32 s14, 100000")
    a.label("K1S_POLL")
    a("s_sub_u32 s14, s14, 1")
    a("s_cmp_eq_u32 s14, 0")
    a("s_cbranch_scc1 K1S_POLLED")
    a(f"global_load_dword v27, v25, s[{PDBG}:{PDBG+1}] sc1")
    a("s_waitcnt vmcnt(0)")
    a("v_readfirstlane_b32 s10, v27")
    a("s_and_b32 s10, s10, s11")
    a("s_cmp_eq_u32 s10, s11")
    a("s_cbranch_scc1 K1S_POLLED")
    a("s_sleep 2")
    a("s_branch K1S_POLL")
    a.label("K1S_POLLED")
    a("s_mov_b64 exec, s[12:13]")
    a.label("K1S_NOPOLL")
    a("s_barrier")
    stamp(a, 5)
    a("v_lshlrev_b32 v24, 2, v18")
    for j in range(15):
        l = a.uid("K1SL")
        a(f"s_cmp_le_u32 s6, {j}")
        a(f"s_cbranch_scc1 K1S_LOADED")
        a(f"s_mov_b32 s10, {j*640*8}")
        for g in range(2):
            a(f"buffer_load_dwordx2 v[{64+32*g+2*j}:{65+32*g+2*j}], v24, s[80:83], s10 offen offset:{256*g} sc1")
    a.label("K1S_LOADED")
    for g in range(2):
        a(f"v_mov_b32 v{236+2*g}, 0")
        a(f"v_mov_b32 v{237+2*g}, 0")
    a("s_waitcnt vmcnt(0)")
    for j in range(15):
        a(f"s_cmp_le_u32 s6, {j}")
        a(f"s_cbranch_scc1 K1S_HDONE")
        for g in range(2):
            Hr, Hi = 236 + 2 * g, 237 + 2 * g
            cstep(Hr, Hi, PR(g, 6), PR(g, 7), Hr, Hi, 64 + 32 * g + 2 * j, 65 + 32 * g + 2 * j, 240 + 2 * g, 241 + 2 * g)
    a.label("K1S_HDONE")
    for g in range(2):
        Pr, Pi, wr, wi, Hr, Hi = 228 + 2 * g, 229 + 2 * g, 232 + 2 * g, 233 + 2 * g, 236 + 2 * g, 237 + 2 * g
        cstep(Pr, Pi, wr, wi, Hr, Hi, Pr, Pi, 240 + 2 * g, 241 + 2 * g)
    for r in range(16):
        for g in range(2):
            pr_, pi_ = (228 + 2 * g, 229 + 2 * g) if r == 0 else (RE(g, r - 1), IM(g, r - 1))
            mr, mi = PR(g, 0), PR(g, 1)
            re, im = RE(g, r), IM(g, r)
            a(f"v_fma_f32 v{re}, v{mr}, v{pr_}, v{re}")
            a(f"v_fma_f32 v{im}, v{mr}, v{pi_}, v{im}")
            a(f"v_fma_f32 v{re}, -v{mi}, v{pi_}, v{re}")
            a(f"v_fma_f32 v{im}, v{mi}, v{pr_}, v{im}")
    a("s_mul_i32 s10, s3, 10240")
    a("s_add_u32 s10, s10, 8192")
    a("v_and_b32 v3, 31, v2")
    a("v_mul_u32_u24 v3, 80, v3")
    a("v_lshrrev_b32 v4, 5, v2")
    a("v_lshl_add_u32 v3, v4, 5, v3")
    a("v_add_u32 v28, s10, v3")
    for g in range(2):
        for part in range(2):
            src = 128 + 32 * g + 16 * part
            neg = "-" if part else ""
            for i in range(8):
                a(f"v_cvt_pk_bf16_f32 v{32+i}, {neg}v{src+2*i}, {neg}v{src+2*i+1}")
            off = (g * 2 + part) * 2560
            a(f"ds_write_b128 v28, v[32:35] offset:{off}")
            a(f"ds_write_b128 v28, v[36:39] offset:{off+16}")
            a("s_nop 1")
    a("v_lshrrev_b32 v3, 4, v2")
    a("v_lshlrev_b32 v3, 3, v3")
    a("v_bfe_u32 v4, v2, 2, 2")
    a("v_add_u32 v3, v3, v4")
    a("v_mul_u32_u24 v3, 80, v3")
    a("v_and_b32 v4, 3, v2")
    a("v_lshl_add_u32 v3, v4, 3, v3")
    a("v_add_u32 v29, s10, v3")
    a("v_lshlrev_b32 v30, 4, v2")
    a("s_lshl_b32 s10, s6, 1")
    a("s_lshr_b32 s11, s4, 1")
    a("s_add_u32 s10, s10, s11")
    a("s_mul_i32 s10, s10, 94")
    a("s_lshr_b32 s11, s78, 4")
    a("s_add_u32 s10, s10, s11")
    a("s_lshl_b32 s10, s10, 12")
    a("s_and_b32 s11, s4, 1")
    a("s_lshl_b32 s11, s11, 11")
    a("s_add_u32 s10, s10, s11")
    a("s_waitcnt lgkmcnt(0)")
    for g in range(2):
        for part in range(2):
            off = (g * 2 + part) * 2560
            for i in range(2):
                b = 64 + ((g * 2 + part) * 2 + i) * 4
                a(f"ds_read_b64_tr_b16 v[{b}:{b+1}], v29 offset:{off + 32*i}")
                a(f"ds_read_b64_tr_b16 v[{b+2}:{b+3}], v29 offset:{off + 32*i + 320}")
    a("s_waitcnt lgkmcnt(0)")
    for g in range(2):
        for part in range(2):
            for i in range(2):
                b = 64 + ((g * 2 + part) * 2 + i) * 4
                a(f"s_add_u32 s11, s10, {(2*g + part)*4096 + i*1024}")
                a(f"buffer_store_dwordx4 v[{b}:{b+3}], v30, s[64:67], s11 offen")
    a("s_waitcnt vmcnt(0)")
    stamp(a, 3); stamp_flush(a, 1)
    a.label("K1_END")
    a("s_endpgm")

def build(path):
    a = Asm()
    a.raw(HDR.rstrip("\n"))
    a.raw("; @launch kernel=k0_kernel grid=(256,1,1) block=(512,1,1) lds=16384")
    a.raw(f"; @launch kernel=k1_kernel grid=(256,1,1) block=(512,1,1) lds={K1_LDS}")
    a.raw(f"; @launch kernel=k2_kernel grid=(256,1,1) block=(256,1,1) lds={4*K2_TILE}")
    a.raw('.amdgcn_target "amdgcn-amd-amdhsa--gfx950"')
    a.raw(".text")
    gen_k0(a); gen_k1(a); gen_k2(a)
    a.raw('.section .rodata,"a"')
    a.raw(descriptor("k0_kernel", 128, 96, 128))
    a.raw(descriptor("k1_kernel", 256, 96, 256))
    a.raw(descriptor("k2_kernel", 256 + 80, 96, 256))
    t = a.text()
    open(path, "w").write(t)
    lint(t)

if __name__ == "__main__":
    import sys
    build(sys.argv[1] if len(sys.argv) > 1 else "v1.s")
```

```python
import sys, os, struct
from asmlib import *
import gen1
from gen1 import (HDR, SRD3, P, PX, PLRE, PLIM, PBRE, PBIM, PCRE, PCIM, PLDT, PDSK, PBX, PWG, PWU, PWD, POUT, PDBG, PWS,
                  load_args, mk_srd, sdiv, vdiv, kernel_begin, descriptor, stamp, stamp_flush, STAMP)

AF_OFF = 4 << 20
BF_OFF = 20 << 20
E_OFF = 28 << 20
ST_OFF = 29 << 20
X_SZ = 2048 * 1280
AF_SZ = 32 * 94 * 4096
BF_SZ = 8 * 94 * 5120
E_SZ = 16 * 640 * 16
ST_SZ = 2048 * 8
LOG2E = 1.4426950408889634
def f32hex(x): return "0x%08x" % struct.unpack("<I", struct.pack("<f", x))[0]

XSLOT = 16384
FX0 = 0
FW0 = 3 * XSLOT
GU = 10240 + 32
WSLOT = 20544
SSLOT = 49152
SPARE = FW0 + 5 * WSLOT
K1_LDS = 163840
NONCE_LDS = SPARE + 10240
NST = 20

def gen_k1(a):
    kernel_begin(a, "k1_kernel")
    a("s_cmp_ge_u32 s2, 256")
    a("s_cbranch_scc1 K1_END")
    if os.environ.get("PSTAMP"): a("s_memrealtime s[90:91]")
    load_args(a)
    a("v_lshrrev_b32 v1, 6, v0")
    a("v_and_b32 v2, 63, v0")
    a("s_nop 0")
    a("v_readfirstlane_b32 s3, v1")
    a("s_and_b32 s8, s2, 7")
    a("s_lshr_b32 s9, s2, 3")
    a("s_and_b32 s6, s8, 1")
    a("s_lshl_b32 s6, s6, 3")
    a("s_and_b32 s10, s9, 7")
    a("s_add_u32 s6, s6, s10")
    a("s_lshr_b32 s7, s8, 1")
    a("s_lshl_b32 s7, s7, 2")
    a("s_lshr_b32 s10, s9, 3")
    a("s_add_u32 s7, s7, s10")
    a("s_and_b32 s4, s3, 3")
    a("s_lshr_b32 s5, s3, 2")
    a("s_lshl_b32 s10, s6, 7")
    a("s_lshl_b32 s11, s3, 4")
    a("s_add_u32 s10, s10, s11")
    a("v_lshrrev_b32 v3, 3, v2")
    a("v_add_u32 v4, s10, v3")
    a("v_mul_u32_u24 v8, 1280, v4")
    a("v_and_b32 v5, 7, v2")
    a("v_lshrrev_b32 v6, 4, v2")
    a("v_xor_b32 v26, v5, v6")
    a("v_xor_b32 v27, 4, v26")
    a(f"v_add_u32 v9, {8*1280}, v8")
    a("v_lshl_add_u32 v8, v26, 4, v8")
    a("v_lshl_add_u32 v9, v27, 4, v9")
    a("v_mov_b32 v18, 0x3f803f80")
    a("s_waitcnt lgkmcnt(0)")
    if STAMP: a("v_mov_b32 v255, 0")
    stamp(a, 0)
    if os.environ.get("PSTAMP"): a("v_writelane_b32 v255, s90, 19")
    mk_srd(a, 48, PX, X_SZ)
    mk_srd(a, 64, PWS, AF_SZ, AF_OFF)
    mk_srd(a, 96, PWS, BF_SZ, BF_OFF)
    a("s_cmp_ge_u32 s2, 200")
    a("s_cbranch_scc1 K1_NOC")
    a("s_lshl_b32 s10, s2, 3")
    a("s_add_u32 s10, s10, s3")
    sdiv(a, 11, 10, 200)
    a("s_mul_i32 s12, s11, 200")
    a("s_sub_u32 s12, s10, s12")
    sdiv(a, 13, 12, 5)
    a("s_mul_i32 s14, s13, 5")
    a("s_sub_u32 s14, s12, s14")
    a("s_bitcmp1_b32 s13, 0")
    a(f"s_cselect_b32 s52, s{PCIM}, s{PCRE}")
    a(f"s_cselect_b32 s53, s{PCIM+1}, s{PCRE+1}")
    a(f"s_mov_b32 s54, {640*1280}")
    a(f"s_mov_b32 s55, {SRD3:#x}")
    a("s_mul_i32 s15, s11, 80")
    a("s_lshl_b32 s68, s14, 4")
    a("s_add_u32 s15, s15, s68")
    a("v_and_b32 v3, 15, v2")
    a("v_add_u32 v3, s15, v3")
    a("v_mul_u32_u24 v3, 1280, v3")
    a("v_lshl_add_u32 v3, v6, 4, v3")
    a("s_lshr_b32 s15, s13, 1")
    a("s_lshl_b32 s15, s15, 6")
    a("buffer_load_dwordx4 v[248:251], v3, s[52:55], s15 offen")
    a("s_mul_i32 s100, s11, 94")
    a("s_add_u32 s100, s100, s13")
    a("s_mul_i32 s100, s100, 5")
    a("s_add_u32 s100, s100, s14")
    a("s_lshl_b32 s100, s100, 10")
    a.label("K1_NOC")
    a("s_cmp_ge_u32 s2, 216")
    a("s_cbranch_scc1 K1_NOW")
    a("s_cmp_ge_u32 s3, 2")
    a("s_cbranch_scc1 K1_NOW")
    a("s_lshl_b32 s10, s2, 1")
    a("s_add_u32 s10, s10, s3")
    sdiv(a, 11, 10, 54)
    a("s_mul_i32 s12, s11, 54")
    a("s_sub_u32 s12, s10, s12")
    mk_srd(a, 52, PWD, 1728 * 1280)
    a(f"s_mul_i32 s13, s12, {32*1280}")
    a("s_mul_i32 s14, s11, 160")
    a("s_add_u32 s13, s13, s14")
    a("s_mul_i32 s14, s3, 5120")
    a(f"s_add_u32 s14, s14, {SPARE}")
    for i in range(5):
        a(f"v_add_u32 v3, {64*i}, v2")
        vdiv(a, 4, 3, 10, 15)
        a("v_mul_u32_u24 v5, 10, v4")
        a("v_sub_u32 v5, v3, v5")
        a("v_mul_u32_u24 v4, 1280, v4")
        a("v_lshl_add_u32 v4, v5, 4, v4")
        a(f"s_add_u32 m0, s14, {1024*i}")
        a("s_nop 0")
        a("buffer_load_dwordx4 v4, s[52:55], s13 offen lds")
    a("s_mul_i32 s101, s11, 94")
    a("s_add_u32 s101, s101, s12")
    a("s_add_u32 s101, s101, 40")
    a("s_mul_i32 s101, s101, 5120")
    a.label("K1_NOW")
    if os.environ.get("PSTAMP"): stamp(a, 20)
    a("s_cmp_ge_u32 s7, 11")
    a("s_cbranch_scc1 K1_SSM")

    def side_jobs_finish(tag):
        l1, l2 = f"K1_SJ1_{tag}", f"K1_SJ2_{tag}"
        a("v_lshlrev_b32 v5, 4, v2")
        a("s_cmp_ge_u32 s2, 200")
        a(f"s_cbranch_scc1 {l1}")
        a("buffer_store_dwordx4 v[248:251], v5, s[96:99], s100 offen")
        a.label(l1)
        a("s_cmp_ge_u32 s2, 216")
        a(f"s_cbranch_scc1 {l2}")
        a("s_cmp_ge_u32 s3, 2")
        a(f"s_cbranch_scc1 {l2}")
        a("v_lshrrev_b32 v3, 5, v2")
        a("v_lshlrev_b32 v3, 4, v3")
        a("v_bfe_u32 v4, v2, 4, 1")
        a("v_lshl_add_u32 v3, v4, 2, v3")
        a("v_bfe_u32 v4, v2, 2, 2")
        a("v_add_u32 v3, v3, v4")
        a("v_mul_u32_u24 v3, 160, v3")
        a("v_and_b32 v4, 3, v2")
        a("v_lshl_add_u32 v3, v4, 3, v3")
        a("s_mul_i32 s14, s3, 5120")
        a(f"s_add_u32 s14, s14, {SPARE}")
        a("v_add_u32 v3, s14, v3")
        for j in range(5):
            a(f"ds_read_b64_tr_b16 v[{32+4*j}:{33+4*j}], v3 offset:{32*j}")
            a(f"ds_read_b64_tr_b16 v[{34+4*j}:{35+4*j}], v3 offset:{32*j+8*160}")
        a("s_waitcnt lgkmcnt(0)")
        for j in range(5):
            a(f"s_add_u32 s12, s101, {1024*j}")
            a(f"buffer_store_dwordx4 v[{32+4*j}:{35+4*j}], v5, s[96:99], s12 offen")
        a.label(l2)

    def stats_finish(s1, s2, m, rinv, t0, t1):
        a(f"v_mov_b32 v{t0}, v{s1}")
        a(f"v_mov_b32 v{t1}, v{s2}")
        a("s_nop 1")
        a(f"v_permlane32_swap_b32 v{s1}, v{t0}")
        a(f"v_permlane32_swap_b32 v{s2}, v{t1}")
        a(f"v_add_f32 v{s1}, v{s1}, v{t0}")
        a(f"v_add_f32 v{s2}, v{s2}, v{t1}")
        a(f"v_mul_f32 v{s1}, {f32hex(1.0/640)}, v{s1}")
        a(f"v_mul_f32 v{s2}, {f32hex(1.0/640)}, v{s2}")
        a(f"v_fma_f32 v{s2}, -v{s1}, v{s1}, v{s2}")
        a(f"v_max_f32 v{s2}, 0, v{s2}")
        a(f"v_cvt_pk_bf16_f32 v{t0}, v{s1}, v{s2}")
        a(f"v_lshlrev_b32 v{m}, 16, v{t0}")
        a(f"v_and_b32 v{t0}, 0xffff0000, v{t0}")
        a(f"v_add_f32 v{t0}, 0x3727c5ac, v{t0}")
        a(f"v_cvt_pk_bf16_f32 v{t0}, v{t0}, v{t0}")
        a(f"v_and_b32 v{t0}, 0xffff0000, v{t0}")
        a(f"v_sqrt_f32 v{t0}, v{t0}")
        a("s_nop 0")
        a(f"v_cvt_pk_bf16_f32 v{t0}, v{t0}, v{t0}")
        a(f"v_and_b32 v{t0}, 0xffff0000, v{t0}")
        a(f"v_rcp_f32 v{rinv}, v{t0}")
        a("s_nop 0")

    mk_srd(a, 52, PWG, 640 * 3456)
    a("s_cmp_lt_u32 s3, 2")
    a(f"s_cselect_b32 s56, s{PWG}, s{PWU}")
    a(f"s_cselect_b32 s57, s{PWG+1}, s{PWU+1}")
    a(f"s_mov_b32 s58, {640*3456}")
    a(f"s_mov_b32 s59, {SRD3:#x}")
    mk_srd(a, 60, PWU, 640 * 3456)
    a("s_add_u32 s10, s3, 8")
    a("s_sub_u32 s11, s3, 2")
    a("s_cmp_lt_u32 s3, 2")
    a("s_cselect_b32 s10, s10, s11")
    a(f"s_mov_b32 s12, {GU}")
    a("s_cselect_b32 s11, 0, s12")
    a("s_lshl_b32 s12, s10, 10")
    a("s_add_u32 s71, s12, s11")
    a("s_lshl_b32 s70, s3, 10")
    a(f"s_add_u32 s72, s70, {GU + 6*1024}")
    a("s_lshl_b32 s69, s3, 11")
    def woff(dst, sidx):
        a(f"s_lshl_b32 s12, {sidx}, 6")
        a("v_add_u32 v3, s12, v2")
        vdiv(a, 4, 3, 20, 13)
        a("v_mul_u32_u24 v5, 20, v4")
        a("v_sub_u32 v5, v3, v5")
        a("v_mul_u32_u24 v4, 3456, v4")
        a(f"v_lshl_add_u32 v{dst}, v5, 4, v4")
    woff(10, "s3")
    woff(11, "s10")
    a("s_add_u32 s11, s3, 6")
    woff(12, "s11")
    a("s_mul_i32 s73, s7, 320")
    a("s_mov_b32 s74, 0")
    a(f"s_mov_b32 s75, {FW0}")
    a(f"s_mov_b32 s79, {FX0}")
    def dma_w():
        a("s_add_u32 m0, s75, s70")
        a("s_nop 0")
        a("buffer_load_dwordx4 v10, s[52:55], s73 offen lds")
        a("s_add_u32 m0, s75, s71")
        a("s_nop 0")
        a("buffer_load_dwordx4 v11, s[56:59], s73 offen lds")
        l = a.uid("K1F3")
        a("s_cmp_lt_u32 s3, 4")
        a(f"s_cbranch_scc0 {l}")
        a("s_add_u32 m0, s75, s72")
        a("s_nop 0")
        a("buffer_load_dwordx4 v12, s[60:63], s73 offen lds")
        a.label(l)
        a(f"s_add_u32 s73, s73, {32*3456}")
        a(f"s_add_u32 s75, s75, {WSLOT}")
        a(f"s_cmp_ge_u32 s75, {FW0 + 5*WSLOT}")
        a(f"s_cselect_b32 s75, {FW0}, s75")
    def dma_x(slotreg, step, base, end):
        a(f"s_add_u32 m0, s{slotreg}, s69")
        a("s_nop 0")
        a("buffer_load_dwordx4 v8, s[48:51], s74 offen lds")
        a("s_add_u32 m0, m0, 1024")
        a("s_nop 0")
        a("buffer_load_dwordx4 v9, s[48:51], s74 offen lds")
        a("s_add_u32 s74, s74, 128")
        a(f"s_add_u32 s{slotreg}, s{slotreg}, {step}")
        a(f"s_cmp_ge_u32 s{slotreg}, {end}")
        a(f"s_cselect_b32 s{slotreg}, {base}, s{slotreg}")
    fx = lambda: dma_x(79, XSLOT, FX0, FX0 + 3 * XSLOT)
    if os.environ.get("PSTAMP"): stamp(a, 21)
    dma_w(); fx(); dma_w(); dma_w(); fx(); dma_w(); dma_w(); fx()
    if os.environ.get("PSTAMP"): stamp(a, 22)
    a("v_and_b32 v3, 31, v2")
    a("s_lshl_b32 s10, s4, 5")
    a("v_add_u32 v4, s10, v3")
    a("v_lshlrev_b32 v13, 7, v4")
    a("v_bfe_u32 v5, v2, 1, 3")
    a("v_lshrrev_b32 v4, 5, v2")
    a("v_xor_b32 v4, v4, v5")
    a("v_lshl_add_u32 v13, v4, 4, v13")
    a("v_lshrrev_b32 v3, 5, v2")
    a("v_lshlrev_b32 v3, 3, v3")
    a("v_bfe_u32 v4, v2, 2, 2")
    a("v_add_u32 v3, v3, v4")
    a("v_mul_u32_u24 v14, 320, v3")
    a("v_and_b32 v4, 3, v2")
    a("v_lshl_add_u32 v14, v4, 3, v14")
    a("v_bfe_u32 v4, v2, 4, 1")
    a(f"v_mul_u32_u24 v4, {GU}, v4")
    a("v_add_u32 v14, v14, v4")
    a("s_mul_i32 s10, s5, 160")
    a("v_add_u32 v14, s10, v14")
    for i in range(80):
        a(f"v_mov_b32 v{128+i}, 0")
    for i in range(19, 26):
        a(f"v_mov_b32 v{i}, 0")
    SETS = (32, 80)
    def reads_ffn(setb):
        out = [f"ds_read_b128 v[{setb}:{setb+3}], v15", f"ds_read_b128 v[{setb+4}:{setb+7}], v16"]
        for ks in range(2):
            for j in range(5):
                b = setb + 8 + (ks * 5 + j) * 4
                off = ks * 5120 + j * 32
                out.append(f"ds_read_b64_tr_b16 v[{b}:{b+1}], v17 offset:{off}")
                out.append(f"ds_read_b64_tr_b16 v[{b+2}:{b+3}], v17 offset:{off+1280}")
        return out
    def rd_addr(uprime):
        a("v_add_u32 v15, s78, v13")
        if uprime: a("v_xor_b32 v15, 64, v15")
        a("v_xor_b32 v16, 32, v15")
        a("v_add_u32 v17, s76, v14")
        a(f"s_add_u32 s76, s76, {WSLOT}")
        a(f"s_cmp_ge_u32 s76, {FW0 + 5*WSLOT}")
        a(f"s_cselect_b32 s76, {FW0}, s76")
        if uprime:
            a(f"s_add_u32 s78, s78, {XSLOT}")
            a(f"s_cmp_ge_u32 s78, {FX0 + 3*XSLOT}")
            a(f"s_cselect_b32 s78, {FX0}, s78")
    def wait2(n_hi, n_lo, tail_from):
        l1 = a.uid("K1W"); l2 = a.uid("K1W")
        a(f"s_cmp_lt_u32 s77, {tail_from}")
        a(f"s_cbranch_scc1 {l1}")
        a("s_waitcnt vmcnt(0)")
        a.label(l1)
        if n_hi != n_lo:
            a("s_cmp_lt_u32 s3, 4")
            a(f"s_cbranch_scc1 {l2}")
            a(f"s_waitcnt vmcnt({n_lo})")
            a.label(l2)
        a(f"s_waitcnt vmcnt({n_hi})")
    if os.environ.get("PSTAMP"): stamp(a, 23)
    a("s_cmp_lt_u32 s3, 4")
    a("s_cbranch_scc1 K1F_P1")
    a(f"s_waitcnt vmcnt({4*2+4})")
    a.label("K1F_P1")
    a(f"s_waitcnt vmcnt({4*3+4})")
    if os.environ.get("PSTAMP"): stamp(a, 24)
    a("s_barrier")
    stamp(a, 1)
    a(f"s_mov_b32 s76, {FW0}")
    a(f"s_mov_b32 s78, {FX0}")
    rd_addr(0)
    for r in reads_ffn(SETS[0]): a(r)
    a("s_mov_b32 s77, 0")
    if STAMP:
        a("s_memtime s[92:93]"); a("s_waitcnt lgkmcnt(0)"); a("v_writelane_b32 v255, s92, 6")
    a.label("K1F_LOOP")
    for u in range(2):
        cur, nxt = SETS[u], SETS[1 - u]
        extra = 4 if u == 0 else 2
        wait2(9 + extra, 6 + extra, 16)
        a("s_waitcnt lgkmcnt(0)")
        a("s_barrier")
        l = a.uid("K1D")
        a(f"s_cmp_lt_u32 s77, 15")
        a(f"s_cbranch_scc0 {l}")
        if not os.environ.get("NODMA"):
            dma_w()
            if u == 1: fx()
        a.label(l)
        rd_addr(1 - u)
        rd = reads_ffn(nxt)
        if os.environ.get("NORD"): rd = []
        mf = []
        for ks in range(2):
            for j in range(5):
                w = cur + 8 + (ks * 5 + j) * 4
                x = cur + 4 * ks
                ac = 128 + 16 * j
                mf.append(f"v_mfma_f32_32x32x16_bf16 v[{ac}:{ac+15}], v[{w}:{w+3}], v[{x}:{x+3}], v[{ac}:{ac+15}]")
        if os.environ.get("NOMF"): mf = ["s_nop 0"] * 10
        st = []
        for ks in range(2):
            for i in range(4):
                x = cur + 4 * ks + i
                st.append(f"v_dot2c_f32_bf16 v19, v{x}, v18")
                st.append(f"v_dot2c_f32_bf16 v20, v{x}, v{x}")
        if os.environ.get("NODOT"): st = []
        ri = si = 0
        for mi, m in enumerate(mf):
            a(m)
            for _ in range(3):
                if ri < len(rd): a(rd[ri]); ri += 1
            for _ in range(2):
                if si < len(st): a(st[si]); si += 1
            if mi in (4, 9) and not os.environ.get('NOCS'):
                ks = 0 if mi == 4 else 1
                l = a.uid("K1C")
                a(f"s_cmp_eq_u32 s4, {2*u+ks}")
                a(f"s_cbranch_scc0 {l}")
                for j in range(5):
                    w = cur + 8 + (ks * 5 + j) * 4
                    for i in range(4):
                        a(f"v_dot2c_f32_bf16 v{21+j}, v{w+i}, v18")
                a.label(l)
        while ri < len(rd): a(rd[ri]); ri += 1
        while si < len(st): a(st[si]); si += 1
        a("s_add_u32 s77, s77, 1")
    if STAMP and os.environ.get("ITSTAMP"):
        a("s_memrealtime s[92:93]")
        a("s_lshr_b32 s94, s77, 1")
        a("s_add_u32 m0, s94, 7")
        a("s_waitcnt lgkmcnt(0)")
        a("s_nop 3")
        a("v_writelane_b32 v255, s92, m0")
    a(f"s_cmp_lt_u32 s77, {NST}")
    a("s_cbranch_scc1 K1F_LOOP")
    a("s_waitcnt lgkmcnt(0)")
    if STAMP:
        a("s_memtime s[92:93]"); a("s_waitcnt lgkmcnt(0)"); a("v_writelane_b32 v255, s92, 7")
    stamp(a, 2)
    a("s_barrier")
    for j in range(5):
        a(f"v_mov_b32 v{26+j}, v{21+j}")
    a("s_nop 1")
    for j in range(5):
        a(f"v_permlane32_swap_b32 v{21+j}, v{26+j}")
    for j in range(5):
        a(f"v_add_f32 v{21+j}, v{21+j}, v{26+j}")
    a("v_and_b32 v3, 31, v2")
    a("v_lshlrev_b32 v3, 4, v3")
    a("s_mul_i32 s10, s5, 2560")
    a("s_lshl_b32 s11, s4, 2")
    a("s_add_u32 s10, s10, s11")
    a("v_add_u32 v3, s10, v3")
    for j in range(5):
        a(f"ds_write_b32 v3, v{21+j} offset:{512*j}")
    stats_finish(19, 20, 19, 20, 26, 27)
    a("s_waitcnt lgkmcnt(0)")
    a("s_barrier")
    a("v_cmp_gt_u32 vcc, 320, v0")
    a("v_lshlrev_b32 v3, 4, v0")
    a("v_lshlrev_b32 v4, 2, v0")
    a("s_and_saveexec_b64 s[10:11], vcc")
    a("ds_read_b128 v[28:31], v3")
    a("s_waitcnt lgkmcnt(0)")
    a("v_add_f32 v28, v28, v29")
    a("v_add_f32 v30, v30, v31")
    a("v_add_f32 v28, v28, v30")
    a("ds_write_b32 v4, v28 offset:8192")
    a("s_mov_b64 exec, s[10:11]")
    a("s_cmp_eq_u32 s7, 0")
    a("s_cbranch_scc0 K1F_NOST")
    a("s_cmp_eq_u32 s5, 0")
    a("s_cbranch_scc0 K1F_NOST")
    mk_srd(a, 80, PWS, ST_SZ, ST_OFF)
    a("s_lshl_b32 s10, s6, 7")
    a("s_lshl_b32 s11, s4, 5")
    a("s_add_u32 s10, s10, s11")
    a("v_and_b32 v3, 31, v2")
    a("v_add_u32 v3, s10, v3")
    a("v_lshlrev_b32 v3, 3, v3")
    a("v_mov_b32 v28, v19")
    a("v_mov_b32 v29, v20")
    a("buffer_store_dwordx2 v[28:29], v3, s[80:83], 0 offen")
    a.label("K1F_NOST")
    a("s_waitcnt lgkmcnt(0)")
    a("s_barrier")
    a("s_and_b32 s10, s4, 1")
    a("s_lshl_b32 s10, s10, 11")
    a("v_bfe_u32 v3, v2, 4, 1")
    a("v_lshlrev_b32 v3, 10, v3")
    a("v_and_b32 v4, 15, v2")
    a("v_lshl_add_u32 v3, v4, 4, v3")
    a("v_lshrrev_b32 v4, 5, v2")
    a("v_lshl_add_u32 v3, v4, 8, v3")
    a("v_add_u32 v3, s10, v3")
    a("s_lshl_b32 s10, s6, 1")
    a("s_lshr_b32 s11, s4, 1")
    a("s_add_u32 s10, s10, s11")
    a("s_mul_i32 s10, s10, 94")
    a("s_add_u32 s10, s10, 40")
    a("s_mul_i32 s11, s7, 10")
    a("s_mul_i32 s12, s5, 5")
    a("s_add_u32 s11, s11, s12")
    C1 = -2.0 * LOG2E * 0.7978845608028654
    C2 = C1 * 0.044715
    a(f"s_mov_b32 s15, {f32hex(C2)}")
    a(f"v_mov_b32 v40, {f32hex(C1)}")
    a("v_lshrrev_b32 v4, 5, v2")
    a("v_lshlrev_b32 v4, 4, v4")
    a("s_mul_i32 s12, s5, 640")
    a("v_add_u32 v4, s12, v4")
    for j in range(5):
        ac = 128 + 16 * j
        l = a.uid("K1FS")
        a(f"s_add_u32 s12, s11, {j}")
        a("s_cmp_ge_u32 s12, 108")
        a(f"s_cbranch_scc1 {l}")
        for q in range(4):
            a(f"ds_read_b128 v[{208+4*q}:{211+4*q}], v4 offset:{8192 + 128*j + 32*q}")
        a("s_waitcnt lgkmcnt(0)")
        for r in range(16):
            a(f"v_fma_f32 v{ac+r}, -v19, v{208+r}, v{ac+r}")
        for r in range(8):
            g, u_ = ac + r, ac + 8 + r
            t = 32 + r
            a(f"v_mul_f32 v{g}, v{g}, v20")
            a(f"v_mul_f32 v{t}, v{g}, v{g}")
            a(f"v_fma_f32 v{t}, v{t}, s15, v40")
            a(f"v_mul_f32 v{t}, v{t}, v{g}")
            a(f"v_exp_f32 v{t}, v{t}")
            a(f"v_mul_f32 v{u_}, v{g}, v{u_}")
            a(f"v_add_f32 v{t}, 1.0, v{t}")
            a(f"v_rcp_f32 v{t}, v{t}")
            a(f"v_mul_f32 v{u_}, v{u_}, v20")
            a(f"v_mul_f32 v{u_}, v{u_}, v{t}")
        for r in range(4):
            a(f"v_cvt_pk_bf16_f32 v{44+r}, v{ac+8+2*r}, v{ac+9+2*r}")
        a("s_lshr_b32 s13, s12, 1")
        a("s_add_u32 s13, s13, s10")
        a("s_lshl_b32 s13, s13, 12")
        a("s_and_b32 s12, s12, 1")
        a("s_lshl_b32 s12, s12, 9")
        a("s_add_u32 s13, s13, s12")
        a("buffer_store_dwordx4 v[44:47], v3, s[64:67], s13 offen")
        a("s_nop 1")
        a.label(l)
    side_jobs_finish("F")
    if STAMP: a("s_waitcnt vmcnt(0)")
    stamp(a, 3); stamp_flush(a, 0)
    a("s_endpgm")

    a.label("K1_SSM")
    a("s_sub_u32 s7, s7, 11")
    a("s_cmp_eq_u32 s3, 0")
    a("s_cbranch_scc0 K1S_NONONCE")
    a("s_memrealtime s[92:93]")
    a("s_waitcnt lgkmcnt(0)")
    a("s_or_b32 s92, s92, 1")
    a("v_mov_b32 v252, s92")
    a("v_mov_b32 v253, 0")
    a("v_mov_b32 v254, 0")
    a("s_mov_b64 s[10:11], exec")
    a("s_mov_b64 exec, 1")
    a(f"global_atomic_cmpswap v254, v253, v[252:253], s[{PDBG}:{PDBG+1}] sc0 sc1")
    a("s_mov_b64 exec, s[10:11]")
    a.label("K1S_NONONCE")
    mk_srd(a, 52, PBRE, 640 * 1280)
    mk_srd(a, 56, PBIM, 640 * 1280)
    mk_srd(a, 80, PLRE, 1280)
    mk_srd(a, 84, PLIM, 1280)
    mk_srd(a, 88, PLDT, 1280)
    a("s_lshl_b32 s10, s7, 7")
    a("s_lshl_b32 s11, s5, 6")
    a("s_add_u32 s68, s10, s11")
    a("v_and_b32 v3, 31, v2")
    a("v_add_u32 v3, s68, v3")
    a("v_lshlrev_b32 v7, 1, v3")
    for g in range(2):
        a(f"buffer_load_ushort v{224+3*g}, v7, s[80:83], 0 offen offset:{64*g}")
        a(f"buffer_load_ushort v{225+3*g}, v7, s[84:87], 0 offen offset:{64*g}")
        a(f"buffer_load_ushort v{226+3*g}, v7, s[88:91], 0 offen offset:{64*g}")
    a("s_lshl_b32 s10, s7, 7")
    a("s_lshl_b32 s11, s3, 4")
    a("s_add_u32 s10, s10, s11")
    a("v_lshrrev_b32 v3, 3, v2")
    a("v_add_u32 v4, s10, v3")
    a("v_mul_u32_u24 v10, 1280, v4")
    a(f"v_add_u32 v11, {8*1280}, v10")
    a("v_lshl_add_u32 v10, v26, 4, v10")
    a("v_lshl_add_u32 v11, v27, 4, v11")
    a("s_lshl_b32 s69, s3, 11")
    a("s_mov_b32 s74, 0")
    a("s_mov_b32 s73, 0")
    a("s_mov_b32 s75, 0")
    a("s_mov_b32 s79, 0")
    def adv(slot, soff):
        a(f"s_add_u32 s{soff}, s{soff}, 128")
        a(f"s_add_u32 s{slot}, s{slot}, {SSLOT}")
        a(f"s_cmp_ge_u32 s{slot}, {3*SSLOT}")
        a(f"s_cselect_b32 s{slot}, 0, s{slot}")
    def dma1(slot, off, v, srd, soff):
        a(f"s_add_u32 s10, s{slot}, s69")
        a(f"s_add_u32 m0, s10, {off}")
        a("s_nop 0")
        a(f"buffer_load_dwordx4 v{v}, s[{srd}:{srd+3}], s{soff} offen lds")
    def half_a():
        dma1(75, 0, 8, 48, 74); dma1(75, 1024, 9, 48, 74); dma1(75, 16384, 10, 52, 74)
        adv(75, 74)
    def half_b():
        dma1(79, 16384 + 1024, 11, 52, 73); dma1(79, 32768, 10, 56, 73); dma1(79, 32768 + 1024, 11, 56, 73)
        adv(79, 73)
    half_a(); half_b(); half_a(); half_b(); half_a()
    a("v_bfe_u32 v3, v2, 2, 1")
    a("v_lshlrev_b32 v3, 4, v3")
    a("v_and_b32 v4, 3, v2")
    a("v_add_u32 v3, v3, v4")
    a("v_bfe_u32 v4, v2, 3, 2")
    a("v_lshl_add_u32 v3, v4, 2, v3")
    a("v_mov_b32 v6, v3")
    a("v_bfe_u32 v5, v3, 1, 3")
    a("s_lshl_b32 s10, s4, 5")
    a("v_add_u32 v3, s10, v3")
    a("v_lshlrev_b32 v13, 7, v3")
    a("v_lshrrev_b32 v4, 5, v2")
    a("v_xor_b32 v5, v4, v5")
    a("v_lshl_add_u32 v13, v5, 4, v13")
    a("v_and_b32 v3, 31, v2")
    a("s_lshl_b32 s10, s5, 6")
    a("v_add_u32 v3, s10, v3")
    a("v_lshlrev_b32 v14, 7, v3")
    a("v_bfe_u32 v5, v2, 1, 3")
    a("v_xor_b32 v5, v4, v5")
    a("v_lshl_add_u32 v14, v5, 4, v14")
    a("v_add_u32 v14, 16384, v14")
    for i in range(64):
        a(f"v_mov_b32 v{128+i}, 0")
    for i in (19, 20, 22, 23, 24, 25):
        a(f"v_mov_b32 v{i}, 0")
    a("s_waitcnt vmcnt(15)")
    a("s_cmp_eq_u32 s3, 0")
    a("s_cbranch_scc0 K1S_NN2")
    a("v_cmp_eq_u32 vcc, 0, v254")
    a("s_nop 1")
    a("v_cndmask_b32 v254, v254, v252, vcc")
    a(f"v_mov_b32 v253, {NONCE_LDS}")
    a("s_mov_b64 s[10:11], exec")
    a("s_mov_b64 exec, 1")
    a("ds_write_b32 v253, v254")
    a("s_mov_b64 exec, s[10:11]")
    a.label("K1S_NN2")
    PR = lambda g, k: 208 + 8 * g + k
    for g in range(2):
        lre, lim, ldt = 224 + 3 * g, 225 + 3 * g, 226 + 3 * g
        ar_, ai_, cr_, ci_, qr, qi, hr, hi = [PR(g, k) for k in range(8)]
        a(f"v_lshlrev_b32 v{lre}, 16, v{lre}")
        a(f"v_lshlrev_b32 v{lim}, 16, v{lim}")
        a(f"v_lshlrev_b32 v{ldt}, 16, v{ldt}")
        a(f"v_mul_f32 v240, {f32hex(LOG2E)}, v{ldt}")
        a("v_exp_f32 v240, v240")
        a("s_nop 0")
        a("v_cvt_pk_bf16_f32 v240, v240, v240")
        a("v_lshlrev_b32 v240, 16, v240")
        a(f"v_mul_f32 v241, v240, v{lre}")
        a(f"v_mul_f32 v242, v240, v{lim}")
        a(f"v_mul_f32 v241, {f32hex(LOG2E)}, v241")
        a("v_exp_f32 v241, v241")
        a(f"v_mul_f32 v242, {f32hex(0.15915494309189535)}, v242")
        a("v_fract_f32 v242, v242")
        a("v_cos_f32 v243, v242")
        a("v_sin_f32 v244, v242")
        a("s_nop 0")
        a(f"v_mul_f32 v{ar_}, v241, v243")
        a(f"v_mul_f32 v{ai_}, v241, v244")
        a(f"v_add_f32 v243, -1.0, v{ar_}")
        a(f"v_mul_f32 v244, v{lre}, v{lre}")
        a(f"v_fmac_f32 v244, v{lim}, v{lim}")
        a("v_rcp_f32 v244, v244")
        a(f"v_mul_f32 v245, v243, v{lre}")
        a(f"v_fmac_f32 v245, v{ai_}, v{lim}")
        a(f"v_mul_f32 v246, v{ai_}, v{lre}")
        a(f"v_fma_f32 v246, -v243, v{lim}, v246")
        a("v_add_f32 v244, v244, v244")
        a(f"v_mul_f32 v{cr_}, v245, v244")
        a(f"v_mul_f32 v{ci_}, v246, v244")
        def sq(dr, di, sr_, si):
            a(f"v_mul_f32 v240, v{si}, v{si}")
            a(f"v_mul_f32 v241, v{sr_}, v{si}")
            a(f"v_fma_f32 v{dr}, v{sr_}, v{sr_}, -v240")
            a(f"v_add_f32 v{di}, v241, v241")
        sq(qr, qi, ar_, ai_)
        for _ in range(3): sq(qr, qi, qr, qi)
        sq(hr, hi, qr, qi)
        for _ in range(2): sq(hr, hi, hr, hi)
    SETS = (32, 80)
    def reads_ssm(setb):
        out = []
        for ks in range(2):
            b = setb + ks * 20
            out.append(f"ds_read_b128 v[{b}:{b+3}], v{15+ks}")
            for g in range(2):
                for part in range(2):
                    w = b + 4 + (g * 2 + part) * 4
                    out.append(f"ds_read_b128 v[{w}:{w+3}], v{(17, 21)[ks]} offset:{g*4096 + part*16384}")
        return out
    def rd_addr_s(uprime):
        a("v_add_u32 v15, s76, v13")
        a("v_add_u32 v17, s76, v14")
        if uprime:
            a("v_xor_b32 v15, 64, v15")
            a("v_xor_b32 v17, 64, v17")
        a("v_xor_b32 v16, 32, v15")
        a("v_xor_b32 v21, 32, v17")
        if uprime:
            a(f"s_add_u32 s76, s76, {SSLOT}")
            a(f"s_cmp_ge_u32 s76, {3*SSLOT}")
            a("s_cselect_b32 s76, 0, s76")
    a("s_waitcnt vmcnt(9) lgkmcnt(0)")
    a("s_barrier")
    stamp(a, 1)
    a("s_mov_b32 s76, 0")
    rd_addr_s(0)
    for r in reads_ssm(SETS[0]): a(r)
    a("s_mov_b32 s77, 0")
    a.label("K1S_LOOP")
    for u in range(2):
        cur, nxt = SETS[u], SETS[1 - u]
        if u == 1:
            wait2(6, 6, 16)
        a("s_waitcnt lgkmcnt(0)")
        a("s_barrier")
        l = a.uid("K1D")
        a(f"s_cmp_lt_u32 s77, 15")
        a(f"s_cbranch_scc0 {l}")
        if u == 0: half_b()
        else: half_a()
        a.label(l)
        rd_addr_s(1 - u)
        rd = reads_ssm(nxt)
        mf = []
        for ks in range(2):
            b = cur + ks * 20
            for g in range(2):
                for part in range(2):
                    w = b + 4 + (g * 2 + part) * 4
                    ac = 128 + 32 * g + 16 * part
                    mf.append(f"v_mfma_f32_32x32x16_bf16 v[{ac}:{ac+15}], v[{b}:{b+3}], v[{w}:{w+3}], v[{ac}:{ac+15}]")
        st = []
        for ks in range(2):
            for i in range(4):
                x = cur + 20 * ks + i
                st.append(f"v_dot2c_f32_bf16 v19, v{x}, v18")
                st.append(f"v_dot2c_f32_bf16 v20, v{x}, v{x}")
        if os.environ.get("NODOT"): st = []
        ri = si = 0
        for mi, m in enumerate(mf):
            a(m)
            for _ in range(2):
                if ri < len(rd): a(rd[ri]); ri += 1
            for _ in range(2):
                if si < len(st): a(st[si]); si += 1
            if mi in (3, 7) and not os.environ.get('NOCS'):
                ks = 0 if mi == 3 else 1
                l = a.uid("K1C")
                a(f"s_cmp_eq_u32 s4, {2*u+ks}")
                a(f"s_cbranch_scc0 {l}")
                for t in range(4):
                    w = cur + 20 * ks + 4 + 4 * t
                    for i in range(4):
                        a(f"v_dot2c_f32_bf16 v{22+t}, v{w+i}, v18")
                a.label(l)
        while ri < len(rd): a(rd[ri]); ri += 1
        while si < len(st): a(st[si]); si += 1
        a("s_add_u32 s77, s77, 1")
    a(f"s_cmp_lt_u32 s77, {NST}")
    a("s_cbranch_scc1 K1S_LOOP")
    a("s_waitcnt lgkmcnt(0)")
    stamp(a, 2)
    a("s_barrier")
    for t in range(4):
        a(f"v_mov_b32 v{26+t}, v{22+t}")
    a("s_nop 1")
    for t in range(4):
        a(f"v_permlane32_swap_b32 v{22+t}, v{26+t}")
    for t in range(4):
        a(f"v_add_f32 v{22+t}, v{22+t}, v{26+t}")
    a("v_and_b32 v3, 31, v2")
    a("v_lshlrev_b32 v3, 4, v3")
    a("s_lshl_b32 s10, s5, 11")
    a("v_add_u32 v30, s10, v3")
    a("s_lshl_b32 s11, s4, 2")
    a("v_add_u32 v3, s11, v30")
    for t in range(4):
        a(f"ds_write_b32 v3, v{22+t} offset:{512*t}")
    stats_finish(19, 20, 19, 20, 26, 27)
    a("v_mul_f32 v27, v19, v20")
    a("v_mov_b32 v26, v20")
    a("s_lshl_b32 s10, s4, 5")
    a("v_add_u32 v3, s10, v6")
    a("v_lshlrev_b32 v3, 3, v3")
    a("ds_write_b64 v3, v[26:27] offset:4096")
    a(f"v_mov_b32 v3, {NONCE_LDS}")
    a("s_waitcnt lgkmcnt(0)")
    a("s_barrier")
    a("ds_read_b32 v31, v3")
    for t in range(4):
        a(f"ds_read_b128 v[{224+4*t}:{227+4*t}], v30 offset:{512*t}")
    a("v_lshrrev_b32 v4, 5, v2")
    a("v_lshlrev_b32 v3, 7, v4")
    a("s_lshl_b32 s10, s4, 8")
    a("v_add_u32 v3, s10, v3")
    for i in range(8):
        a(f"ds_read_b128 v[{32+4*i}:{35+4*i}], v3 offset:{4096 + 16*i}")
    a("s_waitcnt lgkmcnt(0)")
    for t in range(4):
        a(f"v_add_f32 v{224+4*t}, v{224+4*t}, v{225+4*t}")
        a(f"v_add_f32 v{226+4*t}, v{226+4*t}, v{227+4*t}")
        a(f"v_add_f32 v{22+t}, v{224+4*t}, v{226+4*t}")
    for g in range(2):
        cr_, ci_ = PR(g, 2), PR(g, 3)
        a(f"v_mul_f32 v{240+2*g}, v{cr_}, v{22+2*g}")
        a(f"v_fma_f32 v{240+2*g}, -v{ci_}, v{23+2*g}, v{240+2*g}")
        a(f"v_mul_f32 v{241+2*g}, v{cr_}, v{23+2*g}")
        a(f"v_fma_f32 v{241+2*g}, v{ci_}, v{22+2*g}, v{241+2*g}")
    RE = lambda g, r: 128 + 32 * g + r
    IM = lambda g, r: 128 + 32 * g + 16 + r
    for r in range(16):
        for g in range(2):
            cr_, ci_ = PR(g, 2), PR(g, 3)
            re, im = RE(g, r), IM(g, r)
            t = 244 + 2 * g
            a(f"v_mul_f32 v{t}, v{cr_}, v{re}")
            a(f"v_mul_f32 v{t+1}, v{cr_}, v{im}")
            a(f"v_fma_f32 v{t}, -v{ci_}, v{im}, v{t}")
            a(f"v_fma_f32 v{t+1}, v{ci_}, v{re}, v{t+1}")
            a(f"v_mul_f32 v{t}, v{t}, v{32+2*r}")
            a(f"v_mul_f32 v{t+1}, v{t+1}, v{32+2*r}")
            a(f"v_fma_f32 v{re}, -v{33+2*r}, v{240+2*g}, v{t}")
            a(f"v_fma_f32 v{im}, -v{33+2*r}, v{241+2*g}, v{t+1}")
        for g in range(2):
            if r == 0: continue
            sr_, si = (RE(g, 0), IM(g, 0)) if r == 1 else (224 + 4 * ((r - 1) & 1) + 2 * g, 225 + 4 * ((r - 1) & 1) + 2 * g)
            dr, di = 224 + 4 * (r & 1) + 2 * g, 225 + 4 * (r & 1) + 2 * g
            mr, mi = PR(g, 0), PR(g, 1)
            a(f"v_fma_f32 v{dr}, v{mr}, v{sr_}, v{RE(g, r)}")
            a(f"v_fma_f32 v{di}, v{mr}, v{si}, v{IM(g, r)}")
            a(f"v_fma_f32 v{dr}, -v{mi}, v{si}, v{dr}")
            a(f"v_fma_f32 v{di}, v{mi}, v{sr_}, v{di}")
    EO = lambda g: 224 + 4 + 2 * g
    a("v_lshrrev_b32 v4, 5, v2")
    a("s_lshl_b32 s10, s4, 1")
    a("v_add_u32 v21, s10, v4")
    a("v_and_b32 v3, 31, v2")
    a("s_lshl_b32 s10, s5, 6")
    a("v_add_u32 v3, s10, v3")
    a("v_lshlrev_b32 v22, 3, v3")
    a("v_lshl_add_u32 v23, v21, 10, v22")
    for g in range(2):
        a(f"ds_write_b64 v23, v[{EO(g)}:{EO(g)+1}] offset:{8192 + 256*g}")
    a("s_waitcnt lgkmcnt(0)")
    a("s_barrier")
    for g in range(2):
        for j in range(7):
            a(f"ds_read_b64 v[{32+16*g+2*j}:{33+16*g+2*j}], v22 offset:{8192 + 1024*j + 256*g}")
    for g in range(2):
        a(f"v_mov_b32 v{232+2*g}, 0")
        a(f"v_mov_b32 v{233+2*g}, 0")
        a(f"v_mov_b32 v{236+2*g}, 1.0")
        a(f"v_mov_b32 v{237+2*g}, 0")
    a("s_waitcnt lgkmcnt(0)")
    for j in range(7):
        lskip = a.uid("K1SH")
        if j % 2 == 0:
            a(f"s_cmp_lt_u32 s4, {j//2}")
            a("s_cbranch_scc1 K1S_HP_DONE")
            a(f"s_cmp_eq_u32 s4, {j//2}")
            a("s_cselect_b32 exec_lo, 0, -1")
        else:
            a(f"s_cmp_le_u32 s4, {j//2}")
            a("s_cbranch_scc1 K1S_HP_DONE")
        for g in range(2):
            qr, qi = PR(g, 4), PR(g, 5)
            Pr, Pi, wr, wi = 232 + 2 * g, 233 + 2 * g, 236 + 2 * g, 237 + 2 * g
            er, ei = 32 + 16 * g + 2 * j, 33 + 16 * g + 2 * j
            a(f"v_fma_f32 v240, v{qr}, v{Pr}, v{er}")
            a(f"v_fma_f32 v241, v{qr}, v{Pi}, v{ei}")
            a(f"v_fma_f32 v240, -v{qi}, v{Pi}, v240")
            a(f"v_fma_f32 v{Pi}, v{qi}, v{Pr}, v241")
            a(f"v_mov_b32 v{Pr}, v240")
            a(f"v_mul_f32 v242, v{qr}, v{wr}")
            a(f"v_mul_f32 v243, v{qr}, v{wi}")
            a(f"v_fma_f32 v242, -v{qi}, v{wi}, v242")
            a(f"v_fma_f32 v{wi}, v{qi}, v{wr}, v243")
            a(f"v_mov_b32 v{wr}, v242")
    a.label("K1S_HP_DONE")
    a("s_mov_b64 exec, -1")
    mk_srd(a, 80, PWS, E_SZ, E_OFF)
    a("s_cmp_eq_u32 s4, 3")
    a("s_cbranch_scc0 K1S_NOPUB")
    for g in range(2):
        qr, qi = PR(g, 4), PR(g, 5)
        Pr, Pi = 232 + 2 * g, 233 + 2 * g
        er, ei = EO(g), EO(g) + 1
        d = 240 + 4 * g
        a(f"v_fma_f32 v{d}, v{qr}, v{Pr}, v{er}")
        a(f"v_fma_f32 v{d+1}, v{qr}, v{Pi}, v{ei}")
        a(f"v_fma_f32 v{d}, -v{qi}, v{Pi}, v{d}")
        a(f"v_fma_f32 v{d+1}, v{qi}, v{Pr}, v{d+1}")
        a(f"v_mov_b32 v{d+2}, v31")
        a(f"v_not_b32 v{d+3}, v31")
    a("v_lshlrev_b32 v24, 3, v7")
    a(f"s_mul_i32 s10, s6, {640*16}")
    a("s_mov_b32 exec_lo, 0")
    for g in range(2):
        a(f"buffer_store_dwordx4 v[{240+4*g}:{243+4*g}], v24, s[80:83], s10 offen offset:{512*g} sc1")
    a("s_mov_b64 exec, -1")
    a.label("K1S_NOPUB")
    stamp(a, 4)
    a("s_cmp_eq_u32 s4, 0")
    a("s_cbranch_scc0 K1S_NOPOLL")
    a("v_add_u32 v24, s68, v2")
    a("v_lshlrev_b32 v24, 4, v24")
    a("v_cmp_lt_u32 vcc, 31, v2")
    a("v_mov_b32 v244, 0")
    a("v_mov_b32 v245, 0")
    a(f"v_cndmask_b32 v246, v{PR(0,6)}, v{PR(1,6)}, vcc")
    a(f"v_cndmask_b32 v247, v{PR(0,7)}, v{PR(1,7)}, vcc")
    a("v_not_b32 v25, v31")
    a("s_cmp_eq_u32 s6, 0")
    a("s_cbranch_scc1 K1S_HDONE")
    a("s_mov_b32 s14, 200000")
    a.label("K1S_POLL")
    for j in range(15):
        a(f"s_cmp_le_u32 s6, {j}")
        a("s_cbranch_scc1 K1S_LOADED")
        a(f"s_mov_b32 s10, {j*640*16}")
        a(f"buffer_load_dwordx4 v[{64+4*j}:{67+4*j}], v24, s[80:83], s10 offen sc1")
    a.label("K1S_LOADED")
    a("s_waitcnt vmcnt(0)")
    a("s_mov_b64 s[12:13], -1")
    for j in range(15):
        a(f"s_cmp_le_u32 s6, {j}")
        a("s_cbranch_scc1 K1S_CHK")
        a(f"v_cmp_eq_u32 vcc, v{66+4*j}, v31")
        a(f"v_cmp_eq_u32 s[10:11], v{67+4*j}, v25")
        a("s_and_b64 s[12:13], s[12:13], vcc")
        a("s_and_b64 s[12:13], s[12:13], s[10:11]")
    a.label("K1S_CHK")
    a("s_cmp_eq_u64 s[12:13], -1")
    a("s_cbranch_scc1 K1S_VALID")
    a("s_sub_u32 s14, s14, 1")
    a("s_cmp_eq_u32 s14, 0")
    a("s_cbranch_scc1 K1S_VALID")
    a("s_sleep 1")
    a("s_branch K1S_POLL")
    a.label("K1S_VALID")
    for j in range(15):
        a(f"s_cmp_le_u32 s6, {j}")
        a("s_cbranch_scc1 K1S_HDONE")
        a(f"v_fma_f32 v240, v246, v244, v{64+4*j}")
        a(f"v_fma_f32 v241, v246, v245, v{65+4*j}")
        a(f"v_fma_f32 v240, -v247, v245, v240")
        a(f"v_fma_f32 v245, v247, v244, v241")
        a("v_mov_b32 v244, v240")
    a.label("K1S_HDONE")
    a("s_lshl_b32 s10, s5, 6")
    a("v_add_u32 v3, s10, v2")
    a("v_lshlrev_b32 v3, 3, v3")
    a("ds_write_b64 v3, v[244:245] offset:16384")
    a("s_waitcnt lgkmcnt(0)")
    a.label("K1S_NOPOLL")
    a("s_barrier")
    stamp(a, 5)
    for g in range(2):
        a(f"ds_read_b64 v[{240+2*g}:{241+2*g}], v22 offset:{16384 + 256*g}")
    a("s_waitcnt lgkmcnt(0)")
    for g in range(2):
        Pr, Pi, wr, wi, Hr, Hi = 232 + 2 * g, 233 + 2 * g, 236 + 2 * g, 237 + 2 * g, 240 + 2 * g, 241 + 2 * g
        a(f"v_fma_f32 v{Pr}, v{wr}, v{Hr}, v{Pr}")
        a(f"v_fma_f32 v{Pi}, v{wr}, v{Hi}, v{Pi}")
        a(f"v_fma_f32 v{Pr}, -v{wi}, v{Hi}, v{Pr}")
        a(f"v_fma_f32 v{Pi}, v{wi}, v{Hr}, v{Pi}")
    for r in range(16):
        for g in range(2):
            pr_, pi_ = (232 + 2 * g, 233 + 2 * g) if r == 0 else (RE(g, r - 1), IM(g, r - 1))
            mr, mi = PR(g, 0), PR(g, 1)
            re, im = RE(g, r), IM(g, r)
            a(f"v_fma_f32 v{re}, v{mr}, v{pr_}, v{re}")
            a(f"v_fma_f32 v{im}, v{mr}, v{pi_}, v{im}")
            a(f"v_fma_f32 v{re}, -v{mi}, v{pi_}, v{re}")
            a(f"v_fma_f32 v{im}, v{mi}, v{pr_}, v{im}")
    a("s_mul_i32 s10, s3, 10240")
    a("s_add_u32 s10, s10, 20480")
    a("v_and_b32 v3, 31, v2")
    a("v_mul_u32_u24 v3, 80, v3")
    a("v_lshrrev_b32 v4, 5, v2")
    a("v_lshl_add_u32 v3, v4, 5, v3")
    a("v_add_u32 v28, s10, v3")
    for g in range(2):
        for part in range(2):
            src = 128 + 32 * g + 16 * part
            neg = "-" if part else ""
            pk = 32 + 8 * (g * 2 + part)
            for i in range(8):
                a(f"v_cvt_pk_bf16_f32 v{pk+i}, {neg}v{src+2*i}, {neg}v{src+2*i+1}")
            off = (g * 2 + part) * 2560
            a(f"ds_write_b128 v28, v[{pk}:{pk+3}] offset:{off}")
            a(f"ds_write_b128 v28, v[{pk+4}:{pk+7}] offset:{off+16}")
    a("v_lshrrev_b32 v3, 4, v2")
    a("v_lshlrev_b32 v3, 3, v3")
    a("v_bfe_u32 v4, v2, 2, 2")
    a("v_add_u32 v3, v3, v4")
    a("v_mul_u32_u24 v3, 80, v3")
    a("v_and_b32 v4, 3, v2")
    a("v_lshl_add_u32 v3, v4, 3, v3")
    a("v_add_u32 v29, s10, v3")
    a("v_lshlrev_b32 v30, 4, v2")
    a("s_lshl_b32 s10, s6, 1")
    a("s_lshr_b32 s11, s4, 1")
    a("s_add_u32 s10, s10, s11")
    a("s_mul_i32 s10, s10, 94")
    a("s_lshr_b32 s11, s68, 4")
    a("s_add_u32 s10, s10, s11")
    a("s_lshl_b32 s10, s10, 12")
    a("s_and_b32 s11, s4, 1")
    a("s_lshl_b32 s11, s11, 11")
    a("s_add_u32 s10, s10, s11")
    a("s_waitcnt lgkmcnt(0)")
    for g in range(2):
        for part in range(2):
            off = (g * 2 + part) * 2560
            for i in range(2):
                b = 64 + ((g * 2 + part) * 2 + i) * 4
                a(f"ds_read_b64_tr_b16 v[{b}:{b+1}], v29 offset:{off + 32*i}")
                a(f"ds_read_b64_tr_b16 v[{b+2}:{b+3}], v29 offset:{off + 32*i + 320}")
    a("s_waitcnt lgkmcnt(0)")
    for g in range(2):
        for part in range(2):
            for i in range(2):
                b = 64 + ((g * 2 + part) * 2 + i) * 4
                a(f"s_add_u32 s11, s10, {(2*g + part)*4096 + i*1024}")
                a(f"buffer_store_dwordx4 v[{b}:{b+3}], v30, s[64:67], s11 offen")
    side_jobs_finish("S")
    if STAMP: a("s_waitcnt vmcnt(0)")
    stamp(a, 3); stamp_flush(a, 0)
    a.label("K1_END")
    a("s_endpgm")

K2_D = 4
K2_TILE = 64 * 320
K2_LDS = 8 * K2_TILE
def gen_k2(a):
    D = K2_D
    kernel_begin(a, "k2_kernel")
    a("s_cmp_ge_u32 s2, 256")
    a("s_cbranch_scc1 K2_END")
    load_args(a)
    a("v_lshrrev_b32 v1, 6, v0")
    a("v_and_b32 v2, 63, v0")
    a("s_nop 0")
    a("v_readfirstlane_b32 s3, v1")
    a("s_and_b32 s4, s2, 7")
    a("s_lshr_b32 s5, s2, 3")
    a("s_lshr_b32 s6, s4, 1")
    a("s_lshl_b32 s6, s6, 3")
    a("s_and_b32 s7, s5, 7")
    a("s_add_u32 s6, s6, s7")
    a("s_and_b32 s7, s4, 1")
    a("s_lshl_b32 s7, s7, 2")
    a("s_lshr_b32 s8, s5, 3")
    a("s_add_u32 s7, s7, s8")
    a("s_mul_i32 s8, s3, 10")
    a("s_mov_b32 s12, 10")
    a("s_cmp_lt_u32 s3, 4")
    a("s_cbranch_scc1 K2_RNG")
    a("s_sub_u32 s9, s3, 4")
    a("s_mul_i32 s8, s9, 14")
    a("s_add_u32 s8, s8, 40")
    a("s_mov_b32 s12, 14")
    a("s_cmp_lt_u32 s9, 2")
    a("s_cbranch_scc1 K2_RNG")
    a("s_mul_i32 s8, s9, 13")
    a("s_add_u32 s8, s8, 42")
    a("s_mov_b32 s12, 13")
    a.label("K2_RNG")
    a("v_lshlrev_b32 v3, 4, v2")
    a("v_add_u32 v4, 4096, v3")
    a("s_waitcnt lgkmcnt(0)")
    if STAMP: a("v_mov_b32 v31, 0")
    stamp(a, 0, vt=31)
    mk_srd(a, 48, PWS, AF_SZ, AF_OFF)
    mk_srd(a, 52, PWS, BF_SZ, BF_OFF)
    a("s_mul_i32 s10, s6, 94")
    a("s_add_u32 s10, s10, s8")
    a("s_lshl_b32 s10, s10, 12")
    a("s_mul_i32 s11, s7, 94")
    a("s_add_u32 s11, s11, s8")
    a("s_mul_i32 s11, s11, 5120")
    SET0 = 32
    def setb(i): return SET0 + 36 * i
    def issue(i):
        b = setb(i)
        for t in range(4):
            a(f"buffer_load_dwordx4 v[{b+4*t}:{b+4*t+3}], v3, s[48:51], s10 offen offset:{1024*t}")
        for t in range(4):
            a(f"buffer_load_dwordx4 v[{b+16+4*t}:{b+16+4*t+3}], v3, s[52:55], s11 offen offset:{1024*t}")
        a(f"buffer_load_dwordx4 v[{b+32}:{b+35}], v4, s[52:55], s11 offen")
        a("s_add_u32 s10, s10, 4096")
        a("s_add_u32 s11, s11, 5120")
    for i in range(D):
        issue(i)
    mk_srd(a, 56, PX, X_SZ)
    mk_srd(a, 60, PWS, ST_SZ, ST_OFF)
    mk_srd(a, 64, PDSK, 1280)
    mk_srd(a, 68, POUT, 2048 * 2560)
    for i in range(80):
        a(f"v_accvgpr_write_b32 a{i}, 0")
    a(f"s_sub_u32 s13, s12, {D}")
    a.label("K2_LOOP")
    for i in range(D):
        b = setb(i)
        l1 = a.uid("K2W"); l2 = a.uid("K2S")
        a("s_cmp_lg_u32 s13, 0")
        a(f"s_cbranch_scc1 {l1}")
        a("s_waitcnt vmcnt(0)")
        a.label(l1)
        a(f"s_waitcnt vmcnt({9*(D-1)})")
        for ti in range(4):
            for j in range(5):
                ac = (ti * 5 + j) * 4
                a(f"v_mfma_f32_16x16x32_bf16 a[{ac}:{ac+3}], v[{b+16+4*j}:{b+16+4*j+3}], v[{b+4*ti}:{b+4*ti+3}], a[{ac}:{ac+3}]")
        a("s_cmp_lg_u32 s13, 0")
        a(f"s_cbranch_scc0 {l2}")
        issue(i)
        a("s_sub_u32 s13, s13, 1")
        a.label(l2)
        a("s_sub_u32 s12, s12, 1")
        a("s_cmp_lg_u32 s12, 0")
        if i < D - 1: a("s_cbranch_scc0 K2_DONE")
        else: a("s_cbranch_scc1 K2_LOOP")
    a.label("K2_DONE")
    stamp(a, 1, vt=31)
    NCH = 3
    for i in range(NCH):
        a(f"v_add_u32 v6, {512*i}, v0")
        vdiv(a, 7, 6, 20, 14)
        a("v_mul_u32_u24 v8, 20, v7")
        a("v_sub_u32 v8, v6, v8")
        a("v_bfe_u32 v9, v7, 1, 2")
        a("v_xor_b32 v9, v9, v8")
        a(f"v_mul_u32_u24 v{16+i}, 320, v7")
        a(f"v_lshl_add_u32 v{16+i}, v9, 4, v{16+i}")
        a("s_lshl_b32 s15, s6, 6")
        a("v_add_u32 v7, s15, v7")
        a("s_mul_i32 s15, s7, 80")
        a("v_lshl_add_u32 v8, v8, 2, s15")
        a("v_mul_u32_u24 v9, 640, v7")
        a("v_add_u32 v9, v9, v8")
        a(f"v_lshlrev_b32 v{20+i}, 2, v9")
        a("v_lshlrev_b32 v9, 1, v9")
        a("v_lshlrev_b32 v8, 1, v8")
        a("v_lshlrev_b32 v7, 3, v7")
        a(f"buffer_load_dwordx2 v[{32+6*i}:{33+6*i}], v9, s[56:59], 0 offen")
        a(f"buffer_load_dwordx2 v[{34+6*i}:{35+6*i}], v7, s[60:63], 0 offen")
        a(f"buffer_load_dwordx2 v[{36+6*i}:{37+6*i}], v8, s[64:67], 0 offen")
    a("v_and_b32 v5, 15, v2")
    a("v_bfe_u32 v7, v2, 1, 2")
    a("v_lshrrev_b32 v6, 4, v2")
    a("v_xor_b32 v6, v6, v7")
    a("v_mul_u32_u24 v5, 320, v5")
    a("v_lshl_add_u32 v5, v6, 4, v5")
    a(f"s_mul_i32 s14, s3, {K2_TILE}")
    a("v_add_u32 v5, s14, v5")
    a("s_nop 3")
    for ti in range(4):
        for j in range(5):
            ac = (ti * 5 + j) * 4
            a(f"ds_write_b128 v5, a[{ac}:{ac+3}] offset:{ti*16*320 + j*64}")
    a("s_waitcnt lgkmcnt(0)")
    a("s_barrier")
    stamp(a, 2, vt=31)
    for i in range(NCH):
        if i == NCH - 1:
            a("s_cmp_ge_u32 s3, 4")
            a("s_cbranch_scc1 K2_FIN")
        r = 64
        a(f"v_add_u32 v26, {3*K2_TILE}, v{16+i}")
        a(f"v_add_u32 v27, {6*K2_TILE}, v{16+i}")
        for w in range(8):
            base = (f"v{16+i}", "v26", "v27")[w // 3]
            a(f"ds_read_b128 v[{r+4*w}:{r+4*w+3}], {base} offset:{(w % 3)*K2_TILE}")
        a("s_waitcnt vmcnt(0) lgkmcnt(0)" if i == 0 else "s_waitcnt lgkmcnt(0)")
        for e in range(4):
            xw, dw = 32 + 6 * i + (e >> 1), 36 + 6 * i + (e >> 1)
            mreg, rreg = 34 + 6 * i, 35 + 6 * i
            y, f = r + e, r + 16 + e
            a(f"v_add_f32 v{y}, v{y}, v{r+4+e}")
            a(f"v_add_f32 v{r+8+e}, v{r+8+e}, v{r+12+e}")
            a(f"v_add_f32 v{f}, v{f}, v{r+20+e}")
            a(f"v_add_f32 v{r+24+e}, v{r+24+e}, v{r+28+e}")
            a(f"v_add_f32 v{y}, v{y}, v{r+8+e}")
            a(f"v_add_f32 v{f}, v{f}, v{r+24+e}")
            if e & 1:
                a(f"v_and_b32 v10, 0xffff0000, v{xw}")
                a(f"v_and_b32 v12, 0xffff0000, v{dw}")
            else:
                a(f"v_lshlrev_b32 v10, 16, v{xw}")
                a(f"v_lshlrev_b32 v12, 16, v{dw}")
            a(f"v_sub_f32 v11, v10, v{mreg}")
            a(f"v_mul_f32 v13, 0xbfb8aa3b, v{f}")
            a("v_exp_f32 v13, v13")
            a(f"v_mul_f32 v11, v11, v{rreg}")
            a("v_add_f32 v13, 1.0, v13")
            a("v_rcp_f32 v13, v13")
            a(f"v_fmac_f32 v{y}, v11, v12")
            a(f"v_mul_f32 v13, v13, v{f}")
            a(f"v_fma_f32 v{96+e}, v{y}, v13, v10")
        a(f"buffer_store_dwordx4 v[96:99], v{20+i}, s[68:71], 0 offen")
        a("s_nop 1")
    a.label("K2_FIN")
    if STAMP: a("s_waitcnt vmcnt(0)")
    stamp(a, 3, vt=31); stamp_flush(a, 1, 31)
    a.label("K2_END")
    a("s_endpgm")

def build(path):
    a = Asm()
    a.raw(HDR.rstrip("\n"))
    a.raw(f"; @launch kernel=k1_kernel grid=(256,1,1) block=(512,1,1) lds={K1_LDS}")
    a.raw(f"; @launch kernel=k2_kernel grid=(256,1,1) block=(512,1,1) lds={K2_LDS}")
    a.raw('.amdgcn_target "amdgcn-amd-amdhsa--gfx950"')
    a.raw(".text")
    gen_k1(a); gen_k2(a)
    a.raw('.section .rodata,"a"')
    a.raw(descriptor("k1_kernel", 256, 102, 256))
    a.raw(descriptor("k2_kernel", 256, 96, 176))
    t = a.text()
    open(path, "w").write(t)
    lint(t)

if __name__ == "__main__":
    build(sys.argv[1] if len(sys.argv) > 1 else "v2.s")
```

```python
import sys, os, struct
from asmlib import *
from gen1 import (HDR, SRD3, P, PX, PLRE, PLIM, PBRE, PBIM, PCRE, PCIM, PLDT, PDSK, PBX, PWG, PWU, PWD, POUT, PDBG, PWS,
                  load_args, mk_srd, sdiv, vdiv, kernel_begin, descriptor, stamp, stamp_flush, STAMP)
ENV = os.environ.get

AF_OFF = 4 << 20
BF_OFF = 20 << 20
E_OFF = 28 << 20
ST_OFF = 29 << 20
CS_OFF = 30 << 20
X_SZ = 2048 * 1280
AF_SZ = 32 * 94 * 4096
BF_SZ = 8 * 94 * 5120
E_SZ = 16 * 640 * 16
ST_SZ = 2048 * 16
CSF_SZ = 11 * 10 * 320 * 8
CSS_SZ = 5 * 10 * 256 * 8
CS_SZ = CSF_SZ + CSS_SZ
LOG2E = 1.4426950408889634
def f32hex(x): return "0x%08x" % struct.unpack("<I", struct.pack("<f", x))[0]

XSLOT = 16384
FX0 = 0
FW0 = 3 * XSLOT
GU = 10240 + 32
WSLOT = 20544
SSLOT = 49152
SPARE = FW0 + 5 * WSLOT
K1_LDS = 163840
NST = 20
VN = 247

def gen_k1(a):
    kernel_begin(a, "k1_kernel")
    a("s_cmp_ge_u32 s2, 256")
    a("s_cbranch_scc1 K1_END")
    load_args(a)
    a("v_lshrrev_b32 v1, 6, v0")
    a("v_and_b32 v2, 63, v0")
    a("s_and_b32 s8, s2, 7")
    a("v_readfirstlane_b32 s3, v1")
    a("s_lshr_b32 s9, s2, 3")
    a("s_and_b32 s6, s8, 1")
    a("s_lshl_b32 s6, s6, 3")
    a("s_and_b32 s10, s9, 7")
    a("s_add_u32 s6, s6, s10")
    a("s_lshr_b32 s7, s8, 1")
    a("s_lshl_b32 s7, s7, 2")
    a("s_lshr_b32 s10, s9, 3")
    a("s_add_u32 s7, s7, s10")
    a("s_and_b32 s4, s3, 3")
    a("s_lshr_b32 s5, s3, 2")
    a("s_add_u32 s11, s6, s7")
    for _ in range(3):
        a("s_sub_u32 s12, s11, 10")
        a("s_cmp_ge_u32 s11, 10")
        a("s_cselect_b32 s11, s12, s11")
    a("s_mov_b32 s0, s11")
    a("s_lshl_b32 s10, s6, 7")
    a("s_lshl_b32 s11, s3, 4")
    a("s_add_u32 s10, s10, s11")
    a("v_lshrrev_b32 v3, 3, v2")
    a("v_add_u32 v4, s10, v3")
    a("v_mul_u32_u24 v8, 1280, v4")
    a("v_and_b32 v5, 7, v2")
    a("v_lshrrev_b32 v6, 4, v2")
    a("v_xor_b32 v26, v5, v6")
    a("v_xor_b32 v27, 4, v26")
    a(f"v_add_u32 v9, {8*1280}, v8")
    a("v_lshl_add_u32 v8, v26, 4, v8")
    a("v_lshl_add_u32 v9, v27, 4, v9")
    a("v_mov_b32 v18, 0x3f803f80")
    a("s_lshl_b32 s69, s3, 11")
    a("s_lshl_b32 s74, s0, 7")
    a("s_waitcnt lgkmcnt(0)")
    if STAMP: a("v_mov_b32 v255, 0")
    stamp(a, 0)
    mk_srd(a, 48, PX, X_SZ)
    a("s_or_b32 s10, s2, s3")
    a("s_cmp_eq_u32 s10, 0")
    a("s_cbranch_scc0 K1_NONC")
    a("s_memrealtime s[92:93]")
    a("s_waitcnt lgkmcnt(0)")
    a("s_or_b32 s92, s92, 1")
    a("v_mov_b32 v3, s92")
    a("v_mov_b32 v4, 0")
    a(f"global_store_dword v4, v3, s[{PDBG}:{PDBG+1}] sc1")
    a.label("K1_NONC")
    a("s_cmp_lt_u32 s3, 6")
    a("s_cbranch_scc1 K1_NOSJ")
    a("s_lshl_b32 s10, s2, 3")
    a("s_sub_u32 s11, s3, 6")
    a("s_lshl_b32 s11, s11, 2")
    a("s_add_u32 s10, s10, s11")
    a("v_add_u32 v28, s10, v6")
    a("v_mul_u32_u24 v3, 1280, v28")
    a("v_and_b32 v4, 15, v2")
    a("v_lshl_add_u32 v3, v4, 4, v3")
    for i in range(5):
        a(f"buffer_load_dwordx4 v[{208+4*i}:{211+4*i}], v3, s[48:51], 0 offen offset:{256*i}")
    a.label("K1_NOSJ")
    mk_srd(a, 64, PWS, AF_SZ, AF_OFF)
    mk_srd(a, 96, PWS, BF_SZ, BF_OFF)

    def side_jobs_issue():
        l1, l2 = a.uid("K1_NOC"), a.uid("K1_NOW")
        a("s_cmp_ge_u32 s2, 200")
        a(f"s_cbranch_scc1 {l1}")
        a("s_lshl_b32 s10, s2, 3")
        a("s_add_u32 s10, s10, s3")
        sdiv(a, 11, 10, 200)
        a("s_mul_i32 s12, s11, 200")
        a("s_sub_u32 s12, s10, s12")
        sdiv(a, 13, 12, 5)
        a("s_mul_i32 s14, s13, 5")
        a("s_sub_u32 s14, s12, s14")
        a("s_bitcmp1_b32 s13, 0")
        a(f"s_cselect_b32 s52, s{PCIM}, s{PCRE}")
        a(f"s_cselect_b32 s53, s{PCIM+1}, s{PCRE+1}")
        a(f"s_mov_b32 s54, {640*1280}")
        a(f"s_mov_b32 s55, {SRD3:#x}")
        a("s_mul_i32 s15, s11, 80")
        a("s_lshl_b32 s56, s14, 4")
        a("s_add_u32 s15, s15, s56")
        a("v_and_b32 v3, 15, v2")
        a("v_add_u32 v3, s15, v3")
        a("v_mul_u32_u24 v3, 1280, v3")
        a("v_lshrrev_b32 v4, 4, v2")
        a("v_lshl_add_u32 v3, v4, 4, v3")
        a("s_lshr_b32 s15, s13, 1")
        a("s_lshl_b32 s15, s15, 6")
        a("buffer_load_dwordx4 v[248:251], v3, s[52:55], s15 offen")
        a("s_mul_i32 s100, s11, 94")
        a("s_add_u32 s100, s100, s13")
        a("s_mul_i32 s100, s100, 5")
        a("s_add_u32 s100, s100, s14")
        a("s_lshl_b32 s100, s100, 10")
        a.label(l1)
        a("s_cmp_ge_u32 s2, 216")
        a(f"s_cbranch_scc1 {l2}")
        a("s_sub_u32 s10, s3, 1")
        a("s_cmp_ge_u32 s10, 2")
        a(f"s_cbranch_scc1 {l2}")
        a("s_lshl_b32 s11, s2, 1")
        a("s_add_u32 s11, s11, s10")
        sdiv(a, 13, 11, 54)
        a("s_mul_i32 s12, s13, 54")
        a("s_sub_u32 s12, s11, s12")
        mk_srd(a, 52, PWD, 1728 * 1280)
        a(f"s_mul_i32 s14, s12, {32*1280}")
        a("s_mul_i32 s15, s13, 160")
        a("s_add_u32 s14, s14, s15")
        a("s_mul_i32 s101, s13, 94")
        a("s_add_u32 s101, s101, s12")
        a("s_add_u32 s101, s101, 40")
        a("s_mul_i32 s101, s101, 5120")
        a("s_mul_i32 s10, s10, 5120")
        a(f"s_add_u32 s10, s10, {SPARE}")
        for i in range(5):
            a(f"v_add_u32 v3, {64*i}, v2")
            vdiv(a, 4, 3, 10, 15)
            a("v_mul_u32_u24 v5, 10, v4")
            a("v_sub_u32 v5, v3, v5")
            a("v_mul_u32_u24 v4, 1280, v4")
            a("v_lshl_add_u32 v4, v5, 4, v4")
            a(f"s_add_u32 m0, s10, {1024*i}")
            a("s_nop 0")
            a("buffer_load_dwordx4 v4, s[52:55], s14 offen lds")
        a.label(l2)

    def side_jobs_finish(tag, younger, vbase=32):
        l1, l2 = f"K1_SJ1_{tag}", f"K1_SJ2_{tag}"
        a(f"s_waitcnt vmcnt({younger})")
        a("v_lshlrev_b32 v5, 4, v2")
        a("s_cmp_ge_u32 s2, 200")
        a(f"s_cbranch_scc1 {l1}")
        a("buffer_store_dwordx4 v[248:251], v5, s[96:99], s100 offen")
        a.label(l1)
        a("s_cmp_ge_u32 s2, 216")
        a(f"s_cbranch_scc1 {l2}")
        a("s_sub_u32 s14, s3, 1")
        a("s_cmp_ge_u32 s14, 2")
        a(f"s_cbranch_scc1 {l2}")
        a("v_lshrrev_b32 v6, 5, v2")
        a("v_lshlrev_b32 v6, 4, v6")
        a("v_bfe_u32 v4, v2, 4, 1")
        a("v_lshl_add_u32 v6, v4, 2, v6")
        a("v_bfe_u32 v4, v2, 2, 2")
        a("v_add_u32 v6, v6, v4")
        a("v_mul_u32_u24 v6, 160, v6")
        a("v_and_b32 v4, 3, v2")
        a("v_lshl_add_u32 v6, v4, 3, v6")
        a("s_mul_i32 s14, s14, 5120")
        a(f"s_add_u32 s14, s14, {SPARE}")
        a("v_add_u32 v6, s14, v6")
        for j in range(5):
            a(f"ds_read_b64_tr_b16 v[{vbase+4*j}:{vbase+1+4*j}], v6 offset:{32*j}")
            a(f"ds_read_b64_tr_b16 v[{vbase+2+4*j}:{vbase+3+4*j}], v6 offset:{32*j+8*160}")
        a("s_waitcnt lgkmcnt(0)")
        for j in range(5):
            a(f"s_add_u32 s14, s101, {1024*j}")
            a(f"buffer_store_dwordx4 v[{vbase+4*j}:{vbase+3+4*j}], v5, s[96:99], s14 offen")
        a.label(l2)

    def ensure_nonce(tag):
        l0, l1 = f"K1_EN0_{tag}", f"K1_EN1_{tag}"
        a(f"v_readfirstlane_b32 s10, v{VN}")
        a("s_cmp_lg_u32 s10, 0")
        a(f"s_cbranch_scc1 {l1}")
        a("v_mov_b32 v3, 0")
        a("s_mov_b32 s11, 2000000")
        a.label(l0)
        a(f"global_load_dword v{VN}, v3, s[{PDBG}:{PDBG+1}] sc1")
        a("s_waitcnt vmcnt(0)")
        a(f"v_readfirstlane_b32 s10, v{VN}")
        a("s_sub_u32 s11, s11, 1")
        a("s_cmp_eq_u32 s11, 0")
        a(f"s_cbranch_scc1 {l1}")
        a("s_cmp_eq_u32 s10, 0")
        a(f"s_cbranch_scc1 {l0}")
        a.label(l1)

    def nonce_load():
        a("v_mov_b32 v3, 0")
        a(f"global_load_dword v{VN}, v3, s[{PDBG}:{PDBG+1}] sc1")

    def stats_job(tag, younger):
        l = f"K1_SJ_{tag}"
        a("s_cmp_lt_u32 s3, 6")
        a(f"s_cbranch_scc1 {l}")
        a(f"s_waitcnt vmcnt({younger})")
        a("v_mov_b32 v19, 0"); a("v_mov_b32 v20, 0"); a("v_mov_b32 v21, 0"); a("v_mov_b32 v22, 0")
        for i in range(20):
            a(f"v_dot2c_f32_bf16 v{19 + (i & 1)}, v{208+i}, v18")
            a(f"v_dot2c_f32_bf16 v{21 + (i & 1)}, v{208+i}, v{208+i}")
        a("s_nop 2")
        a("v_add_f32 v19, v19, v20")
        a("v_add_f32 v20, v21, v22")
        for sh in (8, 4, 2, 1):
            a("s_nop 1")
            a(f"v_add_f32_dpp v19, v19, v19 row_ror:{sh} row_mask:0xf bank_mask:0xf")
            a(f"v_add_f32_dpp v20, v20, v20 row_ror:{sh} row_mask:0xf bank_mask:0xf")
        a(f"v_mul_f32 v19, {f32hex(1.0/640)}, v19")
        a(f"v_mul_f32 v20, {f32hex(1.0/640)}, v20")
        a("v_fma_f32 v20, -v19, v19, v20")
        a("v_max_f32 v20, 0, v20")
        a("v_cvt_pk_bf16_f32 v21, v19, v20")
        a("v_lshlrev_b32 v238, 16, v21")
        a("v_and_b32 v21, 0xffff0000, v21")
        a("v_add_f32 v21, 0x3727c5ac, v21")
        a("v_cvt_pk_bf16_f32 v21, v21, v21")
        a("v_and_b32 v21, 0xffff0000, v21")
        a("v_sqrt_f32 v21, v21")
        a("s_nop 0")
        a("v_cvt_pk_bf16_f32 v21, v21, v21")
        a("v_and_b32 v21, 0xffff0000, v21")
        a("v_rcp_f32 v239, v21")
        a.label(l)

    def stats_publish(tag):
        l = f"K1_SP_{tag}"
        a("s_cmp_lt_u32 s3, 6")
        a(f"s_cbranch_scc1 {l}")
        a("s_cmp_eq_u32 s77, 1")
        a(f"s_cbranch_scc0 {l}")
        ensure_nonce(tag + "P")
        a("v_mov_b32 v240, v238")
        a("v_mov_b32 v241, v239")
        a(f"v_mov_b32 v242, v{VN}")
        a(f"v_not_b32 v243, v{VN}")
        a("v_lshlrev_b32 v3, 4, v28")
        a("v_and_b32 v4, 15, v2")
        a("v_cmp_eq_u32 vcc, 0, v4")
        a("s_and_saveexec_b64 s[10:11], vcc")
        a("buffer_store_dwordx4 v[240:243], v3, s[84:87], 0 offen sc1")
        a("s_mov_b64 exec, s[10:11]")
        a.label(l)

    a("s_cmp_ge_u32 s7, 11")
    a("s_cbranch_scc1 K1_SSM")

    a(f"s_mov_b32 s79, {FX0}")
    def dma_x(slotreg, step, base, end):
        a(f"s_add_u32 m0, s{slotreg}, s69")
        a("s_nop 0")
        a("buffer_load_dwordx4 v8, s[48:51], s74 offen lds")
        a("s_add_u32 m0, m0, 1024")
        a("s_nop 0")
        a("buffer_load_dwordx4 v9, s[48:51], s74 offen lds")
        adv_x(slotreg, step, base, end)
    def adv_x(slotreg, step, base, end):
        a("s_add_u32 s74, s74, 128")
        a("s_cmp_ge_u32 s74, 1280")
        a("s_cselect_b32 s74, 0, s74")
        a(f"s_add_u32 s{slotreg}, s{slotreg}, {step}")
        a(f"s_cmp_ge_u32 s{slotreg}, {end}")
        a(f"s_cselect_b32 s{slotreg}, {base}, s{slotreg}")
    fx = lambda: dma_x(79, XSLOT, FX0, FX0 + 3 * XSLOT)
    fx()
    if ENV("PSTAMP"): stamp(a, 20)
    mk_srd(a, 52, PWG, 640 * 3456)
    a("s_cmp_lt_u32 s3, 2")
    a(f"s_cselect_b32 s56, s{PWG}, s{PWU}")
    a(f"s_cselect_b32 s57, s{PWG+1}, s{PWU+1}")
    a(f"s_mov_b32 s58, {640*3456}")
    a(f"s_mov_b32 s59, {SRD3:#x}")
    mk_srd(a, 60, PWU, 640 * 3456)
    a("s_add_u32 s10, s3, 8")
    a("s_sub_u32 s11, s3, 2")
    a("s_cmp_lt_u32 s3, 2")
    a("s_cselect_b32 s10, s10, s11")
    a(f"s_mov_b32 s12, {GU}")
    a("s_cselect_b32 s11, 0, s12")
    a("s_lshl_b32 s12, s10, 10")
    a("s_add_u32 s71, s12, s11")
    a("s_lshl_b32 s70, s3, 10")
    a(f"s_add_u32 s72, s70, {GU + 6*1024}")
    def woff(dst, sidx):
        a(f"s_lshl_b32 s12, {sidx}, 6")
        a("v_add_u32 v3, s12, v2")
        vdiv(a, 4, 3, 20, 13)
        a("v_mul_u32_u24 v5, 20, v4")
        a("v_sub_u32 v5, v3, v5")
        a("v_mul_u32_u24 v4, 3456, v4")
        a(f"v_lshl_add_u32 v{dst}, v5, 4, v4")
    woff(10, "s3")
    woff(11, "s10")
    a("s_add_u32 s11, s3, 6")
    woff(12, "s11")
    a("s_mul_i32 s1, s7, 320")
    a(f"s_mul_i32 s73, s0, {64*3456}")
    a("s_add_u32 s73, s73, s1")
    a(f"s_add_u32 s1, s1, {640*3456}")
    a(f"s_mov_b32 s75, {FW0}")
    def adv_w():
        a(f"s_add_u32 s73, s73, {32*3456}")
        a(f"s_sub_u32 s12, s73, {640*3456}")
        a("s_cmp_ge_u32 s73, s1")
        a("s_cselect_b32 s73, s12, s73")
        a(f"s_add_u32 s75, s75, {WSLOT}")
        a(f"s_cmp_ge_u32 s75, {FW0 + 5*WSLOT}")
        a(f"s_cselect_b32 s75, {FW0}, s75")
    def dma_w():
        a("s_add_u32 m0, s75, s70")
        a("s_nop 0")
        a("buffer_load_dwordx4 v10, s[52:55], s73 offen lds")
        a("s_add_u32 m0, s75, s71")
        a("s_nop 0")
        a("buffer_load_dwordx4 v11, s[56:59], s73 offen lds")
        l = a.uid("K1F3")
        a("s_cmp_lt_u32 s3, 4")
        a(f"s_cbranch_scc0 {l}")
        a("s_add_u32 m0, s75, s72")
        a("s_nop 0")
        a("buffer_load_dwordx4 v12, s[60:63], s73 offen lds")
        a.label(l)
        adv_w()
    dma_w()
    a("s_barrier")
    if ENV("PSTAMP"): stamp(a, 21)
    dma_w()
    if ENV("PSTAMP"): stamp(a, 22)
    a("v_and_b32 v3, 31, v2")
    a("s_lshl_b32 s10, s4, 5")
    a("v_add_u32 v4, s10, v3")
    a("v_lshlrev_b32 v13, 7, v4")
    a("v_bfe_u32 v5, v2, 1, 3")
    a("v_lshrrev_b32 v4, 5, v2")
    a("v_xor_b32 v4, v4, v5")
    a("v_lshl_add_u32 v13, v4, 4, v13")
    a("v_lshrrev_b32 v3, 5, v2")
    a("v_lshlrev_b32 v3, 3, v3")
    a("v_bfe_u32 v4, v2, 2, 2")
    a("v_add_u32 v3, v3, v4")
    a("v_mul_u32_u24 v14, 320, v3")
    a("v_and_b32 v4, 3, v2")
    a("v_lshl_add_u32 v14, v4, 3, v14")
    a("v_bfe_u32 v4, v2, 4, 1")
    a(f"v_mul_u32_u24 v4, {GU}, v4")
    a("v_add_u32 v14, v14, v4")
    a("s_mul_i32 s10, s5, 160")
    a("v_add_u32 v14, s10, v14")
    for i in range(80):
        a(f"v_mov_b32 v{128+i}, 0")
    a("s_cmp_eq_u32 s4, s5")
    a("s_cselect_b32 s68, 1, 0")
    a("s_cmp_lt_u32 s6, 10")
    a("s_cselect_b32 s68, s68, 0")
    if ENV("PSTAMP"): stamp(a, 23)
    stats_job("F", 6)
    if ENV("PSTAMP"): stamp(a, 24)
    for i in range(21, 26):
        a(f"v_mov_b32 v{i}, 0")
    a("s_cmp_lt_u32 s3, 4")
    a("s_cbranch_scc1 K1F_P1")
    a(f"s_waitcnt vmcnt(2)")
    a.label("K1F_P1")
    a(f"s_waitcnt vmcnt(3)")
    if ENV("PSTAMP"): stamp(a, 25)
    a("s_barrier")
    stamp(a, 1)
    SETS = (32, 80)
    def reads_ffn(setb):
        out = [f"ds_read_b128 v[{setb}:{setb+3}], v15", f"ds_read_b128 v[{setb+4}:{setb+7}], v16"]
        for ks in range(2):
            for j in range(5):
                b = setb + 8 + (ks * 5 + j) * 4
                off = ks * 5120 + j * 32
                out.append(f"ds_read_b64_tr_b16 v[{b}:{b+1}], v17 offset:{off}")
                out.append(f"ds_read_b64_tr_b16 v[{b+2}:{b+3}], v17 offset:{off+1280}")
        return out
    def rd_addr(uprime):
        a("v_add_u32 v15, s78, v13")
        if uprime: a("v_xor_b32 v15, 64, v15")
        a("v_xor_b32 v16, 32, v15")
        a("v_add_u32 v17, s76, v14")
        a(f"s_add_u32 s76, s76, {WSLOT}")
        a(f"s_cmp_ge_u32 s76, {FW0 + 5*WSLOT}")
        a(f"s_cselect_b32 s76, {FW0}, s76")
        if uprime:
            a(f"s_add_u32 s78, s78, {XSLOT}")
            a(f"s_cmp_ge_u32 s78, {FX0 + 3*XSLOT}")
            a(f"s_cselect_b32 s78, {FX0}, s78")
    a(f"s_mov_b32 s76, {FW0}")
    a(f"s_mov_b32 s78, {FX0}")
    rd_addr(0)
    for r in reads_ffn(SETS[0]): a(r)
    nonce_load()
    dma_w(); fx()
    mk_srd(a, 80, PWS, CS_SZ, CS_OFF)
    mk_srd(a, 84, PWS, ST_SZ, ST_OFF)
    a("v_lshlrev_b32 v29, 3, v0")
    a("v_cmp_gt_u32 vcc, 320, v0")
    a("v_mov_b32 v3, 0x7ffffff0")
    a("s_mul_i32 s88, s7, 25600")
    a("v_cndmask_b32 v29, v3, v29, vcc")
    a("s_lshl_b32 s10, s6, 7")
    a("s_lshl_b32 s11, s4, 5")
    a("s_add_u32 s10, s10, s11")
    a("v_and_b32 v3, 31, v2")
    a("v_add_u32 v3, s10, v3")
    a("v_lshlrev_b32 v30, 4, v3")
    def epi_loads():
        for kk in range(10):
            a(f"s_add_u32 s12, s88, {kk*2560}")
            a(f"buffer_load_dwordx2 v[{208+2*kk}:{209+2*kk}], v29, s[80:83], s12 offen sc1")
        a("buffer_load_dwordx4 v[228:231], v30, s[84:87], 0 offen sc1")
    NE = 11
    if STAMP:
        a("s_memtime s[92:93]"); a("s_waitcnt lgkmcnt(0)"); a("v_writelane_b32 v255, s92, 6")
    def ffn_stage(var, u, vm, wd, xd, first=False, epi=False, reads=True, tag=""):
        nW = 3 if var == "A" else 2
        cur, nxt = SETS[u], SETS[1 - u]
        if vm is None: a("s_waitcnt lgkmcnt(0)")
        else: a(f"s_waitcnt vmcnt({vm}) lgkmcnt(0)")
        a("s_barrier")
        rd = reads_ffn(nxt) if reads else []
        if ENV("NORD"): rd = []
        mf = []
        for ks in range(2):
            for j in range(5):
                w = cur + 8 + (ks * 5 + j) * 4
                x = cur + 4 * ks
                ac = 128 + 16 * j
                mf.append(f"v_mfma_f32_32x32x16_bf16 v[{ac}:{ac+15}], v[{w}:{w+3}], v[{x}:{x+3}], v[{ac}:{ac+15}]")
        pieces = []
        if wd and not ENV("NODMA"):
            pieces += [("s75", "s70", None, 10, 52, "s73"), ("s75", "s71", None, 11, 56, "s73")]
            if var == "A": pieces.append(("s75", "s72", None, 12, 60, "s73"))
        if xd and not ENV("NODMA"):
            pieces += [("s79", "s69", None, 8, 48, "s74"), ("s79", "s69", 1024, 9, 48, "s74")]
        slots = [1, 3, 5, 6, 7][:len(pieces)]
        ri = 0
        for mi, m in enumerate(mf):
            a(m)
            if mi == 0:
                if reads: rd_addr(1 - u)
            elif mi < 8:
                for _ in range(4):
                    if ri < len(rd): a(rd[ri]); ri += 1
            if mi in slots:
                (b0, b1, add, voff, srd, soff) = pieces[slots.index(mi)]
                a(f"s_add_u32 m0, {b0}, {b1}")
                if add: a(f"s_add_u32 m0, m0, {add}")
                a("s_nop 0")
                a(f"buffer_load_dwordx4 v{voff}, s[{srd}:{srd+3}], {soff} offen lds")
            if mi == 8:
                if wd: adv_w()
                if xd: adv_x(79, XSLOT, FX0, FX0 + 3 * XSLOT)
                if epi: epi_loads()
                if first:
                    lc = a.uid("K1C")
                    a("s_cmp_eq_u32 s68, 0")
                    a(f"s_cbranch_scc1 {lc}")
                    for ks in range(2):
                        for i in range(4):
                            for j in range(5):
                                w = cur + 8 + (ks * 5 + j) * 4
                                a(f"v_dot2c_f32_bf16 v{21+j}, v{w+i}, v18")
                    if u == 1:
                        for j in range(5): a(f"v_mov_b32 v{208+2*j}, v{21+j}")
                        a("s_nop 1")
                        for j in range(5): a(f"v_permlane32_swap_b32 v{21+j}, v{208+2*j}")
                        for j in range(5): a(f"v_add_f32 v{208+2*j}, v{21+j}, v{208+2*j}")
                        ensure_nonce("FC" + tag)
                        for j in range(5): a(f"v_mov_b32 v{209+2*j}, v{VN}")
                        a("v_and_b32 v3, 31, v2")
                        a("s_mul_i32 s10, s5, 160")
                        a("v_add_u32 v3, s10, v3")
                        a("v_lshlrev_b32 v3, 3, v3")
                        a("s_mul_i32 s10, s0, 2560")
                        a("s_add_u32 s10, s10, s88")
                        a("s_mov_b32 exec_hi, 0")
                        for j in range(5):
                            a(f"buffer_store_dwordx2 v[{208+2*j}:{209+2*j}], v3, s[80:83], s10 offen offset:{256*j} sc1")
                        a("s_mov_b32 exec_hi, -1")
                    a.label(lc)
                    if u == 1:
                        a("s_mov_b32 s77, 1")
                        stats_publish("F" + tag)
    a("s_cmp_ge_u32 s3, 4")
    a("s_cbranch_scc1 K1F_B")
    for var in ("A", "B"):
        nW = 3 if var == "A" else 2
        if var == "B": a.label("K1F_B")
        ffn_stage(var, 0, nW + 3, True, False, first=True, tag=var)
        ffn_stage(var, 1, nW, True, True, first=True, tag=var)
        a("s_mov_b32 s77, 7")
        a.label(f"K1F_LOOP_{var}")
        ffn_stage(var, 0, nW + 2, True, False)
        ffn_stage(var, 1, nW, True, True)
        if STAMP and ENV("ITSTAMP"):
            a("s_memrealtime s[92:93]")
            a("s_sub_u32 s94, 7, s77")
            a("s_add_u32 m0, s94, 9")
            a("s_waitcnt lgkmcnt(0)")
            a("s_nop 3")
            a("v_writelane_b32 v255, s92, m0")
        a("s_sub_u32 s77, s77, 1")
        a("s_cmp_lg_u32 s77, 0")
        a(f"s_cbranch_scc1 K1F_LOOP_{var}")
        ffn_stage(var, 0, nW + 2, True, False)
        ffn_stage(var, 1, nW, False, False, epi=True)
        ffn_stage(var, 0, NE, False, False)
        ffn_stage(var, 1, None, False, False, reads=False)
        if var == "A": a("s_branch K1F_EPI")
    a.label("K1F_EPI")
    if STAMP:
        a("s_memtime s[92:93]"); a("s_waitcnt lgkmcnt(0)"); a("v_writelane_b32 v255, s92, 7")
    stamp(a, 2)
    ensure_nonce("FE")
    a.label("K1F_CHK")
    a("s_waitcnt vmcnt(0) lgkmcnt(0)")
    a(f"v_not_b32 v3, v{VN}")
    a(f"v_cmp_eq_u32 s[10:11], v230, v{VN}")
    a("v_cmp_eq_u32 vcc, v231, v3")
    a("s_and_b64 s[10:11], s[10:11], vcc")
    a("v_mov_b32 v4, 0x7ffffff0")
    a("v_cmp_eq_u32 s[12:13], v4, v29")
    a("s_mov_b64 s[14:15], -1")
    for kk in range(10):
        a(f"v_cmp_eq_u32 vcc, v{209+2*kk}, v{VN}")
        a("s_and_b64 s[14:15], s[14:15], vcc")
    a("s_or_b64 s[14:15], s[14:15], s[12:13]")
    a("s_and_b64 s[10:11], s[10:11], s[14:15]")
    a("s_cmp_eq_u64 s[10:11], -1")
    a("s_cbranch_scc1 K1F_OK")
    a("s_sleep 1")
    epi_loads()
    a("s_branch K1F_CHK")
    a.label("K1F_OK")
    side_jobs_issue()
    for kk in range(1, 10):
        a(f"v_add_f32 v208, v208, v{208+2*kk}")
    a("v_lshlrev_b32 v4, 2, v0")
    a("s_barrier")
    a("v_cmp_gt_u32 vcc, 320, v0")
    a("s_and_saveexec_b64 s[10:11], vcc")
    a("ds_write_b32 v4, v208 offset:8192")
    a("s_mov_b64 exec, s[10:11]")
    a("v_mov_b32 v19, v228")
    a("v_mov_b32 v20, v229")
    a("s_waitcnt lgkmcnt(0)")
    a("s_barrier")
    a("s_and_b32 s10, s4, 1")
    a("s_lshl_b32 s10, s10, 11")
    a("v_bfe_u32 v3, v2, 4, 1")
    a("v_lshlrev_b32 v3, 10, v3")
    a("v_and_b32 v4, 15, v2")
    a("v_lshl_add_u32 v3, v4, 4, v3")
    a("v_lshrrev_b32 v4, 5, v2")
    a("v_lshl_add_u32 v3, v4, 8, v3")
    a("v_add_u32 v3, s10, v3")
    a("s_lshl_b32 s10, s6, 1")
    a("s_lshr_b32 s11, s4, 1")
    a("s_add_u32 s10, s10, s11")
    a("s_mul_i32 s10, s10, 94")
    a("s_add_u32 s10, s10, 40")
    a("s_mul_i32 s11, s7, 10")
    a("s_mul_i32 s12, s5, 5")
    a("s_add_u32 s11, s11, s12")
    C1 = -2.0 * LOG2E * 0.7978845608028654
    C2 = C1 * 0.044715
    a(f"s_mov_b32 s15, {f32hex(C2)}")
    a(f"v_mov_b32 v40, {f32hex(C1)}")
    a("v_lshrrev_b32 v4, 5, v2")
    a("v_lshlrev_b32 v4, 4, v4")
    a("s_mul_i32 s12, s5, 640")
    a("v_add_u32 v4, s12, v4")
    for j in range(5):
        for q in range(4):
            a(f"ds_read_b128 v[{48+16*j+4*q}:{51+16*j+4*q}], v4 offset:{8192 + 128*j + 32*q}")
    for j in range(5):
        ac = 128 + 16 * j
        cs = 48 + 16 * j
        l = a.uid("K1FS")
        a(f"s_waitcnt lgkmcnt({min(15, 4*(4-j))})")
        a(f"s_add_u32 s12, s11, {j}")
        a("s_cmp_ge_u32 s12, 108")
        a(f"s_cbranch_scc1 {l}")
        for r in range(16):
            a(f"v_fma_f32 v{ac+r}, -v19, v{cs+r}, v{ac+r}")
        for r in range(8):
            g, u_ = ac + r, ac + 8 + r
            t = 32 + r
            a(f"v_mul_f32 v{g}, v{g}, v20")
            a(f"v_mul_f32 v{t}, v{g}, v{g}")
            a(f"v_fma_f32 v{t}, v{t}, s15, v40")
            a(f"v_mul_f32 v{t}, v{t}, v{g}")
            a(f"v_exp_f32 v{t}, v{t}")
            a(f"v_mul_f32 v{u_}, v{g}, v{u_}")
            a(f"v_add_f32 v{t}, 1.0, v{t}")
            a(f"v_rcp_f32 v{t}, v{t}")
            a(f"v_mul_f32 v{u_}, v{u_}, v20")
            a(f"v_mul_f32 v{u_}, v{u_}, v{t}")
        for r in range(4):
            a(f"v_cvt_pk_bf16_f32 v{44+r}, v{ac+8+2*r}, v{ac+9+2*r}")
        a("s_lshr_b32 s13, s12, 1")
        a("s_add_u32 s13, s13, s10")
        a("s_lshl_b32 s13, s13, 12")
        a("s_and_b32 s12, s12, 1")
        a("s_lshl_b32 s12, s12, 9")
        a("s_add_u32 s13, s13, s12")
        a("buffer_store_dwordx4 v[44:47], v3, s[64:67], s13 offen")
        a("s_nop 1")
        a.label(l)
        if j == 2:
            side_jobs_finish("F", 3, vbase=48)

    if STAMP: a("s_waitcnt vmcnt(0)")
    stamp(a, 3); stamp_flush(a, 0)
    a("s_endpgm")

    PR = lambda g, k: 208 + 8 * g + k
    def ssm_params():
        for g in range(2):
            lre, lim, ldt = 232 + 3 * g, 233 + 3 * g, 234 + 3 * g
            ar_, ai_, cr_, ci_, qr, qi, hr, hi = [PR(g, k) for k in range(8)]
            a(f"v_lshlrev_b32 v{lre}, 16, v{lre}")
            a(f"v_lshlrev_b32 v{lim}, 16, v{lim}")
            a(f"v_lshlrev_b32 v{ldt}, 16, v{ldt}")
            a(f"v_mul_f32 v240, {f32hex(LOG2E)}, v{ldt}")
            a("v_exp_f32 v240, v240")
            a("s_nop 0")
            a("v_cvt_pk_bf16_f32 v240, v240, v240")
            a("v_lshlrev_b32 v240, 16, v240")
            a(f"v_mul_f32 v241, v240, v{lre}")
            a(f"v_mul_f32 v242, v240, v{lim}")
            a(f"v_mul_f32 v241, {f32hex(LOG2E)}, v241")
            a("v_exp_f32 v241, v241")
            a(f"v_mul_f32 v242, {f32hex(0.15915494309189535)}, v242")
            a("v_fract_f32 v242, v242")
            a("v_cos_f32 v243, v242")
            a("v_sin_f32 v244, v242")
            a("s_nop 0")
            a(f"v_mul_f32 v{ar_}, v241, v243")
            a(f"v_mul_f32 v{ai_}, v241, v244")
            a(f"v_add_f32 v243, -1.0, v{ar_}")
            a(f"v_mul_f32 v244, v{lre}, v{lre}")
            a(f"v_fmac_f32 v244, v{lim}, v{lim}")
            a("v_rcp_f32 v244, v244")
            a(f"v_mul_f32 v245, v243, v{lre}")
            a(f"v_fmac_f32 v245, v{ai_}, v{lim}")
            a(f"v_mul_f32 v246, v{ai_}, v{lre}")
            a(f"v_fma_f32 v246, -v243, v{lim}, v246")
            a("v_add_f32 v244, v244, v244")
            a(f"v_mul_f32 v{cr_}, v245, v244")
            a(f"v_mul_f32 v{ci_}, v246, v244")
            def sq(dr, di, sr_, si):
                a(f"v_mul_f32 v240, v{si}, v{si}")
                a(f"v_mul_f32 v241, v{sr_}, v{si}")
                a(f"v_fma_f32 v{dr}, v{sr_}, v{sr_}, -v240")
                a(f"v_add_f32 v{di}, v241, v241")
            sq(qr, qi, ar_, ai_)
            for _ in range(3): sq(qr, qi, qr, qi)
            sq(hr, hi, qr, qi)
            for _ in range(2): sq(hr, hi, hr, hi)

    a.label("K1_SSM")
    a("s_sub_u32 s7, s7, 11")
    mk_srd(a, 52, PBRE, 640 * 1280)
    mk_srd(a, 56, PBIM, 640 * 1280)
    a("s_lshl_b32 s10, s7, 7")
    a("s_lshl_b32 s11, s3, 4")
    a("s_add_u32 s10, s10, s11")
    a("v_lshrrev_b32 v3, 3, v2")
    a("v_add_u32 v4, s10, v3")
    a("v_mul_u32_u24 v10, 1280, v4")
    a(f"v_add_u32 v11, {8*1280}, v10")
    a("v_lshl_add_u32 v10, v26, 4, v10")
    a("v_lshl_add_u32 v11, v27, 4, v11")
    a("s_mov_b32 s73, s74")
    a("s_mov_b32 s75, 0")
    a("s_mov_b32 s79, 0")
    def adv(slot, soff):
        a(f"s_add_u32 s{soff}, s{soff}, 128")
        a(f"s_cmp_ge_u32 s{soff}, 1280")
        a(f"s_cselect_b32 s{soff}, 0, s{soff}")
        a(f"s_add_u32 s{slot}, s{slot}, {SSLOT}")
        a(f"s_cmp_ge_u32 s{slot}, {3*SSLOT}")
        a(f"s_cselect_b32 s{slot}, 0, s{slot}")
    def dma1(slot, off, v, srd, soff):
        a(f"s_add_u32 s10, s{slot}, s69")
        a(f"s_add_u32 m0, s10, {off}")
        a("s_nop 0")
        a(f"buffer_load_dwordx4 v{v}, s[{srd}:{srd+3}], s{soff} offen lds")
    HA = [(75, 0, 8, 48, 74), (75, 1024, 9, 48, 74), (75, 16384, 10, 52, 74)]
    HB = [(79, 16384 + 1024, 11, 52, 73), (79, 32768, 10, 56, 73), (79, 32768 + 1024, 11, 56, 73)]
    def half_a():
        for p in HA: dma1(*p)
        adv(75, 74)
    def half_b():
        for p in HB: dma1(*p)
        adv(79, 73)
    mk_srd(a, 80, PLRE, 1280)
    mk_srd(a, 84, PLIM, 1280)
    mk_srd(a, 88, PLDT, 1280)
    a("s_lshl_b32 s10, s7, 7")
    a("s_lshl_b32 s11, s5, 6")
    a("s_add_u32 s68, s10, s11")
    a("v_and_b32 v3, 31, v2")
    a("v_add_u32 v3, s68, v3")
    a("v_lshlrev_b32 v7, 1, v3")
    for g in range(2):
        a(f"buffer_load_ushort v{232+3*g}, v7, s[80:83], 0 offen offset:{64*g}")
        a(f"buffer_load_ushort v{233+3*g}, v7, s[84:87], 0 offen offset:{64*g}")
        a(f"buffer_load_ushort v{234+3*g}, v7, s[88:91], 0 offen offset:{64*g}")
    half_a(); half_b()
    a("s_barrier")
    half_a()
    a("v_bfe_u32 v3, v2, 2, 1")
    a("v_lshlrev_b32 v3, 4, v3")
    a("v_and_b32 v4, 3, v2")
    a("v_add_u32 v3, v3, v4")
    a("v_bfe_u32 v4, v2, 3, 2")
    a("v_lshl_add_u32 v3, v4, 2, v3")
    a("v_bfe_u32 v5, v3, 1, 3")
    a("s_lshl_b32 s10, s4, 5")
    a("v_add_u32 v3, s10, v3")
    a("v_lshlrev_b32 v13, 7, v3")
    a("v_lshrrev_b32 v4, 5, v2")
    a("v_xor_b32 v5, v4, v5")
    a("v_lshl_add_u32 v13, v5, 4, v13")
    a("v_and_b32 v3, 31, v2")
    a("s_lshl_b32 s10, s5, 6")
    a("v_add_u32 v3, s10, v3")
    a("v_lshlrev_b32 v14, 7, v3")
    a("v_bfe_u32 v5, v2, 1, 3")
    a("v_xor_b32 v5, v4, v5")
    a("v_lshl_add_u32 v14, v5, 4, v14")
    a("v_add_u32 v14, 16384, v14")
    for i in range(64):
        a(f"v_mov_b32 v{128+i}, 0")
    a("s_cmp_eq_u32 s4, s5")
    a("s_cselect_b32 s1, 1, 0")
    a("s_cmp_lt_u32 s6, 10")
    a("s_cselect_b32 s1, s1, 0")
    stats_job("S", 15)
    for i in (22, 23, 24, 25):
        a(f"v_mov_b32 v{i}, 0")
    a("s_waitcnt vmcnt(9)")
    ssm_params()
    a("s_waitcnt vmcnt(3)")
    a("s_barrier")
    stamp(a, 1)
    SETS = (32, 80)
    def reads_ssm(setb):
        out = []
        for ks in range(2):
            b = setb + ks * 20
            out.append(f"ds_read_b128 v[{b}:{b+3}], v{15+ks}")
            for g in range(2):
                for part in range(2):
                    w = b + 4 + (g * 2 + part) * 4
                    out.append(f"ds_read_b128 v[{w}:{w+3}], v{(17, 21)[ks]} offset:{g*4096 + part*16384}")
        return out
    def rd_addr_s(uprime):
        a("v_add_u32 v15, s76, v13")
        a("v_add_u32 v17, s76, v14")
        if uprime:
            a("v_xor_b32 v15, 64, v15")
            a("v_xor_b32 v17, 64, v17")
        a("v_xor_b32 v16, 32, v15")
        a("v_xor_b32 v21, 32, v17")
        if uprime:
            a(f"s_add_u32 s76, s76, {SSLOT}")
            a(f"s_cmp_ge_u32 s76, {3*SSLOT}")
            a("s_cselect_b32 s76, 0, s76")
    a("s_mov_b32 s76, 0")
    rd_addr_s(0)
    for r in reads_ssm(SETS[0]): a(r)
    nonce_load()
    half_b()
    mk_srd(a, 80, PWS, CS_SZ, CS_OFF)
    mk_srd(a, 84, PWS, ST_SZ, ST_OFF)
    a("v_lshlrev_b32 v29, 3, v0")
    a("v_cmp_gt_u32 vcc, 256, v0")
    a("v_mov_b32 v3, 0x7ffffff0")
    a("s_mul_i32 s88, s7, 20480")
    a(f"s_add_u32 s88, s88, {CSF_SZ}")
    a("v_cndmask_b32 v29, v3, v29, vcc")
    a("v_subrev_u32 v4, 256, v0")
    a("v_cmp_gt_u32 vcc, 128, v4")
    a("s_lshl_b32 s10, s6, 7")
    a("v_add_u32 v4, s10, v4")
    a("v_lshlrev_b32 v30, 4, v4")
    a("v_cndmask_b32 v30, v3, v30, vcc")
    def epi_loads_s():
        for kk in range(10):
            a(f"s_add_u32 s12, s88, {kk*2048}")
            a(f"buffer_load_dwordx2 v[{224+2*kk}:{225+2*kk}], v29, s[80:83], s12 offen sc1")
        a("buffer_load_dwordx4 v[120:123], v30, s[84:87], 0 offen sc1")
    def ssm_stage(u, vm, dma, first=False, epi=False, reads=True):
        cur, nxt = SETS[u], SETS[1 - u]
        if vm is None: a("s_waitcnt lgkmcnt(0)")
        else: a(f"s_waitcnt vmcnt({vm}) lgkmcnt(0)")
        a("s_barrier")
        rd = reads_ssm(nxt) if reads else []
        mf = []
        for ks in range(2):
            b = cur + ks * 20
            for g in range(2):
                for part in range(2):
                    w = b + 4 + (g * 2 + part) * 4
                    ac = 128 + 32 * g + 16 * part
                    mf.append(f"v_mfma_f32_32x32x16_bf16 v[{ac}:{ac+15}], v[{b}:{b+3}], v[{w}:{w+3}], v[{ac}:{ac+15}]")
        pcs = HA if u == 0 else HB
        ri = 0
        for mi, m in enumerate(mf):
            a(m)
            if mi == 0:
                if reads: rd_addr_s(1 - u)
            elif mi < 6:
                for _ in range(3):
                    if ri < len(rd): a(rd[ri]); ri += 1
            if dma and mi in (1, 3, 5):
                dma1(*pcs[(mi - 1) // 2])
            if mi == 6:
                if dma:
                    if u == 0: adv(75, 74)
                    else: adv(79, 73)
                if epi: epi_loads_s()
                if first:
                    lc = a.uid("K1C")
                    a("s_cmp_eq_u32 s1, 0")
                    a(f"s_cbranch_scc1 {lc}")
                    for ks in range(2):
                        for i in range(4):
                            for t in range(4):
                                w = cur + 20 * ks + 4 + 4 * t
                                a(f"v_dot2c_f32_bf16 v{22+t}, v{w+i}, v18")
                    if u == 1:
                        for t in range(4): a(f"v_mov_b32 v{224+2*t}, v{22+t}")
                        a("s_nop 1")
                        for t in range(4): a(f"v_permlane32_swap_b32 v{22+t}, v{224+2*t}")
                        for t in range(4): a(f"v_add_f32 v{224+2*t}, v{22+t}, v{224+2*t}")
                        ensure_nonce("SC")
                        for t in range(4): a(f"v_mov_b32 v{225+2*t}, v{VN}")
                        a("v_and_b32 v3, 31, v2")
                        a("s_lshl_b32 s10, s5, 7")
                        a("v_add_u32 v3, s10, v3")
                        a("v_lshlrev_b32 v3, 3, v3")
                        a("s_lshl_b32 s10, s0, 11")
                        a("s_add_u32 s10, s10, s88")
                        a("s_mov_b32 exec_hi, 0")
                        for t in range(4):
                            a(f"buffer_store_dwordx2 v[{224+2*t}:{225+2*t}], v3, s[80:83], s10 offen offset:{256*t} sc1")
                        a("s_mov_b32 exec_hi, -1")
                    a.label(lc)
                    if u == 1:
                        a("s_mov_b32 s77, 1")
                        stats_publish("S")
    ssm_stage(0, None, True, first=True)
    ssm_stage(1, 3, True, first=True)
    a("s_mov_b32 s77, 7")
    a.label("K1S_LOOP")
    ssm_stage(0, None, True)
    ssm_stage(1, 3, True)
    a("s_sub_u32 s77, s77, 1")
    a("s_cmp_lg_u32 s77, 0")
    a("s_cbranch_scc1 K1S_LOOP")
    ssm_stage(0, None, False)
    ssm_stage(1, 0, False, epi=True)
    ssm_stage(0, None, False)
    ssm_stage(1, None, False, reads=False)
    stamp(a, 2)
    ensure_nonce("SE")
    a.label("K1S_CHK")
    a("s_waitcnt vmcnt(0) lgkmcnt(0)")
    a(f"v_not_b32 v3, v{VN}")
    a(f"v_cmp_eq_u32 s[10:11], v122, v{VN}")
    a("v_cmp_eq_u32 vcc, v123, v3")
    a("s_and_b64 s[10:11], s[10:11], vcc")
    a("v_cmp_eq_u32 s[12:13], 0x7ffffff0, v30") if False else None
    a("v_mov_b32 v4, 0x7ffffff0")
    a("v_cmp_eq_u32 s[12:13], v4, v30")
    a("s_or_b64 s[10:11], s[10:11], s[12:13]")
    a("v_cmp_eq_u32 s[12:13], v4, v29")
    a("s_mov_b64 s[14:15], -1")
    for kk in range(10):
        a(f"v_cmp_eq_u32 vcc, v{225+2*kk}, v{VN}")
        a("s_and_b64 s[14:15], s[14:15], vcc")
    a("s_or_b64 s[14:15], s[14:15], s[12:13]")
    a("s_and_b64 s[10:11], s[10:11], s[14:15]")
    a("s_cmp_eq_u64 s[10:11], -1")
    a("s_cbranch_scc1 K1S_OK")
    a("s_sleep 1")
    epi_loads_s()
    a("s_branch K1S_CHK")
    a.label("K1S_OK")
    side_jobs_issue()
    for kk in range(1, 10):
        a(f"v_add_f32 v224, v224, v{224+2*kk}")
    a("v_mul_f32 v123, v120, v121")
    a("v_mov_b32 v122, v121")
    a("s_barrier")
    a("v_lshlrev_b32 v4, 2, v0")
    a("v_cmp_gt_u32 vcc, 256, v0")
    a("s_and_saveexec_b64 s[10:11], vcc")
    a("ds_write_b32 v4, v224")
    a("s_mov_b64 exec, s[10:11]")
    a("v_subrev_u32 v4, 256, v0")
    a("v_cmp_gt_u32 vcc, 128, v4")
    a("v_lshlrev_b32 v4, 3, v4")
    a("s_and_saveexec_b64 s[10:11], vcc")
    a("ds_write_b64 v4, v[122:123] offset:4096")
    a("s_mov_b64 exec, s[10:11]")
    a("s_waitcnt lgkmcnt(0)")
    a("s_barrier")
    a("v_and_b32 v3, 31, v2")
    a("s_lshl_b32 s10, s5, 7")
    a("v_add_u32 v3, s10, v3")
    a("v_lshlrev_b32 v3, 2, v3")
    for t in range(4):
        a(f"ds_read_b32 v{22+t}, v3 offset:{128*t}")
    a("v_lshrrev_b32 v4, 5, v2")
    a("v_lshlrev_b32 v3, 7, v4")
    a("s_lshl_b32 s10, s4, 8")
    a("v_add_u32 v3, s10, v3")
    for i in range(8):
        a(f"ds_read_b128 v[{32+4*i}:{35+4*i}], v3 offset:{4096 + 16*i}")
    a("s_waitcnt lgkmcnt(0)")
    for g in range(2):
        cr_, ci_ = PR(g, 2), PR(g, 3)
        a(f"v_mul_f32 v{240+2*g}, v{cr_}, v{22+2*g}")
        a(f"v_fma_f32 v{240+2*g}, -v{ci_}, v{23+2*g}, v{240+2*g}")
        a(f"v_mul_f32 v{241+2*g}, v{cr_}, v{23+2*g}")
        a(f"v_fma_f32 v{241+2*g}, v{ci_}, v{22+2*g}, v{241+2*g}")
    RE = lambda g, r: 128 + 32 * g + r
    IM = lambda g, r: 128 + 32 * g + 16 + r
    for r in range(16):
        for g in range(2):
            cr_, ci_ = PR(g, 2), PR(g, 3)
            re, im = RE(g, r), IM(g, r)
            t = 244 + 0 * g if False else 64 + 2 * g
            a(f"v_mul_f32 v{t}, v{cr_}, v{re}")
            a(f"v_mul_f32 v{t+1}, v{cr_}, v{im}")
            a(f"v_fma_f32 v{t}, -v{ci_}, v{im}, v{t}")
            a(f"v_fma_f32 v{t+1}, v{ci_}, v{re}, v{t+1}")
            a(f"v_mul_f32 v{t}, v{t}, v{32+2*r}")
            a(f"v_mul_f32 v{t+1}, v{t+1}, v{32+2*r}")
            a(f"v_fma_f32 v{re}, -v{33+2*r}, v{240+2*g}, v{t}")
            a(f"v_fma_f32 v{im}, -v{33+2*r}, v{241+2*g}, v{t+1}")
        for g in range(2):
            if r == 0: continue
            sr_, si = (RE(g, 0), IM(g, 0)) if r == 1 else (224 + 4 * ((r - 1) & 1) + 2 * g, 225 + 4 * ((r - 1) & 1) + 2 * g)
            dr, di = 224 + 4 * (r & 1) + 2 * g, 225 + 4 * (r & 1) + 2 * g
            mr, mi = PR(g, 0), PR(g, 1)
            a(f"v_fma_f32 v{dr}, v{mr}, v{sr_}, v{RE(g, r)}")
            a(f"v_fma_f32 v{di}, v{mr}, v{si}, v{IM(g, r)}")
            a(f"v_fma_f32 v{dr}, -v{mi}, v{si}, v{dr}")
            a(f"v_fma_f32 v{di}, v{mi}, v{sr_}, v{di}")
    EO = lambda g: 224 + 4 + 2 * g
    a("v_lshrrev_b32 v4, 5, v2")
    a("s_lshl_b32 s10, s4, 1")
    a("v_add_u32 v21, s10, v4")
    a("v_and_b32 v3, 31, v2")
    a("s_lshl_b32 s10, s5, 6")
    a("v_add_u32 v3, s10, v3")
    a("v_lshlrev_b32 v22, 3, v3")
    a("v_lshl_add_u32 v23, v21, 10, v22")
    for g in range(2):
        a(f"ds_write_b64 v23, v[{EO(g)}:{EO(g)+1}] offset:{8192 + 256*g}")
    a("s_waitcnt lgkmcnt(0)")
    a("s_barrier")
    for g in range(2):
        for j in range(7):
            a(f"ds_read_b64 v[{32+16*g+2*j}:{33+16*g+2*j}], v22 offset:{8192 + 1024*j + 256*g}")
    for g in range(2):
        a(f"v_mov_b32 v{232+2*g}, 0")
        a(f"v_mov_b32 v{233+2*g}, 0")
        a(f"v_mov_b32 v{236+2*g}, 1.0")
        a(f"v_mov_b32 v{237+2*g}, 0")
    a("s_waitcnt lgkmcnt(0)")
    for j in range(7):
        if j % 2 == 0:
            a(f"s_cmp_lt_u32 s4, {j//2}")
            a("s_cbranch_scc1 K1S_HP_DONE")
            a(f"s_cmp_eq_u32 s4, {j//2}")
            a("s_cselect_b32 exec_lo, 0, -1")
        else:
            a(f"s_cmp_le_u32 s4, {j//2}")
            a("s_cbranch_scc1 K1S_HP_DONE")
        for g in range(2):
            qr, qi = PR(g, 4), PR(g, 5)
            Pr, Pi, wr, wi = 232 + 2 * g, 233 + 2 * g, 236 + 2 * g, 237 + 2 * g
            er, ei = 32 + 16 * g + 2 * j, 33 + 16 * g + 2 * j
            a(f"v_fma_f32 v240, v{qr}, v{Pr}, v{er}")
            a(f"v_fma_f32 v241, v{qr}, v{Pi}, v{ei}")
            a(f"v_fma_f32 v240, -v{qi}, v{Pi}, v240")
            a(f"v_fma_f32 v{Pi}, v{qi}, v{Pr}, v241")
            a(f"v_mov_b32 v{Pr}, v240")
            a(f"v_mul_f32 v242, v{qr}, v{wr}")
            a(f"v_mul_f32 v243, v{qr}, v{wi}")
            a(f"v_fma_f32 v242, -v{qi}, v{wi}, v242")
            a(f"v_fma_f32 v{wi}, v{qi}, v{wr}, v243")
            a(f"v_mov_b32 v{wr}, v242")
    a.label("K1S_HP_DONE")
    a("s_mov_b64 exec, -1")
    mk_srd(a, 80, PWS, E_SZ, E_OFF)
    a("s_cmp_eq_u32 s4, 3")
    a("s_cbranch_scc0 K1S_NOPUB")
    for g in range(2):
        qr, qi = PR(g, 4), PR(g, 5)
        Pr, Pi = 232 + 2 * g, 233 + 2 * g
        er, ei = EO(g), EO(g) + 1
        d = 64 + 4 * g
        a(f"v_fma_f32 v{d}, v{qr}, v{Pr}, v{er}")
        a(f"v_fma_f32 v{d+1}, v{qr}, v{Pi}, v{ei}")
        a(f"v_fma_f32 v{d}, -v{qi}, v{Pi}, v{d}")
        a(f"v_fma_f32 v{d+1}, v{qi}, v{Pr}, v{d+1}")
        a(f"v_mov_b32 v{d+2}, v{VN}")
        a(f"v_not_b32 v{d+3}, v{VN}")
    a("v_lshlrev_b32 v24, 3, v7")
    a(f"s_mul_i32 s10, s6, {640*16}")
    a("s_mov_b32 exec_lo, 0")
    for g in range(2):
        a(f"buffer_store_dwordx4 v[{64+4*g}:{67+4*g}], v24, s[80:83], s10 offen offset:{512*g} sc1")
    a("s_mov_b64 exec, -1")
    a.label("K1S_NOPUB")
    stamp(a, 4)
    side_jobs_finish("S", 0, vbase=96)
    a("s_cmp_eq_u32 s4, 0")
    a("s_cbranch_scc0 K1S_NOPOLL")
    a("v_add_u32 v24, s68, v2")
    a("v_lshlrev_b32 v24, 4, v24")
    a("v_cmp_lt_u32 vcc, 31, v2")
    a("v_mov_b32 v244, 0")
    a("v_mov_b32 v245, 0")
    a(f"v_cndmask_b32 v246, v{PR(0,6)}, v{PR(1,6)}, vcc")
    a(f"v_cndmask_b32 v26, v{PR(0,7)}, v{PR(1,7)}, vcc")
    a(f"v_not_b32 v25, v{VN}")
    a("s_cmp_eq_u32 s6, 0")
    a("s_cbranch_scc1 K1S_HDONE")
    a("s_mov_b32 s14, 200000")
    a.label("K1S_POLL")
    for j in range(15):
        a(f"s_cmp_le_u32 s6, {j}")
        a("s_cbranch_scc1 K1S_LOADED")
        a(f"s_mov_b32 s10, {j*640*16}")
        a(f"buffer_load_dwordx4 v[{64+4*j}:{67+4*j}], v24, s[80:83], s10 offen sc1")
    a.label("K1S_LOADED")
    a("s_waitcnt vmcnt(0)")
    a("s_mov_b64 s[12:13], -1")
    for j in range(15):
        a(f"s_cmp_le_u32 s6, {j}")
        a("s_cbranch_scc1 K1S_CHK2")
        a(f"v_cmp_eq_u32 vcc, v{66+4*j}, v{VN}")
        a(f"v_cmp_eq_u32 s[10:11], v{67+4*j}, v25")
        a("s_and_b64 s[12:13], s[12:13], vcc")
        a("s_and_b64 s[12:13], s[12:13], s[10:11]")
    a.label("K1S_CHK2")
    a("s_cmp_eq_u64 s[12:13], -1")
    a("s_cbranch_scc1 K1S_VALID")
    a("s_sub_u32 s14, s14, 1")
    a("s_cmp_eq_u32 s14, 0")
    a("s_cbranch_scc1 K1S_VALID")
    a("s_sleep 1")
    a("s_branch K1S_POLL")
    a.label("K1S_VALID")
    for j in range(15):
        a(f"s_cmp_le_u32 s6, {j}")
        a("s_cbranch_scc1 K1S_HDONE")
        a(f"v_fma_f32 v240, v246, v244, v{64+4*j}")
        a(f"v_fma_f32 v241, v246, v245, v{65+4*j}")
        a(f"v_fma_f32 v240, -v26, v245, v240")
        a(f"v_fma_f32 v245, v26, v244, v241")
        a("v_mov_b32 v244, v240")
    a.label("K1S_HDONE")
    a("s_lshl_b32 s10, s5, 6")
    a("v_add_u32 v3, s10, v2")
    a("v_lshlrev_b32 v3, 3, v3")
    a("ds_write_b64 v3, v[244:245] offset:16384")
    a("s_waitcnt lgkmcnt(0)")
    a.label("K1S_NOPOLL")
    a("s_barrier")
    stamp(a, 5)
    for g in range(2):
        a(f"ds_read_b64 v[{240+2*g}:{241+2*g}], v22 offset:{16384 + 256*g}")
    a("s_waitcnt lgkmcnt(0)")
    for g in range(2):
        Pr, Pi, wr, wi, Hr, Hi = 232 + 2 * g, 233 + 2 * g, 236 + 2 * g, 237 + 2 * g, 240 + 2 * g, 241 + 2 * g
        a(f"v_fma_f32 v{Pr}, v{wr}, v{Hr}, v{Pr}")
        a(f"v_fma_f32 v{Pi}, v{wr}, v{Hi}, v{Pi}")
        a(f"v_fma_f32 v{Pr}, -v{wi}, v{Hi}, v{Pr}")
        a(f"v_fma_f32 v{Pi}, v{wi}, v{Hr}, v{Pi}")
    for r in range(16):
        for g in range(2):
            pr_, pi_ = (232 + 2 * g, 233 + 2 * g) if r == 0 else (RE(g, r - 1), IM(g, r - 1))
            mr, mi = PR(g, 0), PR(g, 1)
            re, im = RE(g, r), IM(g, r)
            a(f"v_fma_f32 v{re}, v{mr}, v{pr_}, v{re}")
            a(f"v_fma_f32 v{im}, v{mr}, v{pi_}, v{im}")
            a(f"v_fma_f32 v{re}, -v{mi}, v{pi_}, v{re}")
            a(f"v_fma_f32 v{im}, v{mi}, v{pr_}, v{im}")
    a("s_mul_i32 s10, s3, 10240")
    a("s_add_u32 s10, s10, 20480")
    a("v_and_b32 v3, 31, v2")
    a("v_mul_u32_u24 v3, 80, v3")
    a("v_lshrrev_b32 v4, 5, v2")
    a("v_lshl_add_u32 v3, v4, 5, v3")
    a("v_add_u32 v28, s10, v3")
    for g in range(2):
        for part in range(2):
            src = 128 + 32 * g + 16 * part
            neg = "-" if part else ""
            pk = 32 + 8 * (g * 2 + part)
            for i in range(8):
                a(f"v_cvt_pk_bf16_f32 v{pk+i}, {neg}v{src+2*i}, {neg}v{src+2*i+1}")
            off = (g * 2 + part) * 2560
            a(f"ds_write_b128 v28, v[{pk}:{pk+3}] offset:{off}")
            a(f"ds_write_b128 v28, v[{pk+4}:{pk+7}] offset:{off+16}")
    a("v_lshrrev_b32 v3, 4, v2")
    a("v_lshlrev_b32 v3, 3, v3")
    a("v_bfe_u32 v4, v2, 2, 2")
    a("v_add_u32 v3, v3, v4")
    a("v_mul_u32_u24 v3, 80, v3")
    a("v_and_b32 v4, 3, v2")
    a("v_lshl_add_u32 v3, v4, 3, v3")
    a("v_add_u32 v29, s10, v3")
    a("v_lshlrev_b32 v30, 4, v2")
    a("s_lshl_b32 s10, s6, 1")
    a("s_lshr_b32 s11, s4, 1")
    a("s_add_u32 s10, s10, s11")
    a("s_mul_i32 s10, s10, 94")
    a("s_lshr_b32 s11, s68, 4")
    a("s_add_u32 s10, s10, s11")
    a("s_lshl_b32 s10, s10, 12")
    a("s_and_b32 s11, s4, 1")
    a("s_lshl_b32 s11, s11, 11")
    a("s_add_u32 s10, s10, s11")
    a("s_waitcnt lgkmcnt(0)")
    for g in range(2):
        for part in range(2):
            off = (g * 2 + part) * 2560
            for i in range(2):
                b = 64 + ((g * 2 + part) * 2 + i) * 4
                a(f"ds_read_b64_tr_b16 v[{b}:{b+1}], v29 offset:{off + 32*i}")
                a(f"ds_read_b64_tr_b16 v[{b+2}:{b+3}], v29 offset:{off + 32*i + 320}")
    a("s_waitcnt lgkmcnt(0)")
    for g in range(2):
        for part in range(2):
            for i in range(2):
                b = 64 + ((g * 2 + part) * 2 + i) * 4
                a(f"s_add_u32 s11, s10, {(2*g + part)*4096 + i*1024}")
                a(f"buffer_store_dwordx4 v[{b}:{b+3}], v30, s[64:67], s11 offen")
    if STAMP: a("s_waitcnt vmcnt(0)")
    stamp(a, 3); stamp_flush(a, 0)
    a.label("K1_END")
    a("s_endpgm")

import gen2
def gen_k2(a):
    gen2.ST_SZ = ST_SZ
    a2 = Asm(); a2._uid = 100000
    gen2.gen_k2(a2)
    t = a2.text()
    t = t.replace("v_lshlrev_b32 v7, 3, v7", "v_lshlrev_b32 v7, 4, v7")
    a.raw(t.rstrip("\n"))

def build(path):
    a = Asm()
    a.raw(HDR.rstrip("\n"))
    a.raw(f"; @launch kernel=k1_kernel grid=(256,1,1) block=(512,1,1) lds={K1_LDS}")
    a.raw(f"; @launch kernel=k2_kernel grid=(256,1,1) block=(512,1,1) lds={gen2.K2_LDS}")
    a.raw('.amdgcn_target "amdgcn-amd-amdhsa--gfx950"')
    a.raw(".text")
    gen_k1(a); gen_k2(a)
    a.raw('.section .rodata,"a"')
    a.raw(descriptor("k1_kernel", 256, 102, 256))
    a.raw(descriptor("k2_kernel", 256, 96, 176))
    t = a.text()
    open(path, "w").write(t)
    lint(t)

if __name__ == "__main__":
    build(sys.argv[1] if len(sys.argv) > 1 else "v5.s")
```

```python
import os
from asmlib import *
from gen1 import (HDR, SRD3, P, PX, PLRE, PLIM, PBRE, PBIM, PCRE, PCIM, PLDT, PDSK, PBX, PWG, PWU, PWD, POUT, PDBG, PWS,
                  load_args, mk_srd, sdiv, vdiv, kernel_begin, descriptor, stamp, stamp_flush, STAMP)
ENV = os.environ.get
AF_OFF = 4 << 20
BF_OFF = 20 << 20
ST_OFF = 29 << 20
GO_OFF = 31 << 20
X_SZ = 2048 * 1280
AF_SZ = 32 * 94 * 4096
BF_SZ = 8 * 94 * 5120
ST_SZ = 2048 * 16
K2_TILE = 64 * 320
K2_LDS = 8 * K2_TILE

def gen_phase2(a, kidx=1):
    D = int(ENV("K2D", "4"))
    LDF = " sc1"
    PF = int(ENV("K2PF", "0"))
    a("s_and_b32 s4, s2, 7")
    a("s_lshr_b32 s5, s2, 3")
    KM = ENV("K2MAP", "8x4")
    if KM == "8x4":
        a("s_lshr_b32 s6, s4, 1")
        a("s_lshl_b32 s6, s6, 3")
        a("s_and_b32 s7, s5, 7")
        a("s_add_u32 s6, s6, s7")
        a("s_and_b32 s7, s4, 1")
        a("s_lshl_b32 s7, s7, 2")
        a("s_lshr_b32 s8, s5, 3")
        a("s_add_u32 s7, s7, s8")
    elif KM == "4x8":
        a("s_lshl_b32 s6, s4, 2")
        a("s_and_b32 s7, s5, 3")
        a("s_add_u32 s6, s6, s7")
        a("s_lshr_b32 s7, s5, 2")
    elif KM == "16x2":
        a("s_lshr_b32 s6, s4, 2")
        a("s_lshl_b32 s6, s6, 4")
        a("s_and_b32 s7, s5, 15")
        a("s_add_u32 s6, s6, s7")
        a("s_and_b32 s7, s4, 3")
        a("s_lshl_b32 s7, s7, 1")
        a("s_lshr_b32 s8, s5, 4")
        a("s_add_u32 s7, s7, s8")
    a("s_sub_u32 s9, s3, 4")
    a("s_mul_i32 s8, s9, 10")
    a("s_mov_b32 s12, 10")
    a("s_cmp_ge_u32 s3, 4")
    a("s_cbranch_scc1 K2_RNG")
    a("s_mul_i32 s8, s3, 14")
    a("s_add_u32 s8, s8, 40")
    a("s_mov_b32 s12, 14")
    a("s_cmp_lt_u32 s3, 2")
    a("s_cbranch_scc1 K2_RNG")
    a("s_mul_i32 s8, s3, 13")
    a("s_add_u32 s8, s8, 42")
    a("s_mov_b32 s12, 13")
    a.label("K2_RNG")
    a("v_lshlrev_b32 v3, 4, v2")
    a("v_add_u32 v4, 4096, v3")
    if STAMP: a("v_mov_b32 v31, 0")
    stamp(a, 4, vt=31)
    a("s_cmp_eq_u32 s3, 0")
    a("s_cbranch_scc0 P2_W1")
    a("s_lshl_b32 s15, s5, 7")
    a(f"s_add_u32 s15, s15, {GO_OFF}")
    a("v_mov_b32 v5, s15")
    a("s_mov_b32 s14, 300000")
    a("v_readfirstlane_b32 s73, v247")
    a.label("P2_POLL1")
    a(f"global_load_dword v8, v5, s[{PWS}:{PWS+1}] sc1")
    a("s_waitcnt vmcnt(0)")
    a("v_readfirstlane_b32 s15, v8")
    a("s_sub_u32 s14, s14, 1")
    a("s_cmp_eq_u32 s14, 0")
    a("s_cbranch_scc1 P2_W1")
    a("s_cmp_eq_u32 s15, s73")
    a("s_cbranch_scc1 P2_W1")
    a(f"s_sleep {int(ENV('SLP1', '4'))}")
    a("s_branch P2_POLL1")
    a.label("P2_W1")
    a("s_barrier")
    a("s_cmp_lt_u32 s3, 4")
    a("s_cbranch_scc1 P2_W2")
    a("s_lshr_b32 s15, s6, 1")
    a("s_lshl_b32 s15, s15, 7")
    a(f"s_add_u32 s15, s15, {GO_OFF + 4096}")
    a("v_mov_b32 v5, s15")
    a("s_mov_b32 s14, 300000")
    a("v_readfirstlane_b32 s73, v247")
    a.label("P2_POLL2")
    a(f"global_load_dword v8, v5, s[{PWS}:{PWS+1}] sc1")
    a("s_waitcnt vmcnt(0)")
    a("v_readfirstlane_b32 s15, v8")
    a("s_sub_u32 s14, s14, 1")
    a("s_cmp_eq_u32 s14, 0")
    a("s_cbranch_scc1 P2_W2")
    a("s_cmp_eq_u32 s15, s73")
    a("s_cbranch_scc1 P2_W2")
    a(f"s_sleep {int(ENV('SLP2', '8'))}")
    a("s_branch P2_POLL2")
    a.label("P2_W2")
    stamp(a, 0, vt=31)
    mk_srd(a, 48, PWS, AF_SZ, AF_OFF)
    mk_srd(a, 52, PWS, BF_SZ, BF_OFF)
    mk_srd(a, 76, PWS, BF_OFF + BF_SZ - AF_OFF, AF_OFF)
    a("s_mul_i32 s10, s6, 94")
    a("s_add_u32 s10, s10, s8")
    a("s_lshl_b32 s10, s10, 12")
    a("s_mul_i32 s11, s7, 94")
    a("s_add_u32 s11, s11, s8")
    a("s_mul_i32 s11, s11, 5120")
    NL = 9 + (1 if PF else 0)
    if ENV("K2TOUCH", "0") == "1":
        lt = a.uid("K2T")
        a("s_cmp_lt_u32 s3, 4")
        a(f"s_cbranch_scc1 {lt}")
        a("s_sub_u32 s14, s3, 4")
        a("s_lshl_b32 s14, s14, 6")
        a("v_add_u32 v5, s14, v2")
        a("s_lshr_b32 s15, s5, 3")
        a("s_lshl_b32 s15, s15, 10")
        a("s_mul_i32 s72, s6, 94*4096")
        a("s_add_u32 s72, s72, s15")
        a("s_and_b32 s15, s5, 7")
        a("s_mul_i32 s15, s15, 640")
        a("s_mul_i32 s73, s7, 94*5120")
        a("s_add_u32 s73, s73, s15")
        a(f"s_add_u32 s73, s73, {BF_OFF - AF_OFF - 8*128}")
        NT = int(ENV("K2NT", "5"))
        for i in range(NT):
            vdiv(a, 6, 5, 13, 15)
            a("v_mul_u32_u24 v7, 13, v6")
            a("v_sub_u32 v7, v5, v7")
            a("v_and_b32 v8, 3, v6")
            a("v_mul_u32_u24 v8, 10, v8")
            a("v_lshrrev_b32 v9, 2, v6")
            a("v_add_u32 v8, v8, v9")
            a("v_cmp_gt_u32 vcc, 40, v6")
            a("s_nop 1")
            a("v_cndmask_b32 v6, v6, v8, vcc")
            a("v_mul_u32_u24 v8, 4096, v6")
            a("v_add_u32 v8, s72, v8")
            a("v_mul_u32_u24 v9, 5120, v6")
            a("v_add_u32 v9, s73, v9")
            a("v_cmp_gt_u32 vcc, 8, v7")
            a("v_lshlrev_b32 v7, 7, v7")
            a("s_nop 0")
            a("v_cndmask_b32 v8, v9, v8, vcc")
            a("v_add_u32 v8, v8, v7")
            a("v_cmp_gt_u32 vcc, 94, v6")
            a("v_mov_b32 v9, 0x7ffffff0")
            a("s_nop 0")
            a("v_cndmask_b32 v8, v9, v8, vcc")
            a(f"buffer_load_dword v{10+i}, v8, s[76:79], 0 offen")
            a("v_add_u32 v5, 256, v5")
        a.label(lt)
    if PF:
        a("s_lshr_b32 s14, s5, 3")
        a("s_lshl_b32 s14, s14, 10")
        a(f"s_add_u32 s14, s14, {PF*4096}")
        a("s_add_u32 s14, s14, s10")
        a("s_and_b32 s15, s5, 7")
        a("s_mul_i32 s15, s15, 640")
        a(f"s_add_u32 s15, s15, {PF*5120 + BF_OFF - AF_OFF - 8*128}")
        a("s_add_u32 s15, s15, s11")
        a("v_lshlrev_b32 v5, 7, v2")
        a("v_cmp_gt_u32 vcc, 8, v2")
        a("v_mov_b32 v6, s15")
        a("v_mov_b32 v7, s14")
        a("v_cndmask_b32 v6, v6, v7, vcc")
        a("v_add_u32 v5, v5, v6")
        a("v_mov_b32 v6, 5120")
        a("v_mov_b32 v7, 4096")
        a("v_cndmask_b32 v6, v6, v7, vcc")
        a("v_cmp_gt_u32 vcc, 13, v2")
        a("v_mov_b32 v7, 0x7ffffff0")
        a("s_nop 0")
        a("v_cndmask_b32 v5, v7, v5, vcc")
        a("v_mov_b32 v7, 0")
        a("v_cndmask_b32 v6, v7, v6, vcc")
    SET0 = 32
    def setb(i): return SET0 + 36 * i
    def issue(i, pf=True):
        b = setb(i)
        for t in range(4):
            a(f"buffer_load_dwordx4 v[{b+4*t}:{b+4*t+3}], v3, s[48:51], s10 offen offset:{1024*t}" + LDF)
        for t in range(4):
            a(f"buffer_load_dwordx4 v[{b+16+4*t}:{b+16+4*t+3}], v3, s[52:55], s11 offen offset:{1024*t}" + LDF)
        a(f"buffer_load_dwordx4 v[{b+32}:{b+35}], v4, s[52:55], s11 offen" + LDF)
        a("s_add_u32 s10, s10, 4096")
        a("s_add_u32 s11, s11, 5120")
        if PF:
            a("buffer_load_dword v8, v5, s[76:79], 0 offen")
            a("v_add_u32 v5, v5, v6")
    if PF:
        pass
    IL = int(ENV("K2IL", "1"))
    def load_list(i):
        b = setb(i)
        out = []
        for t in range(4):
            out.append(f"buffer_load_dwordx4 v[{b+4*t}:{b+4*t+3}], v3, s[48:51], s10 offen offset:{1024*t}" + LDF)
        for t in range(4):
            out.append(f"buffer_load_dwordx4 v[{b+16+4*t}:{b+16+4*t+3}], v3, s[52:55], s11 offen offset:{1024*t}" + LDF)
        out.append(f"buffer_load_dwordx4 v[{b+32}:{b+35}], v4, s[52:55], s11 offen" + LDF)
        return out
    npro = D - 1 if IL else D
    for i in range(npro):
        issue(i)
    mk_srd(a, 56, PX, X_SZ)
    mk_srd(a, 60, PWS, ST_SZ, ST_OFF)
    mk_srd(a, 64, PDSK, 1280)
    mk_srd(a, 68, POUT, 2048 * 2560)
    for i in range(80):
        a(f"v_mov_b32 v{176+i}, 0")
    a(f"s_sub_u32 s13, s12, {npro}")
    a("s_mov_b32 s72, 8")
    a.label("K2_LOOP")
    for i in range(D):
        b = setb(i)
        l1 = a.uid("K2W"); l2 = a.uid("K2S")
        a("s_cmp_lg_u32 s13, 0")
        a(f"s_cbranch_scc1 {l1}")
        a("s_waitcnt vmcnt(0)")
        a.label(l1)
        a(f"s_waitcnt vmcnt({9*(npro-1)})")
        if STAMP and ENV("ITSTAMP"):
            a("s_memrealtime s[92:93]")
            a("s_mov_b32 m0, s72")
            a("s_add_u32 s72, s72, 1")
            a("s_waitcnt lgkmcnt(0)")
            a("v_writelane_b32 v31, s92, m0")
        mf = []
        for ti in range(4):
            for j in range(5):
                ac = (ti * 5 + j) * 4
                mf.append(f"v_mfma_f32_16x16x32_bf16 v[{176+ac}:{176+ac+3}], v[{b+16+4*j}:{b+16+4*j+3}], v[{b+4*ti}:{b+4*ti+3}], v[{176+ac}:{176+ac+3}]")
        if IL:
            l3 = a.uid("K2N")
            a("s_cmp_lg_u32 s13, 0")
            a(f"s_cbranch_scc0 {l2}")
            ld = load_list((i - 1) % D)
            for mi, m in enumerate(mf):
                a(m)
                if mi % 2 == 1 and ld: a(ld.pop(0))
            a("s_add_u32 s10, s10, 4096")
            a("s_add_u32 s11, s11, 5120")
            a("s_sub_u32 s13, s13, 1")
            a(f"s_branch {l3}")
            a.label(l2)
            for m in mf: a(m)
            a.label(l3)
        else:
            for m in mf: a(m)
            a("s_cmp_lg_u32 s13, 0")
            a(f"s_cbranch_scc0 {l2}")
            issue(i)
            a("s_sub_u32 s13, s13, 1")
            a.label(l2)
        a("s_sub_u32 s12, s12, 1")
        a("s_cmp_lg_u32 s12, 0")
        if i < D - 1: a("s_cbranch_scc0 K2_DONE")
        else: a("s_cbranch_scc1 K2_LOOP")
    a.label("K2_DONE")
    stamp(a, 1, vt=31)
    NCH = 3
    for i in range(NCH):
        a(f"v_add_u32 v6, {512*i}, v0")
        vdiv(a, 7, 6, 20, 14)
        a("v_mul_u32_u24 v8, 20, v7")
        a("v_sub_u32 v8, v6, v8")
        a("v_bfe_u32 v9, v7, 1, 2")
        a("v_xor_b32 v9, v9, v8")
        a(f"v_mul_u32_u24 v{16+i}, 320, v7")
        a(f"v_lshl_add_u32 v{16+i}, v9, 4, v{16+i}")
        a("s_lshl_b32 s15, s6, 6")
        a("v_add_u32 v7, s15, v7")
        a("s_mul_i32 s15, s7, 80")
        a("v_lshl_add_u32 v8, v8, 2, s15")
        a("v_mul_u32_u24 v9, 640, v7")
        a("v_add_u32 v9, v9, v8")
        a(f"v_lshlrev_b32 v{20+i}, 2, v9")
        a("v_lshlrev_b32 v9, 1, v9")
        a("v_lshlrev_b32 v8, 1, v8")
        a("v_lshlrev_b32 v7, 4, v7")
        a(f"buffer_load_dwordx2 v[{32+6*i}:{33+6*i}], v9, s[56:59], 0 offen")
        a(f"buffer_load_dwordx2 v[{34+6*i}:{35+6*i}], v7, s[60:63], 0 offen sc1")
        a(f"buffer_load_dwordx2 v[{36+6*i}:{37+6*i}], v8, s[64:67], 0 offen")
    a("v_and_b32 v5, 15, v2")
    a("v_bfe_u32 v7, v2, 1, 2")
    a("v_lshrrev_b32 v6, 4, v2")
    a("v_xor_b32 v6, v6, v7")
    a("v_mul_u32_u24 v5, 320, v5")
    a("v_lshl_add_u32 v5, v6, 4, v5")
    a(f"s_mul_i32 s14, s3, {K2_TILE}")
    a("v_add_u32 v5, s14, v5")
    a("s_nop 3")
    for ti in range(4):
        for j in range(5):
            ac = (ti * 5 + j) * 4
            a(f"ds_write_b128 v5, v[{176+ac}:{176+ac+3}] offset:{ti*16*320 + j*64}")
    a("s_waitcnt lgkmcnt(0)")
    a("s_barrier")
    stamp(a, 2, vt=31)
    for i in range(NCH):
        if i == NCH - 1:
            a("s_cmp_ge_u32 s3, 4")
            a("s_cbranch_scc1 K2_FIN")
        r = 64
        a(f"v_add_u32 v26, {3*K2_TILE}, v{16+i}")
        a(f"v_add_u32 v27, {6*K2_TILE}, v{16+i}")
        for w in range(8):
            base = (f"v{16+i}", "v26", "v27")[w // 3]
            a(f"ds_read_b128 v[{r+4*w}:{r+4*w+3}], {base} offset:{(w % 3)*K2_TILE}")
        a("s_waitcnt vmcnt(0) lgkmcnt(0)" if i == 0 else "s_waitcnt lgkmcnt(0)")
        for e in range(4):
            xw, dw = 32 + 6 * i + (e >> 1), 36 + 6 * i + (e >> 1)
            mreg, rreg = 34 + 6 * i, 35 + 6 * i
            y, f = r + 16 + e, r + e
            a(f"v_add_f32 v{f}, v{f}, v{r+4+e}")
            a(f"v_add_f32 v{r+8+e}, v{r+8+e}, v{r+12+e}")
            a(f"v_add_f32 v{y}, v{y}, v{r+20+e}")
            a(f"v_add_f32 v{r+24+e}, v{r+24+e}, v{r+28+e}")
            a(f"v_add_f32 v{f}, v{f}, v{r+8+e}")
            a(f"v_add_f32 v{y}, v{y}, v{r+24+e}")
            if e & 1:
                a(f"v_and_b32 v10, 0xffff0000, v{xw}")
                a(f"v_and_b32 v12, 0xffff0000, v{dw}")
            else:
                a(f"v_lshlrev_b32 v10, 16, v{xw}")
                a(f"v_lshlrev_b32 v12, 16, v{dw}")
            a(f"v_sub_f32 v11, v10, v{mreg}")
            a(f"v_mul_f32 v13, 0xbfb8aa3b, v{f}")
            a("v_exp_f32 v13, v13")
            a(f"v_mul_f32 v11, v11, v{rreg}")
            a("v_add_f32 v13, 1.0, v13")
            a("v_rcp_f32 v13, v13")
            a(f"v_fmac_f32 v{y}, v11, v12")
            a(f"v_mul_f32 v13, v13, v{f}")
            a(f"v_fma_f32 v{96+e}, v{y}, v13, v10")
        a(f"buffer_store_dwordx4 v[96:99], v{20+i}, s[68:71], 0 offen")
        a("s_nop 1")
    a.label("K2_FIN")
    if STAMP: a("s_waitcnt vmcnt(0)")
    stamp(a, 3, vt=31); stamp_flush(a, kidx, 31)
```

```python
import sys, os, struct
from asmlib import *
from gen1 import (HDR, SRD3, P, PX, PLRE, PLIM, PBRE, PBIM, PCRE, PCIM, PLDT, PDSK, PBX, PWG, PWU, PWD, POUT, PDBG, PWS,
                  load_args, mk_srd, sdiv, vdiv, kernel_begin, descriptor, stamp, stamp_flush, STAMP)
ENV = os.environ.get

AF_OFF = 4 << 20
BF_OFF = 20 << 20
E_OFF = 28 << 20
ST_OFF = 29 << 20
CS_OFF = 30 << 20
GO_OFF = 31 << 20
X_SZ = 2048 * 1280
AF_SZ = 32 * 94 * 4096
BF_SZ = 8 * 94 * 5120
E_SZ = 16 * 640 * 16
ST_SZ = 2048 * 16
CSF_SZ = 11 * 10 * 320 * 8
CSS_SZ = 5 * 10 * 256 * 8
CS_SZ = CSF_SZ + CSS_SZ
LOG2E = 1.4426950408889634
def f32hex(x): return "0x%08x" % struct.unpack("<I", struct.pack("<f", x))[0]

XSLOT = 16384
FX0 = 0
FW0 = 3 * XSLOT
GU = 10240 + 32
WSLOT = 20544
SSLOT = 49152
SPARE = FW0 + 5 * WSLOT
K1_LDS = 163840
NST = 20
KNAME = "recurrent_scan__ssm_conv_s5__geglu_ffn__prompt_kernel"
VN = 247

def vpk(a, op, dst, *srcs):
    ops, sel, selhi, neg = [], [], [], []
    for sx in srcs:
        k, r = sx[0], sx[1]
        n = 1 if (len(sx) > 2 and sx[2]) else 0
        if k == 'p': assert r % 2 == 0; ops.append(f"v[{r}:{r+1}]"); sel.append(0); selhi.append(1)
        elif k == 'b': e = r & ~1; ops.append(f"v[{e}:{e+1}]"); sel.append(r & 1); selhi.append(r & 1)
        elif k == 's': ops.append(f"s[{r}:{r+1}]"); sel.append(0); selhi.append(1)
        neg.append(n)
    assert dst % 2 == 0
    t = f"v_pk_{op}_f32 v[{dst}:{dst+1}], " + ", ".join(ops)
    f = lambda l: "[" + ",".join(map(str, l)) + "]"
    if any(sel): t += f" op_sel:{f(sel)}"
    if not all(selhi): t += f" op_sel_hi:{f(selhi)}"
    if any(neg): t += f" neg_lo:{f(neg)} neg_hi:{f(neg)}"
    a(t)

def gen_k1(a):
    kernel_begin(a, KNAME)
    a("s_cmp_ge_u32 s2, 256")
    a("s_cbranch_scc1 K1_END")
    load_args(a)
    a("v_lshrrev_b32 v1, 6, v0")
    a("v_and_b32 v2, 63, v0")
    a("s_and_b32 s8, s2, 7")
    a("v_readfirstlane_b32 s3, v1")
    a("s_lshr_b32 s9, s2, 3")
    if not ENV("MAP1"):
        a("s_lshr_b32 s6, s8, 1")
        a("s_lshl_b32 s6, s6, 2")
        a("s_and_b32 s10, s9, 3")
        a("s_add_u32 s6, s6, s10")
        a("s_and_b32 s7, s8, 1")
        a("s_lshl_b32 s7, s7, 3")
        a("s_lshr_b32 s10, s9, 2")
        a("s_add_u32 s7, s7, s10")
    else:
        a("s_and_b32 s6, s8, 1")
        a("s_lshl_b32 s6, s6, 3")
        a("s_and_b32 s10, s9, 7")
        a("s_add_u32 s6, s6, s10")
        a("s_lshr_b32 s7, s8, 1")
        a("s_lshl_b32 s7, s7, 2")
        a("s_lshr_b32 s10, s9, 3")
        a("s_add_u32 s7, s7, s10")
    a("s_and_b32 s4, s3, 3")
    a("s_lshr_b32 s5, s3, 2")
    a("s_add_u32 s11, s6, s7")
    for _ in range(3):
        a("s_sub_u32 s12, s11, 10")
        a("s_cmp_ge_u32 s11, 10")
        a("s_cselect_b32 s11, s12, s11")
    a("s_mov_b32 s0, s11")
    a("s_lshl_b32 s10, s6, 7")
    a("s_lshl_b32 s11, s3, 4")
    a("s_add_u32 s10, s10, s11")
    a("v_lshrrev_b32 v3, 3, v2")
    a("v_add_u32 v4, s10, v3")
    a("v_mul_u32_u24 v8, 1280, v4")
    a("v_and_b32 v5, 7, v2")
    a("v_lshrrev_b32 v6, 4, v2")
    a("v_xor_b32 v26, v5, v6")
    a("v_xor_b32 v27, 4, v26")
    a(f"v_add_u32 v9, {8*1280}, v8")
    a("v_lshl_add_u32 v8, v26, 4, v8")
    a("v_lshl_add_u32 v9, v27, 4, v9")
    a("v_mov_b32 v18, 0x3f803f80")
    a("s_lshl_b32 s69, s3, 11")
    a("s_lshl_b32 s74, s0, 7")
    a("s_waitcnt lgkmcnt(0)")
    if STAMP: a("v_mov_b32 v255, 0")
    stamp(a, 0)
    mk_srd(a, 48, PX, X_SZ)
    a("s_or_b32 s10, s2, s3")
    a("s_cmp_eq_u32 s10, 0")
    a("s_cbranch_scc0 K1_NONC")
    a("s_memrealtime s[92:93]")
    a("s_waitcnt lgkmcnt(0)")
    a("s_or_b32 s92, s92, 1")
    a("v_mov_b32 v3, s92")
    a("v_mov_b32 v4, 0")
    a(f"global_store_dword v4, v3, s[{PDBG}:{PDBG+1}] sc1")
    a.label("K1_NONC")
    a("s_cmp_lt_u32 s3, 6")
    a("s_cbranch_scc1 K1_NOSJ")
    a("s_lshl_b32 s10, s2, 3")
    a("s_sub_u32 s11, s3, 6")
    a("s_lshl_b32 s11, s11, 2")
    a("s_add_u32 s10, s10, s11")
    a("v_add_u32 v28, s10, v6")
    a("v_mul_u32_u24 v3, 1280, v28")
    a("v_and_b32 v4, 15, v2")
    a("v_lshl_add_u32 v3, v4, 4, v3")
    for i in range(5):
        a(f"buffer_load_dwordx4 v[{208+4*i}:{211+4*i}], v3, s[48:51], 0 offen offset:{256*i}")
    a.label("K1_NOSJ")
    mk_srd(a, 64, PWS, AF_SZ, AF_OFF)
    mk_srd(a, 96, PWS, BF_SZ, BF_OFF)

    SJ_LDS = FX0 + XSLOT
    def c_frag_load(freg, dst, sdst):
        sdiv(a, 11, 10, 200)
        a("s_mul_i32 s12, s11, 200")
        a("s_sub_u32 s12, s10, s12")
        sdiv(a, 13, 12, 5)
        a("s_mul_i32 s14, s13, 5")
        a("s_sub_u32 s14, s12, s14")
        a("s_bitcmp1_b32 s13, 0")
        a(f"s_cselect_b32 s52, s{PCIM}, s{PCRE}")
        a(f"s_cselect_b32 s53, s{PCIM+1}, s{PCRE+1}")
        a(f"s_mov_b32 s54, {640*1280}")
        a(f"s_mov_b32 s55, {SRD3:#x}")
        a("s_mul_i32 s15, s11, 80")
        a("s_lshl_b32 s56, s14, 4")
        a("s_add_u32 s15, s15, s56")
        a("v_and_b32 v3, 15, v2")
        a("v_add_u32 v3, s15, v3")
        a("v_mul_u32_u24 v3, 1280, v3")
        a("v_lshrrev_b32 v4, 4, v2")
        a("v_lshl_add_u32 v3, v4, 4, v3")
        a("s_lshr_b32 s15, s13, 1")
        a("s_lshl_b32 s15, s15, 6")
        a(f"buffer_load_dwordx4 v[{dst}:{dst+3}], v3, s[52:55], s15 offen")
        a(f"s_mul_i32 s{sdst}, s11, 94")
        a(f"s_add_u32 s{sdst}, s{sdst}, s13")
        a(f"s_mul_i32 s{sdst}, s{sdst}, 5")
        a(f"s_add_u32 s{sdst}, s{sdst}, s14")
        a(f"s_lshl_b32 s{sdst}, s{sdst}, 10")
    def side_jobs_issue():
        l1, l2 = a.uid("K1_NOC"), a.uid("K1_NOW")
        a("s_mul_i32 s89, s6, 11")
        a("s_add_u32 s89, s89, s7")
        a("s_lshl_b32 s10, s89, 3")
        a("s_add_u32 s10, s10, s3")
        c_frag_load(10, 248, 100)
        a("s_cmp_ge_u32 s89, 24")
        a(f"s_cbranch_scc1 {l1}")
        a("s_lshl_b32 s10, s89, 3")
        a("s_add_u32 s10, s10, s3")
        a("s_add_u32 s10, s10, 1408")
        c_frag_load(10, 232, 90)
        a.label(l1)
        a("s_cmp_ge_u32 s89, 144")
        a(f"s_cbranch_scc1 {l2}")
        a("s_sub_u32 s10, s3, 1")
        a("s_cmp_ge_u32 s10, 3")
        a(f"s_cbranch_scc1 {l2}")
        a("s_mul_i32 s11, s89, 3")
        a("s_add_u32 s11, s11, s10")
        sdiv(a, 13, 11, 54)
        a("s_mul_i32 s12, s13, 54")
        a("s_sub_u32 s12, s11, s12")
        mk_srd(a, 52, PWD, 1728 * 1280)
        a(f"s_mul_i32 s14, s12, {32*1280}")
        a("s_mul_i32 s15, s13, 160")
        a("s_add_u32 s14, s14, s15")
        a("s_mul_i32 s101, s13, 94")
        a("s_add_u32 s101, s101, s12")
        a("s_add_u32 s101, s101, 40")
        a("s_mul_i32 s101, s101, 5120")
        a("s_mul_i32 s10, s10, 5120")
        a(f"s_add_u32 s10, s10, {SJ_LDS}")
        for i in range(5):
            a(f"v_add_u32 v3, {64*i}, v2")
            vdiv(a, 4, 3, 10, 15)
            a("v_mul_u32_u24 v5, 10, v4")
            a("v_sub_u32 v5, v3, v5")
            a("v_mul_u32_u24 v4, 1280, v4")
            a("v_lshl_add_u32 v4, v5, 4, v4")
            a(f"s_add_u32 m0, s10, {1024*i}")
            a("s_nop 0")
            a("buffer_load_dwordx4 v4, s[52:55], s14 offen lds")
        a.label(l2)

    def side_jobs_finish(tag, younger, vbase=32):
        l0, l1, l2 = f"K1_SJ0_{tag}", f"K1_SJ1_{tag}", f"K1_SJ2_{tag}"
        a(f"s_waitcnt vmcnt({younger})")
        a("v_lshlrev_b32 v5, 4, v2")
        a("buffer_store_dwordx4 v[248:251], v5, s[96:99], s100 offen sc1")
        a("s_cmp_ge_u32 s89, 24")
        a(f"s_cbranch_scc1 {l1}")
        a("buffer_store_dwordx4 v[232:235], v5, s[96:99], s90 offen sc1")
        a.label(l1)
        a("s_cmp_ge_u32 s89, 144")
        a(f"s_cbranch_scc1 {l2}")
        a("s_sub_u32 s14, s3, 1")
        a("s_cmp_ge_u32 s14, 3")
        a(f"s_cbranch_scc1 {l2}")
        a("v_lshrrev_b32 v6, 5, v2")
        a("v_lshlrev_b32 v6, 4, v6")
        a("v_bfe_u32 v4, v2, 4, 1")
        a("v_lshl_add_u32 v6, v4, 2, v6")
        a("v_bfe_u32 v4, v2, 2, 2")
        a("v_add_u32 v6, v6, v4")
        a("v_mul_u32_u24 v6, 160, v6")
        a("v_and_b32 v4, 3, v2")
        a("v_lshl_add_u32 v6, v4, 3, v6")
        a("s_mul_i32 s14, s14, 5120")
        a(f"s_add_u32 s14, s14, {SJ_LDS}")
        a("v_add_u32 v6, s14, v6")
        for j in range(5):
            a(f"ds_read_b64_tr_b16 v[{vbase+4*j}:{vbase+1+4*j}], v6 offset:{32*j}")
            a(f"ds_read_b64_tr_b16 v[{vbase+2+4*j}:{vbase+3+4*j}], v6 offset:{32*j+8*160}")
        a("s_waitcnt lgkmcnt(0)")
        for j in range(5):
            a(f"s_add_u32 s14, s101, {1024*j}")
            a(f"buffer_store_dwordx4 v[{vbase+4*j}:{vbase+3+4*j}], v5, s[96:99], s14 offen sc1")
        a.label(l2)

    def phase1_done(tag, word_off, total, go_expr, nrep):
        l = f"K1_DN_{tag}"
        a("s_waitcnt vmcnt(0)")
        a("s_barrier")
        a("s_cmp_eq_u32 s3, 0")
        a(f"s_cbranch_scc0 {l}")
        word_off()
        a("v_mov_b32 v3, s10")
        a("v_mov_b32 v4, 1")
        a("s_mov_b64 s[12:13], exec")
        a("s_mov_b64 exec, 1")
        a(f"global_atomic_add v5, v3, v4, s[{PDBG}:{PDBG+1}] sc0 sc1")
        a("s_waitcnt vmcnt(0)")
        a("s_mov_b64 exec, s[12:13]")
        a("v_readfirstlane_b32 s10, v5")
        a(f"s_cmp_eq_u32 s10, {total-1}")
        a(f"s_cbranch_scc0 {l}")
        go_expr()
        a("v_lshlrev_b32 v3, 7, v2")
        a("v_add_u32 v3, s11, v3")
        a(f"s_mov_b64 exec, {(1 << nrep) - 1:#x}" if nrep < 32 else "s_mov_b32 exec_hi, 0")
        a(f"global_store_dword v3, v{VN}, s[{PWS}:{PWS+1}] sc1")
        a("s_mov_b64 exec, -1")
        a.label(l)

    def ensure_nonce(tag):
        l0, l1 = f"K1_EN0_{tag}", f"K1_EN1_{tag}"
        a(f"v_readfirstlane_b32 s10, v{VN}")
        a("s_cmp_lg_u32 s10, 0")
        a(f"s_cbranch_scc1 {l1}")
        a("v_mov_b32 v3, 0")
        a("s_mov_b32 s11, 2000000")
        a.label(l0)
        a(f"global_load_dword v{VN}, v3, s[{PDBG}:{PDBG+1}] sc1")
        a("s_waitcnt vmcnt(0)")
        a(f"v_readfirstlane_b32 s10, v{VN}")
        a("s_sub_u32 s11, s11, 1")
        a("s_cmp_eq_u32 s11, 0")
        a(f"s_cbranch_scc1 {l1}")
        a("s_cmp_eq_u32 s10, 0")
        a(f"s_cbranch_scc1 {l0}")
        a.label(l1)

    def nonce_load():
        a("v_mov_b32 v3, 0")
        a(f"global_load_dword v{VN}, v3, s[{PDBG}:{PDBG+1}] sc1")

    def stats_job(tag, younger):
        l = f"K1_SJ_{tag}"
        a("s_cmp_lt_u32 s3, 6")
        a(f"s_cbranch_scc1 {l}")
        a(f"s_waitcnt vmcnt({younger})")
        a("v_mov_b32 v19, 0"); a("v_mov_b32 v20, 0"); a("v_mov_b32 v21, 0"); a("v_mov_b32 v22, 0")
        for i in range(20):
            a(f"v_dot2c_f32_bf16 v{19 + (i & 1)}, v{208+i}, v18")
            a(f"v_dot2c_f32_bf16 v{21 + (i & 1)}, v{208+i}, v{208+i}")
        a("s_nop 2")
        a("v_add_f32 v19, v19, v20")
        a("v_add_f32 v20, v21, v22")
        for sh in (8, 4, 2, 1):
            a("s_nop 1")
            a(f"v_add_f32_dpp v19, v19, v19 row_ror:{sh} row_mask:0xf bank_mask:0xf")
            a(f"v_add_f32_dpp v20, v20, v20 row_ror:{sh} row_mask:0xf bank_mask:0xf")
        a(f"v_mul_f32 v19, {f32hex(1.0/640)}, v19")
        a(f"v_mul_f32 v20, {f32hex(1.0/640)}, v20")
        a("v_fma_f32 v20, -v19, v19, v20")
        a("v_max_f32 v20, 0, v20")
        a("v_cvt_pk_bf16_f32 v21, v19, v20")
        a("v_lshlrev_b32 v238, 16, v21")
        a("v_and_b32 v21, 0xffff0000, v21")
        a("v_add_f32 v21, 0x3727c5ac, v21")
        a("v_cvt_pk_bf16_f32 v21, v21, v21")
        a("v_and_b32 v21, 0xffff0000, v21")
        a("v_sqrt_f32 v21, v21")
        a("s_nop 0")
        a("v_cvt_pk_bf16_f32 v21, v21, v21")
        a("v_and_b32 v21, 0xffff0000, v21")
        a("v_rcp_f32 v239, v21")
        a.label(l)

    def stats_publish(tag):
        l = f"K1_SP_{tag}"
        a("s_cmp_lt_u32 s3, 6")
        a(f"s_cbranch_scc1 {l}")
        a("s_cmp_eq_u32 s77, 1")
        a(f"s_cbranch_scc0 {l}")
        ensure_nonce(tag + "P")
        a("v_mov_b32 v240, v238")
        a("v_mov_b32 v241, v239")
        a(f"v_mov_b32 v242, v{VN}")
        a(f"v_not_b32 v243, v{VN}")
        a("v_lshlrev_b32 v3, 4, v28")
        a("v_and_b32 v4, 15, v2")
        a("v_cmp_eq_u32 vcc, 0, v4")
        a("s_and_saveexec_b64 s[10:11], vcc")
        a("buffer_store_dwordx4 v[240:243], v3, s[84:87], 0 offen sc1")
        a("s_mov_b64 exec, s[10:11]")
        a.label(l)

    a("s_cmp_ge_u32 s7, 11")
    a("s_cbranch_scc1 K1_SSM")

    a(f"s_mov_b32 s79, {FX0}")
    def dma_x(slotreg, step, base, end):
        a(f"s_add_u32 m0, s{slotreg}, s69")
        a("s_nop 0")
        a("buffer_load_dwordx4 v8, s[48:51], s74 offen lds")
        a("s_add_u32 m0, m0, 1024")
        a("s_nop 0")
        a("buffer_load_dwordx4 v9, s[48:51], s74 offen lds")
        adv_x(slotreg, step, base, end)
    def adv_x(slotreg, step, base, end):
        a("s_add_u32 s74, s74, 128")
        a("s_cmp_ge_u32 s74, 1280")
        a("s_cselect_b32 s74, 0, s74")
        a(f"s_add_u32 s{slotreg}, s{slotreg}, {step}")
        a(f"s_cmp_ge_u32 s{slotreg}, {end}")
        a(f"s_cselect_b32 s{slotreg}, {base}, s{slotreg}")
    fx = lambda: dma_x(79, XSLOT, FX0, FX0 + 3 * XSLOT)
    fx()
    if ENV("PSTAMP"): stamp(a, 20)
    mk_srd(a, 52, PWG, 640 * 3456)
    a("s_cmp_lt_u32 s3, 2")
    a(f"s_cselect_b32 s56, s{PWG}, s{PWU}")
    a(f"s_cselect_b32 s57, s{PWG+1}, s{PWU+1}")
    a(f"s_mov_b32 s58, {640*3456}")
    a(f"s_mov_b32 s59, {SRD3:#x}")
    mk_srd(a, 60, PWU, 640 * 3456)
    a("s_add_u32 s10, s3, 8")
    a("s_sub_u32 s11, s3, 2")
    a("s_cmp_lt_u32 s3, 2")
    a("s_cselect_b32 s10, s10, s11")
    a(f"s_mov_b32 s12, {GU}")
    a("s_cselect_b32 s11, 0, s12")
    a("s_lshl_b32 s12, s10, 10")
    a("s_add_u32 s71, s12, s11")
    a("s_lshl_b32 s70, s3, 10")
    a(f"s_add_u32 s72, s70, {GU + 6*1024}")
    def woff(dst, sidx):
        a(f"s_lshl_b32 s12, {sidx}, 6")
        a("v_add_u32 v3, s12, v2")
        vdiv(a, 4, 3, 20, 13)
        a("v_mul_u32_u24 v5, 20, v4")
        a("v_sub_u32 v5, v3, v5")
        a("v_mul_u32_u24 v4, 3456, v4")
        a(f"v_lshl_add_u32 v{dst}, v5, 4, v4")
    woff(10, "s3")
    woff(11, "s10")
    a("s_add_u32 s11, s3, 6")
    woff(12, "s11")
    a("s_mul_i32 s1, s7, 320")
    a(f"s_mul_i32 s73, s0, {64*3456}")
    a("s_add_u32 s73, s73, s1")
    a(f"s_add_u32 s1, s1, {640*3456}")
    a(f"s_mov_b32 s75, {FW0}")
    def adv_w():
        a(f"s_add_u32 s73, s73, {32*3456}")
        a(f"s_sub_u32 s12, s73, {640*3456}")
        a("s_cmp_ge_u32 s73, s1")
        a("s_cselect_b32 s73, s12, s73")
        a(f"s_add_u32 s75, s75, {WSLOT}")
        a(f"s_cmp_ge_u32 s75, {FW0 + 5*WSLOT}")
        a(f"s_cselect_b32 s75, {FW0}, s75")
    def dma_w():
        a("s_add_u32 m0, s75, s70")
        a("s_nop 0")
        a("buffer_load_dwordx4 v10, s[52:55], s73 offen lds")
        a("s_add_u32 m0, s75, s71")
        a("s_nop 0")
        a("buffer_load_dwordx4 v11, s[56:59], s73 offen lds")
        l = a.uid("K1F3")
        a("s_cmp_lt_u32 s3, 4")
        a(f"s_cbranch_scc0 {l}")
        a("s_add_u32 m0, s75, s72")
        a("s_nop 0")
        a("buffer_load_dwordx4 v12, s[60:63], s73 offen lds")
        a.label(l)
        adv_w()
    dma_w()
    a("s_barrier")
    if ENV("PSTAMP"): stamp(a, 21)
    dma_w()
    if ENV("PSTAMP"): stamp(a, 22)
    a("v_and_b32 v3, 31, v2")
    a("s_lshl_b32 s10, s4, 5")
    a("v_add_u32 v4, s10, v3")
    a("v_lshlrev_b32 v13, 7, v4")
    a("v_bfe_u32 v5, v2, 1, 3")
    a("v_lshrrev_b32 v4, 5, v2")
    a("v_xor_b32 v4, v4, v5")
    a("v_lshl_add_u32 v13, v4, 4, v13")
    a("v_lshrrev_b32 v3, 5, v2")
    a("v_lshlrev_b32 v3, 3, v3")
    a("v_bfe_u32 v4, v2, 2, 2")
    a("v_add_u32 v3, v3, v4")
    a("v_mul_u32_u24 v14, 320, v3")
    a("v_and_b32 v4, 3, v2")
    a("v_lshl_add_u32 v14, v4, 3, v14")
    a("v_bfe_u32 v4, v2, 4, 1")
    a(f"v_mul_u32_u24 v4, {GU}, v4")
    a("v_add_u32 v14, v14, v4")
    a("s_mul_i32 s10, s5, 160")
    a("v_add_u32 v14, s10, v14")
    for i in range(80):
        a(f"v_mov_b32 v{128+i}, 0")
    a("s_cmp_eq_u32 s4, s5")
    a("s_cselect_b32 s68, 1, 0")
    a("s_cmp_lt_u32 s6, 10")
    a("s_cselect_b32 s68, s68, 0")
    if ENV("PSTAMP"): stamp(a, 23)
    stats_job("F", 6)
    if ENV("PSTAMP"): stamp(a, 24)
    for i in range(21, 26):
        a(f"v_mov_b32 v{i}, 0")
    a("s_cmp_lt_u32 s3, 4")
    a("s_cbranch_scc1 K1F_P1")
    a(f"s_waitcnt vmcnt(2)")
    a.label("K1F_P1")
    a(f"s_waitcnt vmcnt(3)")
    if ENV("PSTAMP"): stamp(a, 25)
    a("s_barrier")
    stamp(a, 1)
    SETS = (32, 80)
    def reads_ffn(setb):
        out = [f"ds_read_b128 v[{setb}:{setb+3}], v15", f"ds_read_b128 v[{setb+4}:{setb+7}], v16"]
        for ks in range(2):
            for j in range(5):
                b = setb + 8 + (ks * 5 + j) * 4
                off = ks * 5120 + j * 32
                out.append(f"ds_read_b64_tr_b16 v[{b}:{b+1}], v17 offset:{off}")
                out.append(f"ds_read_b64_tr_b16 v[{b+2}:{b+3}], v17 offset:{off+1280}")
        return out
    def rd_addr(uprime):
        a("v_add_u32 v15, s78, v13")
        if uprime: a("v_xor_b32 v15, 64, v15")
        a("v_xor_b32 v16, 32, v15")
        a("v_add_u32 v17, s76, v14")
        a(f"s_add_u32 s76, s76, {WSLOT}")
        a(f"s_cmp_ge_u32 s76, {FW0 + 5*WSLOT}")
        a(f"s_cselect_b32 s76, {FW0}, s76")
        if uprime:
            a(f"s_add_u32 s78, s78, {XSLOT}")
            a(f"s_cmp_ge_u32 s78, {FX0 + 3*XSLOT}")
            a(f"s_cselect_b32 s78, {FX0}, s78")
    a(f"s_mov_b32 s76, {FW0}")
    a(f"s_mov_b32 s78, {FX0}")
    rd_addr(0)
    for r in reads_ffn(SETS[0]): a(r)
    nonce_load()
    dma_w(); fx()
    mk_srd(a, 80, PWS, CS_SZ, CS_OFF)
    mk_srd(a, 84, PWS, ST_SZ, ST_OFF)
    a("v_lshlrev_b32 v29, 3, v0")
    a("v_cmp_gt_u32 vcc, 320, v0")
    a("v_mov_b32 v3, 0x7ffffff0")
    a("s_mul_i32 s88, s7, 25600")
    a("v_cndmask_b32 v29, v3, v29, vcc")
    a("s_lshl_b32 s10, s6, 7")
    a("s_lshl_b32 s11, s4, 5")
    a("s_add_u32 s10, s10, s11")
    a("v_and_b32 v3, 31, v2")
    a("v_add_u32 v3, s10, v3")
    a("v_lshlrev_b32 v30, 4, v3")
    def epi_loads():
        for kk in range(10):
            a(f"s_add_u32 s12, s88, {kk*2560}")
            a(f"buffer_load_dwordx2 v[{208+2*kk}:{209+2*kk}], v29, s[80:83], s12 offen sc1")
        a("buffer_load_dwordx4 v[228:231], v30, s[84:87], 0 offen sc1")
    NE = 11
    if STAMP:
        a("s_memtime s[92:93]"); a("s_waitcnt lgkmcnt(0)"); a("v_writelane_b32 v255, s92, 6")
    def ffn_tprep(tag):
        lchk, lok = f"K1F_CHK{tag}", f"K1F_OK{tag}"
        ensure_nonce("FE" + tag)
        a.label(lchk)
        a("s_waitcnt vmcnt(0)")
        a(f"v_not_b32 v3, v{VN}")
        a(f"v_cmp_eq_u32 s[10:11], v230, v{VN}")
        a("v_cmp_eq_u32 vcc, v231, v3")
        a("s_and_b64 s[10:11], s[10:11], vcc")
        a("v_mov_b32 v4, 0x7ffffff0")
        a("v_cmp_eq_u32 s[12:13], v4, v29")
        a("s_mov_b64 s[14:15], -1")
        for kk in range(10):
            a(f"v_cmp_eq_u32 vcc, v{209+2*kk}, v{VN}")
            a("s_and_b64 s[14:15], s[14:15], vcc")
        a("s_or_b64 s[14:15], s[14:15], s[12:13]")
        a("s_and_b64 s[10:11], s[10:11], s[14:15]")
        a("s_cmp_eq_u64 s[10:11], -1")
        a(f"s_cbranch_scc1 {lok}")
        a("s_sleep 1")
        epi_loads()
        a(f"s_branch {lchk}")
        a.label(lok)
        for kk in range(1, 10):
            a(f"v_add_f32 v208, v208, v{208+2*kk}")
        a("v_lshlrev_b32 v4, 2, v0")
        a("v_cmp_gt_u32 vcc, 320, v0")
        a("s_and_saveexec_b64 s[10:11], vcc")
        a(f"ds_write_b32 v4, v208 offset:{SPARE + 10240 - 98304}" if False else f"v_add_u32 v4, {SPARE + 10240}, v4")
        a("ds_write_b32 v4, v208")
        a("s_mov_b64 exec, s[10:11]")
        side_jobs_issue()
    def ffn_stage(var, u, vm, wd, xd, first=False, epi=False, reads=True, tag="", tprep=False):
        nW = 3 if var == "A" else 2
        cur, nxt = SETS[u], SETS[1 - u]
        if vm is None: a("s_waitcnt lgkmcnt(0)")
        else: a(f"s_waitcnt vmcnt({vm}) lgkmcnt(0)")
        a("s_barrier")
        rd = reads_ffn(nxt) if reads else []
        if ENV("NORD"): rd = []
        mf = []
        for ks in range(2):
            for j in range(5):
                w = cur + 8 + (ks * 5 + j) * 4
                x = cur + 4 * ks
                ac = 128 + 16 * j
                mf.append(f"v_mfma_f32_32x32x16_bf16 v[{ac}:{ac+15}], v[{w}:{w+3}], v[{x}:{x+3}], v[{ac}:{ac+15}]")
        pieces = []
        if wd and not ENV("NODMA"):
            pieces += [("s75", "s70", None, 10, 52, "s73"), ("s75", "s71", None, 11, 56, "s73")]
            if var == "A": pieces.append(("s75", "s72", None, 12, 60, "s73"))
        if xd and not ENV("NODMA"):
            pieces += [("s79", "s69", None, 8, 48, "s74"), ("s79", "s69", 1024, 9, 48, "s74")]
        slots = [1, 3, 5, 6, 7][:len(pieces)]
        ri = 0
        for mi, m in enumerate(mf):
            a(m)
            if mi == 0:
                if reads: rd_addr(1 - u)
            elif mi < 8:
                for _ in range(4):
                    if ri < len(rd): a(rd[ri]); ri += 1
            if mi in slots:
                (b0, b1, add, voff, srd, soff) = pieces[slots.index(mi)]
                a(f"s_add_u32 m0, {b0}, {b1}")
                if add: a(f"s_add_u32 m0, m0, {add}")
                a("s_nop 0")
                a(f"buffer_load_dwordx4 v{voff}, s[{srd}:{srd+3}], {soff} offen lds")
            if mi == 8:
                if wd: adv_w()
                if xd: adv_x(79, XSLOT, FX0, FX0 + 3 * XSLOT)
                if epi: epi_loads()
                if tprep: ffn_tprep(tag)
                if first:
                    lc = a.uid("K1C")
                    a("s_cmp_eq_u32 s68, 0")
                    a(f"s_cbranch_scc1 {lc}")
                    for ks in range(2):
                        for i in range(4):
                            for j in range(5):
                                w = cur + 8 + (ks * 5 + j) * 4
                                a(f"v_dot2c_f32_bf16 v{21+j}, v{w+i}, v18")
                    if u == 1:
                        for j in range(5): a(f"v_mov_b32 v{208+2*j}, v{21+j}")
                        a("s_nop 1")
                        for j in range(5): a(f"v_permlane32_swap_b32 v{21+j}, v{208+2*j}")
                        for j in range(5): a(f"v_add_f32 v{208+2*j}, v{21+j}, v{208+2*j}")
                        ensure_nonce("FC" + tag)
                        for j in range(5): a(f"v_mov_b32 v{209+2*j}, v{VN}")
                        a("v_and_b32 v3, 31, v2")
                        a("s_mul_i32 s10, s5, 160")
                        a("v_add_u32 v3, s10, v3")
                        a("v_lshlrev_b32 v3, 3, v3")
                        a("s_mul_i32 s10, s0, 2560")
                        a("s_add_u32 s10, s10, s88")
                        a("s_mov_b32 exec_hi, 0")
                        for j in range(5):
                            a(f"buffer_store_dwordx2 v[{208+2*j}:{209+2*j}], v3, s[80:83], s10 offen offset:{256*j} sc1")
                        a("s_mov_b32 exec_hi, -1")
                    a.label(lc)
                    if u == 1:
                        a("s_mov_b32 s77, 1")
                        stats_publish("F" + tag)
    a("s_cmp_ge_u32 s3, 4")
    a("s_cbranch_scc1 K1F_B")
    for var in ("A", "B"):
        nW = 3 if var == "A" else 2
        if var == "B": a.label("K1F_B")
        ffn_stage(var, 0, nW + 3, True, False, first=True, tag=var)
        ffn_stage(var, 1, nW, True, True, first=True, tag=var)
        a("s_mov_b32 s77, 7")
        a.label(f"K1F_LOOP_{var}")
        ffn_stage(var, 0, nW + 2, True, False)
        ffn_stage(var, 1, nW, True, True)
        if STAMP and ENV("ITSTAMP"):
            a("s_memrealtime s[92:93]")
            a("s_sub_u32 s94, 7, s77")
            a("s_add_u32 m0, s94, 9")
            a("s_waitcnt lgkmcnt(0)")
            a("s_nop 3")
            a("v_writelane_b32 v255, s92, m0")
        a("s_sub_u32 s77, s77, 1")
        a("s_cmp_lg_u32 s77, 0")
        a(f"s_cbranch_scc1 K1F_LOOP_{var}")
        ffn_stage(var, 0, nW + 2, True, False, epi=True)
        ffn_stage(var, 1, nW + NE, False, False)
        ffn_stage(var, 0, NE, False, False, tprep=True, tag=var)
        ffn_stage(var, 1, None, False, False, reads=False)
        if var == "A": a("s_branch K1F_EPI")
    a.label("K1F_EPI")
    if STAMP:
        a("s_memtime s[92:93]"); a("s_waitcnt lgkmcnt(0)"); a("v_writelane_b32 v255, s92, 7")
    stamp(a, 2)
    a("s_waitcnt lgkmcnt(0)")
    a("s_barrier")
    a("v_lshrrev_b32 v4, 5, v2")
    a("v_lshlrev_b32 v4, 4, v4")
    a("s_mul_i32 s12, s5, 640")
    a(f"s_add_u32 s12, s12, {SPARE + 10240}")
    a("v_add_u32 v4, s12, v4")
    for j in range(5):
        for q in range(4):
            a(f"ds_read_b128 v[{48+16*j+4*q}:{51+16*j+4*q}], v4 offset:{128*j + 32*q}")
    a("v_mov_b32 v20, v228")
    a("v_mov_b32 v22, v229")
    a("v_rcp_f32 v26, v229")
    a("s_and_b32 s10, s4, 1")
    a("s_lshl_b32 s10, s10, 11")
    a("v_bfe_u32 v3, v2, 4, 1")
    a("v_lshlrev_b32 v3, 10, v3")
    a("v_and_b32 v4, 15, v2")
    a("v_lshl_add_u32 v3, v4, 4, v3")
    a("v_lshrrev_b32 v4, 5, v2")
    a("v_lshl_add_u32 v3, v4, 8, v3")
    a("v_add_u32 v3, s10, v3")
    a("s_lshl_b32 s10, s6, 1")
    a("s_lshr_b32 s11, s4, 1")
    a("s_add_u32 s10, s10, s11")
    a("s_mul_i32 s10, s10, 94")
    a("s_add_u32 s10, s10, 40")
    a("s_mul_i32 s11, s7, 10")
    a("s_mul_i32 s12, s5, 5")
    a("s_add_u32 s11, s11, s12")
    C1 = -2.0 * LOG2E * 0.7978845608028654
    C2 = C1 * 0.044715
    a(f"s_mov_b32 s52, {f32hex(C2)}")
    a(f"s_mov_b32 s53, {f32hex(C2)}")
    a(f"v_mov_b32 v24, {f32hex(C1)}")
    for j in range(5):
        ac = 128 + 16 * j
        cs = 48 + 16 * j
        l = a.uid("K1FS")
        a(f"s_waitcnt lgkmcnt({min(15, 4*(4-j))})")
        a(f"s_add_u32 s12, s11, {j}")
        a("s_cmp_ge_u32 s12, 108")
        a(f"s_cbranch_scc1 {l}")
        for r in range(0, 16, 2):
            vpk(a, "fma", ac + r, ('b', 20, 1), ('p', cs + r), ('p', ac + r))
        for r in range(0, 8, 2):
            vpk(a, "mul", ac + r, ('p', ac + r), ('b', 22))
        for r in range(0, 8, 2):
            vpk(a, "mul", 32 + r, ('p', ac + r), ('p', ac + r))
        for r in range(0, 8, 2):
            vpk(a, "fma", 32 + r, ('p', 32 + r), ('s', 52), ('b', 24))
        for r in range(0, 8, 2):
            vpk(a, "mul", 32 + r, ('p', 32 + r), ('p', ac + r))
        for r in range(8):
            a(f"v_exp_f32 v{32+r}, v{32+r}")
        for r in range(0, 8, 2):
            vpk(a, "mul", ac + 8 + r, ('p', ac + r), ('p', ac + 8 + r))
        for r in range(0, 8, 2):
            vpk(a, "fma", 32 + r, ('p', 32 + r), ('b', 26), ('b', 26))
        for r in range(8):
            a(f"v_rcp_f32 v{32+r}, v{32+r}")
        a("s_lshr_b32 s13, s12, 1")
        a("s_add_u32 s13, s13, s10")
        for r in range(0, 8, 2):
            vpk(a, "mul", ac + 8 + r, ('p', ac + 8 + r), ('p', 32 + r))
        a("s_lshl_b32 s13, s13, 12")
        a("s_and_b32 s12, s12, 1")
        for r in range(4):
            a(f"v_cvt_pk_bf16_f32 v{40+4*(j&1)+r}, v{ac+8+2*r}, v{ac+9+2*r}")
        a("s_lshl_b32 s12, s12, 9")
        a("s_add_u32 s13, s13, s12")
        a(f"buffer_store_dwordx4 v[{40+4*(j&1)}:{43+4*(j&1)}], v3, s[64:67], s13 offen sc1")
        a.label(l)
        if j == 2:
            side_jobs_finish("F", 3, vbase=48)
    phase1_done("F", lambda: a("s_mov_b32 s10, 32"), 176, lambda: a(f"s_mov_b32 s11, {GO_OFF}"), 32)
    stamp(a, 3); stamp_flush(a, 0)
    a("s_branch PHASE2")

    PR = lambda g, k: 208 + 8 * g + k
    def ssm_params():
        for g in range(2):
            lre, lim, ldt = 232 + 3 * g, 233 + 3 * g, 234 + 3 * g
            ar_, ai_, cr_, ci_, qr, qi, hr, hi = [PR(g, k) for k in range(8)]
            a(f"v_lshlrev_b32 v{lre}, 16, v{lre}")
            a(f"v_lshlrev_b32 v{lim}, 16, v{lim}")
            a(f"v_lshlrev_b32 v{ldt}, 16, v{ldt}")
            a(f"v_mul_f32 v240, {f32hex(LOG2E)}, v{ldt}")
            a("v_exp_f32 v240, v240")
            a("s_nop 0")
            a("v_cvt_pk_bf16_f32 v240, v240, v240")
            a("v_lshlrev_b32 v240, 16, v240")
            a(f"v_mul_f32 v241, v240, v{lre}")
            a(f"v_mul_f32 v242, v240, v{lim}")
            a(f"v_mul_f32 v241, {f32hex(LOG2E)}, v241")
            a("v_exp_f32 v241, v241")
            a(f"v_mul_f32 v242, {f32hex(0.15915494309189535)}, v242")
            a("v_fract_f32 v242, v242")
            a("v_cos_f32 v243, v242")
            a("v_sin_f32 v244, v242")
            a("s_nop 0")
            a(f"v_mul_f32 v{ar_}, v241, v243")
            a(f"v_mul_f32 v{ai_}, v241, v244")
            a(f"v_add_f32 v243, -1.0, v{ar_}")
            a(f"v_mul_f32 v244, v{lre}, v{lre}")
            a(f"v_fmac_f32 v244, v{lim}, v{lim}")
            a("v_rcp_f32 v244, v244")
            a(f"v_mul_f32 v245, v243, v{lre}")
            a(f"v_fmac_f32 v245, v{ai_}, v{lim}")
            a(f"v_mul_f32 v246, v{ai_}, v{lre}")
            a(f"v_fma_f32 v246, -v243, v{lim}, v246")
            a("v_add_f32 v244, v244, v244")
            a(f"v_mul_f32 v{cr_}, v245, v244")
            a(f"v_mul_f32 v{ci_}, v246, v244")
            def sq(dr, di, sr_, si):
                a(f"v_mul_f32 v240, v{si}, v{si}")
                a(f"v_mul_f32 v241, v{sr_}, v{si}")
                a(f"v_fma_f32 v{dr}, v{sr_}, v{sr_}, -v240")
                a(f"v_add_f32 v{di}, v241, v241")
            sq(qr, qi, ar_, ai_)
            for _ in range(3): sq(qr, qi, qr, qi)
            sq(hr, hi, qr, qi)
            for _ in range(2): sq(hr, hi, hr, hi)

    a.label("K1_SSM")
    a("s_sub_u32 s7, s7, 11")
    mk_srd(a, 52, PBRE, 640 * 1280)
    mk_srd(a, 56, PBIM, 640 * 1280)
    a("s_lshl_b32 s10, s7, 7")
    a("s_lshl_b32 s11, s3, 4")
    a("s_add_u32 s10, s10, s11")
    a("v_lshrrev_b32 v3, 3, v2")
    a("v_add_u32 v4, s10, v3")
    a("v_mul_u32_u24 v10, 1280, v4")
    a(f"v_add_u32 v11, {8*1280}, v10")
    a("v_lshl_add_u32 v10, v26, 4, v10")
    a("v_lshl_add_u32 v11, v27, 4, v11")
    a("s_mov_b32 s73, s74")
    a("s_mov_b32 s75, 0")
    a("s_mov_b32 s79, 0")
    def adv(slot, soff):
        a(f"s_add_u32 s{soff}, s{soff}, 128")
        a(f"s_cmp_ge_u32 s{soff}, 1280")
        a(f"s_cselect_b32 s{soff}, 0, s{soff}")
        a(f"s_add_u32 s{slot}, s{slot}, {SSLOT}")
        a(f"s_cmp_ge_u32 s{slot}, {3*SSLOT}")
        a(f"s_cselect_b32 s{slot}, 0, s{slot}")
    def dma1(slot, off, v, srd, soff):
        a(f"s_add_u32 s10, s{slot}, s69")
        a(f"s_add_u32 m0, s10, {off}")
        a("s_nop 0")
        a(f"buffer_load_dwordx4 v{v}, s[{srd}:{srd+3}], s{soff} offen lds")
    HA = [(75, 0, 8, 48, 74), (75, 1024, 9, 48, 74), (75, 16384, 10, 52, 74)]
    HB = [(79, 16384 + 1024, 11, 52, 73), (79, 32768, 10, 56, 73), (79, 32768 + 1024, 11, 56, 73)]
    def half_a():
        for p in HA: dma1(*p)
        adv(75, 74)
    def half_b():
        for p in HB: dma1(*p)
        adv(79, 73)
    mk_srd(a, 80, PLRE, 1280)
    mk_srd(a, 84, PLIM, 1280)
    mk_srd(a, 88, PLDT, 1280)
    a("s_lshl_b32 s10, s7, 7")
    a("s_lshl_b32 s11, s5, 6")
    a("s_add_u32 s68, s10, s11")
    a("v_and_b32 v3, 31, v2")
    a("v_add_u32 v3, s68, v3")
    a("v_lshlrev_b32 v7, 1, v3")
    for g in range(2):
        a(f"buffer_load_ushort v{232+3*g}, v7, s[80:83], 0 offen offset:{64*g}")
        a(f"buffer_load_ushort v{233+3*g}, v7, s[84:87], 0 offen offset:{64*g}")
        a(f"buffer_load_ushort v{234+3*g}, v7, s[88:91], 0 offen offset:{64*g}")
    half_a(); half_b()
    a("s_barrier")
    half_a()
    a("v_bfe_u32 v3, v2, 2, 1")
    a("v_lshlrev_b32 v3, 4, v3")
    a("v_and_b32 v4, 3, v2")
    a("v_add_u32 v3, v3, v4")
    a("v_bfe_u32 v4, v2, 3, 2")
    a("v_lshl_add_u32 v3, v4, 2, v3")
    a("v_bfe_u32 v5, v3, 1, 3")
    a("s_lshl_b32 s10, s4, 5")
    a("v_add_u32 v3, s10, v3")
    a("v_lshlrev_b32 v13, 7, v3")
    a("v_lshrrev_b32 v4, 5, v2")
    a("v_xor_b32 v5, v4, v5")
    a("v_lshl_add_u32 v13, v5, 4, v13")
    a("v_and_b32 v3, 31, v2")
    a("s_lshl_b32 s10, s5, 6")
    a("v_add_u32 v3, s10, v3")
    a("v_lshlrev_b32 v14, 7, v3")
    a("v_bfe_u32 v5, v2, 1, 3")
    a("v_xor_b32 v5, v4, v5")
    a("v_lshl_add_u32 v14, v5, 4, v14")
    a("v_add_u32 v14, 16384, v14")
    for i in range(64):
        a(f"v_mov_b32 v{128+i}, 0")
    a("s_cmp_eq_u32 s4, s5")
    a("s_cselect_b32 s1, 1, 0")
    a("s_cmp_lt_u32 s6, 10")
    a("s_cselect_b32 s1, s1, 0")
    stats_job("S", 15)
    for i in (22, 23, 24, 25):
        a(f"v_mov_b32 v{i}, 0")
    a("s_waitcnt vmcnt(9)")
    ssm_params()
    a("s_waitcnt vmcnt(3)")
    a("s_barrier")
    stamp(a, 1)
    SETS = (32, 80)
    def reads_ssm(setb):
        out = []
        for ks in range(2):
            b = setb + ks * 20
            out.append(f"ds_read_b128 v[{b}:{b+3}], v{15+ks}")
            for g in range(2):
                for part in range(2):
                    w = b + 4 + (g * 2 + part) * 4
                    out.append(f"ds_read_b128 v[{w}:{w+3}], v{(17, 21)[ks]} offset:{g*4096 + part*16384}")
        return out
    def rd_addr_s(uprime):
        a("v_add_u32 v15, s76, v13")
        a("v_add_u32 v17, s76, v14")
        if uprime:
            a("v_xor_b32 v15, 64, v15")
            a("v_xor_b32 v17, 64, v17")
        a("v_xor_b32 v16, 32, v15")
        a("v_xor_b32 v21, 32, v17")
        if uprime:
            a(f"s_add_u32 s76, s76, {SSLOT}")
            a(f"s_cmp_ge_u32 s76, {3*SSLOT}")
            a("s_cselect_b32 s76, 0, s76")
    a("s_mov_b32 s76, 0")
    rd_addr_s(0)
    for r in reads_ssm(SETS[0]): a(r)
    nonce_load()
    half_b()
    mk_srd(a, 80, PWS, CS_SZ, CS_OFF)
    mk_srd(a, 84, PWS, ST_SZ, ST_OFF)
    a("v_lshlrev_b32 v29, 3, v0")
    a("v_cmp_gt_u32 vcc, 256, v0")
    a("v_mov_b32 v3, 0x7ffffff0")
    a("s_mul_i32 s88, s7, 20480")
    a(f"s_add_u32 s88, s88, {CSF_SZ}")
    a("v_cndmask_b32 v29, v3, v29, vcc")
    a("v_subrev_u32 v4, 256, v0")
    a("v_cmp_gt_u32 vcc, 128, v4")
    a("s_lshl_b32 s10, s6, 7")
    a("v_add_u32 v4, s10, v4")
    a("v_lshlrev_b32 v30, 4, v4")
    a("v_cndmask_b32 v30, v3, v30, vcc")
    def epi_loads_s():
        for kk in range(10):
            a(f"s_add_u32 s12, s88, {kk*2048}")
            a(f"buffer_load_dwordx2 v[{224+2*kk}:{225+2*kk}], v29, s[80:83], s12 offen sc1")
        a("buffer_load_dwordx4 v[120:123], v30, s[84:87], 0 offen sc1")
    TS = 3 * SSLOT
    def ssm_tprep():
        ensure_nonce("SE")
        a.label("K1S_CHK")
        a("s_waitcnt vmcnt(0)")
        a(f"v_not_b32 v3, v{VN}")
        a(f"v_cmp_eq_u32 s[10:11], v122, v{VN}")
        a("v_cmp_eq_u32 vcc, v123, v3")
        a("s_and_b64 s[10:11], s[10:11], vcc")
        a("v_mov_b32 v4, 0x7ffffff0")
        a("v_cmp_eq_u32 s[12:13], v4, v30")
        a("s_or_b64 s[10:11], s[10:11], s[12:13]")
        a("v_cmp_eq_u32 s[12:13], v4, v29")
        a("s_mov_b64 s[14:15], -1")
        for kk in range(10):
            a(f"v_cmp_eq_u32 vcc, v{225+2*kk}, v{VN}")
            a("s_and_b64 s[14:15], s[14:15], vcc")
        a("s_or_b64 s[14:15], s[14:15], s[12:13]")
        a("s_and_b64 s[10:11], s[10:11], s[14:15]")
        a("s_cmp_eq_u64 s[10:11], -1")
        a("s_cbranch_scc1 K1S_OK")
        a("s_sleep 1")
        epi_loads_s()
        a("s_branch K1S_CHK")
        a.label("K1S_OK")
        for kk in range(1, 10):
            a(f"v_add_f32 v224, v224, v{224+2*kk}")
        a("v_mul_f32 v123, v120, v121")
        a("v_lshlrev_b32 v4, 2, v0")
        a(f"v_add_u32 v4, {TS}, v4")
        a("v_cmp_gt_u32 vcc, 256, v0")
        a("s_and_saveexec_b64 s[10:11], vcc")
        a("ds_write_b32 v4, v224")
        a("s_mov_b64 exec, s[10:11]")
        a("v_subrev_u32 v5, 256, v0")
        a("v_cmp_gt_u32 vcc, 128, v5")
        a("s_and_saveexec_b64 s[10:11], vcc")
        a("ds_write_b32 v4, v121")
        a("ds_write_b32 v4, v123 offset:512")
        a("s_mov_b64 exec, s[10:11]")
    def ssm_stage(u, vm, dma, first=False, epi=False, reads=True, tprep=False):
        cur, nxt = SETS[u], SETS[1 - u]
        if vm is None: a("s_waitcnt lgkmcnt(0)")
        else: a(f"s_waitcnt vmcnt({vm}) lgkmcnt(0)")
        a("s_barrier")
        rd = reads_ssm(nxt) if reads else []
        mf = []
        for ks in range(2):
            b = cur + ks * 20
            for g in range(2):
                for part in range(2):
                    w = b + 4 + (g * 2 + part) * 4
                    ac = 128 + 32 * g + 16 * part
                    mf.append(f"v_mfma_f32_32x32x16_bf16 v[{ac}:{ac+15}], v[{b}:{b+3}], v[{w}:{w+3}], v[{ac}:{ac+15}]")
        pcs = HA if u == 0 else HB
        ri = 0
        for mi, m in enumerate(mf):
            a(m)
            if mi == 0:
                if reads: rd_addr_s(1 - u)
            elif mi < 6:
                for _ in range(3):
                    if ri < len(rd): a(rd[ri]); ri += 1
            if dma and mi in (1, 3, 5):
                dma1(*pcs[(mi - 1) // 2])
            if mi == 6:
                if dma:
                    if u == 0: adv(75, 74)
                    else: adv(79, 73)
                if epi: epi_loads_s()
                if tprep: ssm_tprep()
                if first:
                    lc = a.uid("K1C")
                    a("s_cmp_eq_u32 s1, 0")
                    a(f"s_cbranch_scc1 {lc}")
                    for ks in range(2):
                        for i in range(4):
                            for t in range(4):
                                w = cur + 20 * ks + 4 + 4 * t
                                a(f"v_dot2c_f32_bf16 v{22+t}, v{w+i}, v18")
                    if u == 1:
                        for t in range(4): a(f"v_mov_b32 v{224+2*t}, v{22+t}")
                        a("s_nop 1")
                        for t in range(4): a(f"v_permlane32_swap_b32 v{22+t}, v{224+2*t}")
                        for t in range(4): a(f"v_add_f32 v{224+2*t}, v{22+t}, v{224+2*t}")
                        ensure_nonce("SC")
                        for t in range(4): a(f"v_mov_b32 v{225+2*t}, v{VN}")
                        a("v_and_b32 v3, 31, v2")
                        a("s_lshl_b32 s10, s5, 7")
                        a("v_add_u32 v3, s10, v3")
                        a("v_lshlrev_b32 v3, 3, v3")
                        a("s_lshl_b32 s10, s0, 11")
                        a("s_add_u32 s10, s10, s88")
                        a("s_mov_b32 exec_hi, 0")
                        for t in range(4):
                            a(f"buffer_store_dwordx2 v[{224+2*t}:{225+2*t}], v3, s[80:83], s10 offen offset:{256*t} sc1")
                        a("s_mov_b32 exec_hi, -1")
                    a.label(lc)
                    if u == 1:
                        a("s_mov_b32 s77, 1")
                        stats_publish("S")
    ssm_stage(0, None, True, first=True)
    ssm_stage(1, 3, True, first=True)
    a("s_mov_b32 s77, 7")
    a.label("K1S_LOOP")
    ssm_stage(0, None, True)
    ssm_stage(1, 3, True)
    a("s_sub_u32 s77, s77, 1")
    a("s_cmp_lg_u32 s77, 0")
    a("s_cbranch_scc1 K1S_LOOP")
    ssm_stage(0, None, False, epi=True)
    ssm_stage(1, 11, False)
    ssm_stage(0, None, False, tprep=True)
    ssm_stage(1, None, False, reads=False)
    stamp(a, 2)
    a("s_waitcnt lgkmcnt(0)")
    a("s_barrier")
    if ENV("TSTAMP"): stamp(a, 20)
    a("v_and_b32 v3, 31, v2")
    a("s_lshl_b32 s10, s5, 7")
    a("v_add_u32 v3, s10, v3")
    a("v_lshlrev_b32 v3, 2, v3")
    a(f"v_add_u32 v3, {TS}, v3")
    for t in range(4):
        a(f"ds_read_b32 v{22+t}, v3 offset:{128*t}")
    a("v_lshrrev_b32 v4, 5, v2")
    a("v_lshlrev_b32 v3, 6, v4")
    a("s_lshl_b32 s10, s4, 7")
    a(f"s_add_u32 s10, s10, {TS + 1024}")
    a("v_add_u32 v3, s10, v3")
    for i in range(4):
        a(f"ds_read_b128 v[{32+4*i}:{35+4*i}], v3 offset:{16*i}")
    for i in range(4):
        a(f"ds_read_b128 v[{48+4*i}:{51+4*i}], v3 offset:{512 + 16*i}")
    a("s_waitcnt lgkmcnt(0)")
    for g in range(2):
        cr_, ci_ = PR(g, 2), PR(g, 3)
        a(f"v_mul_f32 v{240+2*g}, v{cr_}, v{22+2*g}")
        a(f"v_fma_f32 v{240+2*g}, -v{ci_}, v{23+2*g}, v{240+2*g}")
        a(f"v_mul_f32 v{241+2*g}, v{cr_}, v{23+2*g}")
        a(f"v_fma_f32 v{241+2*g}, v{ci_}, v{22+2*g}, v{241+2*g}")
    if ENV("TSTAMP"): stamp(a, 21)
    RE = lambda g, r: 128 + 32 * g + r
    IM = lambda g, r: 128 + 32 * g + 16 + r
    for r in range(0, 16, 2):
        for g in range(2):
            cr_, ci_ = PR(g, 2), PR(g, 3)
            re, im = RE(g, r), IM(g, r)
            tr_, ti_ = 64 + 4 * g, 66 + 4 * g
            vpk(a, "mul", tr_, ('p', re), ('b', cr_))
            vpk(a, "mul", ti_, ('p', im), ('b', cr_))
            vpk(a, "fma", tr_, ('p', im), ('b', ci_, 1), ('p', tr_))
            vpk(a, "fma", ti_, ('p', re), ('b', ci_), ('p', ti_))
            vpk(a, "mul", tr_, ('p', tr_), ('p', 32 + r))
            vpk(a, "mul", ti_, ('p', ti_), ('p', 32 + r))
            vpk(a, "fma", re, ('p', 48 + r), ('b', 240 + 2 * g, 1), ('p', tr_))
            vpk(a, "fma", im, ('p', 48 + r), ('b', 241 + 2 * g, 1), ('p', ti_))
        for rr in (r, r + 1):
            if rr == 0: continue
            for g in range(2):
                mr, mi = PR(g, 0), PR(g, 1)
                a(f"v_fma_f32 v{RE(g, rr)}, v{mr}, v{RE(g, rr-1)}, v{RE(g, rr)}")
                a(f"v_fma_f32 v{IM(g, rr)}, v{mr}, v{IM(g, rr-1)}, v{IM(g, rr)}")
                a(f"v_fma_f32 v{RE(g, rr)}, -v{mi}, v{IM(g, rr-1)}, v{RE(g, rr)}")
                a(f"v_fma_f32 v{IM(g, rr)}, v{mi}, v{RE(g, rr-1)}, v{IM(g, rr)}")
    if ENV("TSTAMP"): stamp(a, 22)
    EO = lambda g: 224 + 4 + 2 * g
    for g in range(2):
        a(f"v_mov_b32 v{EO(g)}, v{RE(g, 15)}")
        a(f"v_mov_b32 v{EO(g)+1}, v{IM(g, 15)}")
    a("v_lshrrev_b32 v4, 5, v2")
    a("s_lshl_b32 s10, s4, 1")
    a("v_add_u32 v21, s10, v4")
    a("v_and_b32 v3, 31, v2")
    a("s_lshl_b32 s10, s5, 6")
    a("v_add_u32 v3, s10, v3")
    a("v_lshlrev_b32 v22, 3, v3")
    a("v_lshl_add_u32 v23, v21, 10, v22")
    for g in range(2):
        a(f"ds_write_b64 v23, v[{EO(g)}:{EO(g)+1}] offset:{8192 + 256*g}")
    a("s_waitcnt lgkmcnt(0)")
    a("s_barrier")
    if ENV("TSTAMP"): stamp(a, 23)
    for g in range(2):
        for j in range(7):
            a(f"ds_read_b64 v[{32+16*g+2*j}:{33+16*g+2*j}], v22 offset:{8192 + 1024*j + 256*g}")
    for g in range(2):
        a(f"v_mov_b32 v{232+2*g}, 0")
        a(f"v_mov_b32 v{233+2*g}, 0")
    a("s_waitcnt lgkmcnt(0)")
    for j in range(7):
        if j % 2 == 0:
            a(f"s_cmp_lt_u32 s4, {j//2}")
            a("s_cbranch_scc1 K1S_HP_DONE")
            a(f"s_cmp_eq_u32 s4, {j//2}")
            a("s_cselect_b32 exec_lo, 0, -1")
        else:
            a(f"s_cmp_le_u32 s4, {j//2}")
            a("s_cbranch_scc1 K1S_HP_DONE")
        for g in range(2):
            qr, qi = PR(g, 4), PR(g, 5)
            Pr, Pi = 232 + 2 * g, 233 + 2 * g
            er, ei = 32 + 16 * g + 2 * j, 33 + 16 * g + 2 * j
            a(f"v_fma_f32 v{er}, v{qr}, v{Pr}, v{er}")
            a(f"v_fma_f32 v{ei}, v{qr}, v{Pi}, v{ei}")
            a(f"v_fma_f32 v{er}, -v{qi}, v{Pi}, v{er}")
            a(f"v_fma_f32 v{Pi}, v{qi}, v{Pr}, v{ei}")
            a(f"v_mov_b32 v{Pr}, v{er}")
    a.label("K1S_HP_DONE")
    a("s_mov_b64 exec, -1")
    mk_srd(a, 80, PWS, E_SZ, E_OFF)
    a("s_cmp_eq_u32 s4, 3")
    a("s_cbranch_scc0 K1S_NOPUB")
    for g in range(2):
        qr, qi = PR(g, 4), PR(g, 5)
        Pr, Pi = 232 + 2 * g, 233 + 2 * g
        er, ei = EO(g), EO(g) + 1
        d = 64 + 4 * g
        a(f"v_fma_f32 v{d}, v{qr}, v{Pr}, v{er}")
        a(f"v_fma_f32 v{d+1}, v{qr}, v{Pi}, v{ei}")
        a(f"v_fma_f32 v{d}, -v{qi}, v{Pi}, v{d}")
        a(f"v_fma_f32 v{d+1}, v{qi}, v{Pr}, v{d+1}")
        a(f"v_mov_b32 v{d+2}, v{VN}")
        a(f"v_not_b32 v{d+3}, v{VN}")
    a("v_lshlrev_b32 v24, 3, v7")
    a(f"s_mul_i32 s10, s6, {640*16}")
    a("s_mov_b32 exec_lo, 0")
    for g in range(2):
        a(f"buffer_store_dwordx4 v[{64+4*g}:{67+4*g}], v24, s[80:83], s10 offen offset:{512*g} sc1")
    a("s_mov_b64 exec, -1")
    a("s_nop 1")
    a.label("K1S_NOPUB")
    stamp(a, 4)
    QB = [96, 100, 104, 108, 112, 116, 120, 124, 192, 196, 200, 204, 224, 228, 8]
    def poll_loads():
        for j in range(15):
            a(f"s_cmp_le_u32 s6, {j}")
            a(f"s_cbranch_scc1 {lab_loaded}")
            a(f"s_mov_b32 s10, {j*640*16}")
            a(f"buffer_load_dwordx4 v[{QB[j]}:{QB[j]+3}], v24, s[80:83], s10 offen sc1")
    a("s_cmp_eq_u32 s4, 0")
    a("s_cbranch_scc0 K1S_NP1")
    a("v_add_u32 v24, s68, v2")
    a("v_lshlrev_b32 v24, 4, v24")
    lab_loaded = "K1S_LD0"
    poll_loads()
    a.label("K1S_LD0")
    a.label("K1S_NP1")
    PWR = lambda g, r: 32 + 32 * g + r
    PWI = lambda g, r: 48 + 32 * g + r
    for g in range(2):
        a(f"v_mov_b32 v{PWR(g,0)}, v{PR(g,0)}")
        a(f"v_mov_b32 v{PWI(g,0)}, v{PR(g,1)}")
    for r in range(1, 16):
        for g in range(2):
            mr, mi = PR(g, 0), PR(g, 1)
            a(f"v_mul_f32 v{PWR(g,r)}, v{mr}, v{PWR(g,r-1)}")
            a(f"v_mul_f32 v{PWI(g,r)}, v{mr}, v{PWI(g,r-1)}")
            a(f"v_fma_f32 v{PWR(g,r)}, -v{mi}, v{PWI(g,r-1)}, v{PWR(g,r)}")
            a(f"v_fma_f32 v{PWI(g,r)}, v{mi}, v{PWR(g,r-1)}, v{PWI(g,r)}")
    for g in range(2):
        a(f"v_mov_b32 v{236+2*g}, 1.0")
        a(f"v_mov_b32 v{237+2*g}, 0")
    for j in range(7):
        if j % 2 == 0:
            a(f"s_cmp_lt_u32 s4, {j//2}")
            a("s_cbranch_scc1 K1S_SG_DONE")
            a(f"s_cmp_eq_u32 s4, {j//2}")
            a("s_cselect_b32 exec_lo, 0, -1")
        else:
            a(f"s_cmp_le_u32 s4, {j//2}")
            a("s_cbranch_scc1 K1S_SG_DONE")
        for g in range(2):
            qr, qi = PR(g, 4), PR(g, 5)
            wr, wi = 236 + 2 * g, 237 + 2 * g
            a(f"v_mul_f32 v242, v{qr}, v{wr}")
            a(f"v_mul_f32 v243, v{qr}, v{wi}")
            a(f"v_fma_f32 v242, -v{qi}, v{wi}, v242")
            a(f"v_fma_f32 v{wi}, v{qi}, v{wr}, v243")
            a(f"v_mov_b32 v{wr}, v242")
    a.label("K1S_SG_DONE")
    a("s_mov_b64 exec, -1")
    if ENV("TSTAMP"): stamp(a, 24)
    a("s_cmp_eq_u32 s4, 0")
    a("s_cbranch_scc1 K1S_POLLER")
    a("s_branch K1S_NOPOLL")
    a.label("K1S_POLLER")
    a("v_cmp_lt_u32 vcc, 31, v2")
    a("v_mov_b32 v244, 0")
    a("v_mov_b32 v245, 0")
    a(f"v_cndmask_b32 v246, v{PR(0,6)}, v{PR(1,6)}, vcc")
    a(f"v_cndmask_b32 v26, v{PR(0,7)}, v{PR(1,7)}, vcc")
    a(f"v_not_b32 v25, v{VN}")
    a("s_cmp_eq_u32 s6, 0")
    a("s_cbranch_scc1 K1S_HDONE")
    a("s_mov_b32 s14, 200000")
    a("s_branch K1S_LOADED")
    a.label("K1S_POLL")
    lab_loaded = "K1S_LOADED"
    poll_loads()
    a.label("K1S_LOADED")
    a("s_waitcnt vmcnt(0)")
    a("s_mov_b64 s[12:13], -1")
    for j in range(15):
        a(f"s_cmp_le_u32 s6, {j}")
        a("s_cbranch_scc1 K1S_CHK2")
        a(f"v_cmp_eq_u32 vcc, v{QB[j]+2}, v{VN}")
        a(f"v_cmp_eq_u32 s[10:11], v{QB[j]+3}, v25")
        a("s_and_b64 s[12:13], s[12:13], vcc")
        a("s_and_b64 s[12:13], s[12:13], s[10:11]")
    a.label("K1S_CHK2")
    a("s_cmp_eq_u64 s[12:13], -1")
    a("s_cbranch_scc1 K1S_VALID")
    a("s_sub_u32 s14, s14, 1")
    a("s_cmp_eq_u32 s14, 0")
    a("s_cbranch_scc1 K1S_VALID")
    a("s_branch K1S_POLL")
    a.label("K1S_VALID")
    for j in range(15):
        a(f"s_cmp_le_u32 s6, {j}")
        a("s_cbranch_scc1 K1S_HDONE")
        a(f"v_fma_f32 v240, v246, v244, v{QB[j]}")
        a(f"v_fma_f32 v241, v246, v245, v{QB[j]+1}")
        a(f"v_fma_f32 v240, -v26, v245, v240")
        a(f"v_fma_f32 v245, v26, v244, v241")
        a("v_mov_b32 v244, v240")
    a.label("K1S_HDONE")
    a("s_lshl_b32 s10, s5, 6")
    a("v_add_u32 v3, s10, v2")
    a("v_lshlrev_b32 v3, 3, v3")
    a("ds_write_b64 v3, v[244:245] offset:16384")
    a("s_waitcnt lgkmcnt(0)")
    a.label("K1S_NOPOLL")
    a("s_barrier")
    stamp(a, 5)
    for g in range(2):
        a(f"ds_read_b64 v[{240+2*g}:{241+2*g}], v22 offset:{16384 + 256*g}")
    a("s_waitcnt lgkmcnt(0)")
    for g in range(2):
        Pr, Pi, wr, wi, Hr, Hi = 232 + 2 * g, 233 + 2 * g, 236 + 2 * g, 237 + 2 * g, 240 + 2 * g, 241 + 2 * g
        a(f"v_fma_f32 v{Pr}, v{wr}, v{Hr}, v{Pr}")
        a(f"v_fma_f32 v{Pi}, v{wr}, v{Hi}, v{Pi}")
        a(f"v_fma_f32 v{Pr}, -v{wi}, v{Hi}, v{Pr}")
        a(f"v_fma_f32 v{Pi}, v{wi}, v{Hr}, v{Pi}")
    for g in range(2):
        Cr, Ci = 232 + 2 * g, 233 + 2 * g
        for r in range(0, 16, 2):
            vpk(a, "fma", RE(g, r), ('p', PWR(g, r)), ('b', Cr), ('p', RE(g, r)))
            vpk(a, "fma", IM(g, r), ('p', PWR(g, r)), ('b', Ci), ('p', IM(g, r)))
            vpk(a, "fma", RE(g, r), ('p', PWI(g, r)), ('b', Ci, 1), ('p', RE(g, r)))
            vpk(a, "fma", IM(g, r), ('p', PWI(g, r)), ('b', Cr), ('p', IM(g, r)))
    if ENV("TSTAMP"): stamp(a, 25)
    a("s_mul_i32 s10, s3, 10240")
    a("s_add_u32 s10, s10, 20480")
    a("v_and_b32 v3, 31, v2")
    a("v_mul_u32_u24 v3, 80, v3")
    a("v_lshrrev_b32 v4, 5, v2")
    a("v_lshl_add_u32 v3, v4, 5, v3")
    a("v_add_u32 v28, s10, v3")
    for g in range(2):
        for part in range(2):
            src = 128 + 32 * g + 16 * part
            neg = "-" if part else ""
            pk = 32 + 8 * (g * 2 + part)
            for i in range(8):
                a(f"v_cvt_pk_bf16_f32 v{pk+i}, {neg}v{src+2*i}, {neg}v{src+2*i+1}")
            off = (g * 2 + part) * 2560
            a(f"ds_write_b128 v28, v[{pk}:{pk+3}] offset:{off}")
            a(f"ds_write_b128 v28, v[{pk+4}:{pk+7}] offset:{off+16}")
    a("v_lshrrev_b32 v3, 4, v2")
    a("v_lshlrev_b32 v3, 3, v3")
    a("v_bfe_u32 v4, v2, 2, 2")
    a("v_add_u32 v3, v3, v4")
    a("v_mul_u32_u24 v3, 80, v3")
    a("v_and_b32 v4, 3, v2")
    a("v_lshl_add_u32 v3, v4, 3, v3")
    a("v_add_u32 v29, s10, v3")
    a("v_lshlrev_b32 v30, 4, v2")
    a("s_lshl_b32 s10, s6, 1")
    a("s_lshr_b32 s11, s4, 1")
    a("s_add_u32 s10, s10, s11")
    a("s_mul_i32 s10, s10, 94")
    a("s_lshr_b32 s11, s68, 4")
    a("s_add_u32 s10, s10, s11")
    a("s_lshl_b32 s10, s10, 12")
    a("s_and_b32 s11, s4, 1")
    a("s_lshl_b32 s11, s11, 11")
    a("s_add_u32 s10, s10, s11")
    a("s_waitcnt lgkmcnt(0)")
    for g in range(2):
        for part in range(2):
            off = (g * 2 + part) * 2560
            for i in range(2):
                b = 64 + ((g * 2 + part) * 2 + i) * 4
                a(f"ds_read_b64_tr_b16 v[{b}:{b+1}], v29 offset:{off + 32*i}")
                a(f"ds_read_b64_tr_b16 v[{b+2}:{b+3}], v29 offset:{off + 32*i + 320}")
    a("s_waitcnt lgkmcnt(0)")
    for g in range(2):
        for part in range(2):
            for i in range(2):
                b = 64 + ((g * 2 + part) * 2 + i) * 4
                a(f"s_add_u32 s11, s10, {(2*g + part)*4096 + i*1024}")
                a(f"buffer_store_dwordx4 v[{b}:{b+3}], v30, s[64:67], s11 offen sc1")
    def ws_():
        a("s_lshl_b32 s10, s6, 2")
        a("s_add_u32 s10, s10, 64")
    def gs_():
        a("s_lshl_b32 s11, s6, 7")
        a(f"s_add_u32 s11, s11, {GO_OFF + 4096}")
    phase1_done("S", ws_, 5, gs_, 1)
    stamp(a, 3); stamp_flush(a, 0)
    a.label("PHASE2")
    import gen_p2
    gen_p2.gen_phase2(a)
    a.label("K1_END")
    a("s_endpgm")

def build(path):
    a = Asm()
    a.raw(HDR.rstrip("\n"))
    a.raw(f"; @launch grid=(256,1,1) block=(512,1,1) lds={K1_LDS}")
    a.raw('.amdgcn_target "amdgcn-amd-amdhsa--gfx950"')
    a.raw(".text")
    gen_k1(a)
    a.raw('.section .rodata,"a"')
    a.raw(descriptor(KNAME, 256, 102, 256))
    t = a.text()
    open(path, "w").write(t)
    lint(t)

if __name__ == "__main__":
    build(sys.argv[1] if len(sys.argv) > 1 else "v8.s")
```

```python
import sys, os, struct
from asmlib import *
from gen1 import (HDR, SRD3, P, PX, PLRE, PLIM, PBRE, PBIM, PCRE, PCIM, PLDT, PDSK, PBX, PWG, PWU, PWD, POUT, PDBG, PWS,
                  load_args, mk_srd, sdiv, vdiv, kernel_begin, descriptor, stamp, stamp_flush, STAMP)
ENV = os.environ.get

AF_OFF = 4 << 20
BF_OFF = 20 << 20
E_OFF = 28 << 20
ST_OFF = 29 << 20
CS_OFF = 30 << 20
GO_OFF = 31 << 20
X_SZ = 2048 * 1280
AF_SZ = 32 * 94 * 4096
BF_SZ = 8 * 94 * 5120
E_SZ = 16 * 640 * 16
ST_SZ = 2048 * 16
CSF_SZ = 11 * 10 * 320 * 8
CSS_SZ = 5 * 10 * 256 * 8
CS_SZ = CSF_SZ + CSS_SZ
LOG2E = 1.4426950408889634
def f32hex(x): return "0x%08x" % struct.unpack("<I", struct.pack("<f", x))[0]

XSLOT = 16384
FX0 = 0
FW0 = 3 * XSLOT
GU = 10240 + 32
WSLOT = 20544
SSLOT = 49152
SPARE = FW0 + 5 * WSLOT
K1_LDS = 163840
NST = 20
KNAME = "recurrent_scan__ssm_conv_s5__geglu_ffn__prompt_kernel"
VN = 247

def vpk(a, op, dst, *srcs):
    ops, sel, selhi, neg = [], [], [], []
    for sx in srcs:
        k, r = sx[0], sx[1]
        n = 1 if (len(sx) > 2 and sx[2]) else 0
        if k == 'p': assert r % 2 == 0; ops.append(f"v[{r}:{r+1}]"); sel.append(0); selhi.append(1)
        elif k == 'b': e = r & ~1; ops.append(f"v[{e}:{e+1}]"); sel.append(r & 1); selhi.append(r & 1)
        elif k == 's': ops.append(f"s[{r}:{r+1}]"); sel.append(0); selhi.append(1)
        neg.append(n)
    assert dst % 2 == 0
    t = f"v_pk_{op}_f32 v[{dst}:{dst+1}], " + ", ".join(ops)
    f = lambda l: "[" + ",".join(map(str, l)) + "]"
    if any(sel): t += f" op_sel:{f(sel)}"
    if not all(selhi): t += f" op_sel_hi:{f(selhi)}"
    if any(neg): t += f" neg_lo:{f(neg)} neg_hi:{f(neg)}"
    a(t)

def gen_k1(a):
    kernel_begin(a, KNAME)
    a("s_cmp_ge_u32 s2, 256")
    a("s_cbranch_scc1 K1_END")
    load_args(a)
    a("v_lshrrev_b32 v1, 6, v0")
    a("v_and_b32 v2, 63, v0")
    a("s_and_b32 s8, s2, 7")
    a("v_readfirstlane_b32 s3, v1")
    a("s_lshr_b32 s9, s2, 3")
    if not ENV("MAP1"):
        a("s_lshr_b32 s6, s8, 1")
        a("s_lshl_b32 s6, s6, 2")
        a("s_and_b32 s10, s9, 3")
        a("s_add_u32 s6, s6, s10")
        a("s_and_b32 s7, s8, 1")
        a("s_lshl_b32 s7, s7, 3")
        a("s_lshr_b32 s10, s9, 2")
        a("s_add_u32 s7, s7, s10")
    else:
        a("s_and_b32 s6, s8, 1")
        a("s_lshl_b32 s6, s6, 3")
        a("s_and_b32 s10, s9, 7")
        a("s_add_u32 s6, s6, s10")
        a("s_lshr_b32 s7, s8, 1")
        a("s_lshl_b32 s7, s7, 2")
        a("s_lshr_b32 s10, s9, 3")
        a("s_add_u32 s7, s7, s10")
    a("s_and_b32 s4, s3, 3")
    a("s_lshr_b32 s5, s3, 2")
    a("s_add_u32 s11, s6, s7")
    for _ in range(3):
        a("s_sub_u32 s12, s11, 10")
        a("s_cmp_ge_u32 s11, 10")
        a("s_cselect_b32 s11, s12, s11")
    a("s_mov_b32 s0, s11")
    a("s_lshl_b32 s10, s6, 7")
    a("s_lshl_b32 s11, s3, 4")
    a("s_add_u32 s10, s10, s11")
    a("v_lshrrev_b32 v3, 3, v2")
    a("v_add_u32 v4, s10, v3")
    a("v_mul_u32_u24 v8, 1280, v4")
    a("v_and_b32 v5, 7, v2")
    a("v_lshrrev_b32 v6, 4, v2")
    a("v_xor_b32 v26, v5, v6")
    a("v_xor_b32 v27, 4, v26")
    a(f"v_add_u32 v9, {8*1280}, v8")
    a("v_lshl_add_u32 v8, v26, 4, v8")
    a("v_lshl_add_u32 v9, v27, 4, v9")
    a("v_mov_b32 v18, 0x3f803f80")
    a("s_lshl_b32 s69, s3, 11")
    a("s_lshl_b32 s74, s0, 7")
    a("s_waitcnt lgkmcnt(0)")
    if STAMP: a("v_mov_b32 v255, 0")
    stamp(a, 0)
    mk_srd(a, 48, PX, X_SZ)
    a("s_or_b32 s10, s2, s3")
    a("s_cmp_eq_u32 s10, 0")
    a("s_cbranch_scc0 K1_NONC")
    a("s_memrealtime s[92:93]")
    a("s_waitcnt lgkmcnt(0)")
    a("s_or_b32 s92, s92, 1")
    a("v_mov_b32 v3, s92")
    a("v_mov_b32 v4, 0")
    a(f"global_store_dword v4, v3, s[{PDBG}:{PDBG+1}] sc1")
    a.label("K1_NONC")
    a("s_cmp_lt_u32 s3, 6")
    a("s_cbranch_scc1 K1_NOSJ")
    a("s_lshl_b32 s10, s2, 3")
    a("s_sub_u32 s11, s3, 6")
    a("s_lshl_b32 s11, s11, 2")
    a("s_add_u32 s10, s10, s11")
    a("v_add_u32 v28, s10, v6")
    a("v_mul_u32_u24 v3, 1280, v28")
    a("v_and_b32 v4, 15, v2")
    a("v_lshl_add_u32 v3, v4, 4, v3")
    for i in range(5):
        a(f"buffer_load_dwordx4 v[{208+4*i}:{211+4*i}], v3, s[48:51], 0 offen offset:{256*i}")
    a.label("K1_NOSJ")
    mk_srd(a, 64, PWS, AF_SZ, AF_OFF)
    mk_srd(a, 96, PWS, BF_SZ, BF_OFF)

    SJ_LDS = SSLOT
    CREG = [192, 196, 200, 204]
    def c_frag_load(dst, sdst):
        sdiv(a, 11, 10, 200)
        a("s_mul_i32 s12, s11, 200")
        a("s_sub_u32 s12, s10, s12")
        sdiv(a, 13, 12, 5)
        a("s_mul_i32 s14, s13, 5")
        a("s_sub_u32 s14, s12, s14")
        a("s_bitcmp1_b32 s13, 0")
        a(f"s_cselect_b32 s52, s{PCIM}, s{PCRE}")
        a(f"s_cselect_b32 s53, s{PCIM+1}, s{PCRE+1}")
        a(f"s_mov_b32 s54, {640*1280}")
        a(f"s_mov_b32 s55, {SRD3:#x}")
        a("s_mul_i32 s15, s11, 80")
        a("s_lshl_b32 s56, s14, 4")
        a("s_add_u32 s15, s15, s56")
        a("v_and_b32 v3, 15, v2")
        a("v_add_u32 v3, s15, v3")
        a("v_mul_u32_u24 v3, 1280, v3")
        a("v_lshrrev_b32 v4, 4, v2")
        a("v_lshl_add_u32 v3, v4, 4, v3")
        a("s_lshr_b32 s15, s13, 1")
        a("s_lshl_b32 s15, s15, 6")
        a(f"buffer_load_dwordx4 v[{dst}:{dst+3}], v3, s[52:55], s15 offen")
        a(f"s_mul_i32 s{sdst}, s11, 94")
        a(f"s_add_u32 s{sdst}, s{sdst}, s13")
        a(f"s_mul_i32 s{sdst}, s{sdst}, 5")
        a(f"s_add_u32 s{sdst}, s{sdst}, s14")
        a(f"s_lshl_b32 s{sdst}, s{sdst}, 10")
    CDST = [100, 89, 90, 91]
    def side_jobs_issue():
        l0, l2 = a.uid("K1_NOSJ"), a.uid("K1_NOW")
        a("s_cmp_eq_u32 s4, 0")
        a(f"s_cbranch_scc1 {l0}")
        a("s_mul_i32 s57, s6, 5")
        a("s_add_u32 s57, s57, s7")
        a("s_mul_i32 s57, s57, 6")
        a("s_mul_i32 s10, s5, 3")
        a("s_add_u32 s10, s10, s4")
        a("s_sub_u32 s10, s10, 1")
        a("s_add_u32 s57, s57, s10")
        a("s_mov_b32 s58, s10")
        for k in range(4):
            lk = a.uid("K1_NC")
            a(f"s_add_u32 s10, s57, {480*k}")
            if k == 3:
                a("s_cmp_ge_u32 s10, 1600")
                a(f"s_cbranch_scc1 {lk}")
            c_frag_load(CREG[k], CDST[k])
            a.label(lk)
        a("s_cmp_ge_u32 s57, 432")
        a(f"s_cbranch_scc1 {l2}")
        sdiv(a, 13, 57, 54)
        a("s_mul_i32 s12, s13, 54")
        a("s_sub_u32 s12, s57, s12")
        mk_srd(a, 52, PWD, 1728 * 1280)
        a(f"s_mul_i32 s14, s12, {32*1280}")
        a("s_mul_i32 s15, s13, 160")
        a("s_add_u32 s14, s14, s15")
        a("s_mul_i32 s101, s13, 94")
        a("s_add_u32 s101, s101, s12")
        a("s_add_u32 s101, s101, 40")
        a("s_mul_i32 s101, s101, 5120")
        a("s_mul_i32 s10, s58, 5120")
        a(f"s_add_u32 s10, s10, {SJ_LDS}")
        for i in range(5):
            a(f"v_add_u32 v3, {64*i}, v2")
            vdiv(a, 4, 3, 10, 15)
            a("v_mul_u32_u24 v5, 10, v4")
            a("v_sub_u32 v5, v3, v5")
            a("v_mul_u32_u24 v4, 1280, v4")
            a("v_lshl_add_u32 v4, v5, 4, v4")
            a(f"s_add_u32 m0, s10, {1024*i}")
            a("s_nop 0")
            a("buffer_load_dwordx4 v4, s[52:55], s14 offen lds")
        a.label(l2)
        a.label(l0)

    def side_jobs_finish(tag, vbase=96):
        l1, l2 = f"K1_SJ1_{tag}", f"K1_SJ2_{tag}"
        a("s_waitcnt vmcnt(0)")
        a("v_lshlrev_b32 v5, 4, v2")
        for k in range(3):
            a(f"buffer_store_dwordx4 v[{CREG[k]}:{CREG[k]+3}], v5, s[96:99], s{CDST[k]} offen sc1")
        a("s_add_u32 s10, s57, 1440")
        a("s_cmp_ge_u32 s10, 1600")
        a(f"s_cbranch_scc1 {l1}")
        a(f"buffer_store_dwordx4 v[{CREG[3]}:{CREG[3]+3}], v5, s[96:99], s{CDST[3]} offen sc1")
        a.label(l1)
        a("s_cmp_ge_u32 s57, 432")
        a(f"s_cbranch_scc1 {l2}")
        a("v_lshrrev_b32 v6, 5, v2")
        a("v_lshlrev_b32 v6, 4, v6")
        a("v_bfe_u32 v4, v2, 4, 1")
        a("v_lshl_add_u32 v6, v4, 2, v6")
        a("v_bfe_u32 v4, v2, 2, 2")
        a("v_add_u32 v6, v6, v4")
        a("v_mul_u32_u24 v6, 160, v6")
        a("v_and_b32 v4, 3, v2")
        a("v_lshl_add_u32 v6, v4, 3, v6")
        a("s_mul_i32 s14, s58, 5120")
        a(f"s_add_u32 s14, s14, {SJ_LDS}")
        a("v_add_u32 v6, s14, v6")
        for j in range(5):
            a(f"ds_read_b64_tr_b16 v[{vbase+4*j}:{vbase+1+4*j}], v6 offset:{32*j}")
            a(f"ds_read_b64_tr_b16 v[{vbase+2+4*j}:{vbase+3+4*j}], v6 offset:{32*j+8*160}")
        a("s_waitcnt lgkmcnt(0)")
        for j in range(5):
            a(f"s_add_u32 s14, s101, {1024*j}")
            a(f"buffer_store_dwordx4 v[{vbase+4*j}:{vbase+3+4*j}], v5, s[96:99], s14 offen sc1")
        a.label(l2)
        a("s_waitcnt vmcnt(0)")

    def arrive_issue(tag, word_off):
        l = f"K1_AI_{tag}"
        a("s_cmp_eq_u32 s3, 0")
        a(f"s_cbranch_scc0 {l}")
        word_off()
        a("v_mov_b32 v31, s10")
        a("v_mov_b32 v27, 1")
        a("s_mov_b64 s[12:13], exec")
        a("s_mov_b64 exec, 1")
        a(f"global_atomic_add v31, v31, v27, s[{PDBG}:{PDBG+1}] sc0 sc1")
        a("s_mov_b64 exec, s[12:13]")
        a.label(l)
    def arrive_check(tag, total, go_expr, nrep):
        l = f"K1_AC_{tag}"
        a("s_cmp_eq_u32 s3, 0")
        a(f"s_cbranch_scc0 {l}")
        a("s_waitcnt vmcnt(0)")
        a("v_readfirstlane_b32 s10, v31")
        a(f"s_cmp_eq_u32 s10, {total-1}")
        a(f"s_cbranch_scc0 {l}")
        go_expr()
        a("v_lshlrev_b32 v27, 7, v2")
        a("v_add_u32 v27, s11, v27")
        a(f"s_mov_b64 exec, {(1 << nrep) - 1:#x}" if nrep < 32 else "s_mov_b32 exec_hi, 0")
        a(f"global_store_dword v27, v{VN}, s[{PWS}:{PWS+1}] sc1")
        a("s_mov_b64 exec, -1")
        a.label(l)
    def arrive(tag, word_off, total, go_expr, nrep):
        arrive_issue(tag, word_off)
        arrive_check(tag, total, go_expr, nrep)

    def phase1_done(tag, word_off, total, go_expr, nrep):
        stamp(a, 26)
        a("s_waitcnt vmcnt(0)")
        a("s_barrier")
        arrive(tag, word_off, total, go_expr, nrep)

    def ensure_nonce(tag):
        l0, l1 = f"K1_EN0_{tag}", f"K1_EN1_{tag}"
        a(f"v_readfirstlane_b32 s10, v{VN}")
        a("s_cmp_lg_u32 s10, 0")
        a(f"s_cbranch_scc1 {l1}")
        a("v_mov_b32 v3, 0")
        a("s_mov_b32 s11, 2000000")
        a.label(l0)
        a(f"global_load_dword v{VN}, v3, s[{PDBG}:{PDBG+1}] sc1")
        a("s_waitcnt vmcnt(0)")
        a(f"v_readfirstlane_b32 s10, v{VN}")
        a("s_sub_u32 s11, s11, 1")
        a("s_cmp_eq_u32 s11, 0")
        a(f"s_cbranch_scc1 {l1}")
        a("s_cmp_eq_u32 s10, 0")
        a(f"s_cbranch_scc1 {l0}")
        a.label(l1)

    def nonce_load():
        a("v_mov_b32 v3, 0")
        a(f"global_load_dword v{VN}, v3, s[{PDBG}:{PDBG+1}] sc1")

    def stats_job(tag, younger):
        l = f"K1_SJ_{tag}"
        a("s_cmp_lt_u32 s3, 6")
        a(f"s_cbranch_scc1 {l}")
        a(f"s_waitcnt vmcnt({younger})")
        a("v_mov_b32 v19, 0"); a("v_mov_b32 v20, 0"); a("v_mov_b32 v21, 0"); a("v_mov_b32 v22, 0")
        for i in range(20):
            a(f"v_dot2c_f32_bf16 v{19 + (i & 1)}, v{208+i}, v18")
            a(f"v_dot2c_f32_bf16 v{21 + (i & 1)}, v{208+i}, v{208+i}")
        a("s_nop 2")
        a("v_add_f32 v19, v19, v20")
        a("v_add_f32 v20, v21, v22")
        for sh in (8, 4, 2, 1):
            a("s_nop 1")
            a(f"v_add_f32_dpp v19, v19, v19 row_ror:{sh} row_mask:0xf bank_mask:0xf")
            a(f"v_add_f32_dpp v20, v20, v20 row_ror:{sh} row_mask:0xf bank_mask:0xf")
        a(f"v_mul_f32 v19, {f32hex(1.0/640)}, v19")
        a(f"v_mul_f32 v20, {f32hex(1.0/640)}, v20")
        a("v_fma_f32 v20, -v19, v19, v20")
        a("v_max_f32 v20, 0, v20")
        a("v_cvt_pk_bf16_f32 v21, v19, v20")
        a("v_lshlrev_b32 v238, 16, v21")
        a("v_and_b32 v21, 0xffff0000, v21")
        a("v_add_f32 v21, 0x3727c5ac, v21")
        a("v_cvt_pk_bf16_f32 v21, v21, v21")
        a("v_and_b32 v21, 0xffff0000, v21")
        a("v_sqrt_f32 v21, v21")
        a("s_nop 0")
        a("v_cvt_pk_bf16_f32 v21, v21, v21")
        a("v_and_b32 v21, 0xffff0000, v21")
        a("v_rcp_f32 v239, v21")
        a.label(l)

    def stats_publish(tag):
        l = f"K1_SP_{tag}"
        a("s_cmp_lt_u32 s3, 6")
        a(f"s_cbranch_scc1 {l}")
        a("s_cmp_eq_u32 s77, 1")
        a(f"s_cbranch_scc0 {l}")
        ensure_nonce(tag + "P")
        a("v_mov_b32 v240, v238")
        a("v_mov_b32 v241, v239")
        a(f"v_mov_b32 v242, v{VN}")
        a(f"v_not_b32 v243, v{VN}")
        a("v_lshlrev_b32 v3, 4, v28")
        a("v_and_b32 v4, 15, v2")
        a("v_cmp_eq_u32 vcc, 0, v4")
        a("s_and_saveexec_b64 s[10:11], vcc")
        a("buffer_store_dwordx4 v[240:243], v3, s[84:87], 0 offen sc1")
        a("s_mov_b64 exec, s[10:11]")
        a.label(l)

    a("s_cmp_ge_u32 s7, 11")
    a("s_cbranch_scc1 K1_SSM")

    a(f"s_mov_b32 s79, {FX0}")
    def dma_x(slotreg, step, base, end):
        a(f"s_add_u32 m0, s{slotreg}, s69")
        a("s_nop 0")
        a("buffer_load_dwordx4 v8, s[48:51], s74 offen lds")
        a("s_add_u32 m0, m0, 1024")
        a("s_nop 0")
        a("buffer_load_dwordx4 v9, s[48:51], s74 offen lds")
        adv_x(slotreg, step, base, end)
    def adv_x(slotreg, step, base, end):
        a("s_add_u32 s74, s74, 128")
        a("s_cmp_ge_u32 s74, 1280")
        a("s_cselect_b32 s74, 0, s74")
        a(f"s_add_u32 s{slotreg}, s{slotreg}, {step}")
        a(f"s_cmp_ge_u32 s{slotreg}, {end}")
        a(f"s_cselect_b32 s{slotreg}, {base}, s{slotreg}")
    fx = lambda: dma_x(79, XSLOT, FX0, FX0 + 3 * XSLOT)
    fx()
    if ENV("PSTAMP"): stamp(a, 20)
    mk_srd(a, 52, PWG, 640 * 3456)
    a("s_cmp_lt_u32 s3, 2")
    a(f"s_cselect_b32 s56, s{PWG}, s{PWU}")
    a(f"s_cselect_b32 s57, s{PWG+1}, s{PWU+1}")
    a(f"s_mov_b32 s58, {640*3456}")
    a(f"s_mov_b32 s59, {SRD3:#x}")
    mk_srd(a, 60, PWU, 640 * 3456)
    a("s_add_u32 s10, s3, 8")
    a("s_sub_u32 s11, s3, 2")
    a("s_cmp_lt_u32 s3, 2")
    a("s_cselect_b32 s10, s10, s11")
    a(f"s_mov_b32 s12, {GU}")
    a("s_cselect_b32 s11, 0, s12")
    a("s_lshl_b32 s12, s10, 10")
    a("s_add_u32 s71, s12, s11")
    a("s_lshl_b32 s70, s3, 10")
    a(f"s_add_u32 s72, s70, {GU + 6*1024}")
    def woff(dst, sidx):
        a(f"s_lshl_b32 s12, {sidx}, 6")
        a("v_add_u32 v3, s12, v2")
        vdiv(a, 4, 3, 20, 13)
        a("v_mul_u32_u24 v5, 20, v4")
        a("v_sub_u32 v5, v3, v5")
        a("v_mul_u32_u24 v4, 3456, v4")
        a(f"v_lshl_add_u32 v{dst}, v5, 4, v4")
    woff(10, "s3")
    woff(11, "s10")
    a("s_add_u32 s11, s3, 6")
    woff(12, "s11")
    a("s_mul_i32 s1, s7, 320")
    a(f"s_mul_i32 s73, s0, {64*3456}")
    a("s_add_u32 s73, s73, s1")
    a(f"s_add_u32 s1, s1, {640*3456}")
    a(f"s_mov_b32 s75, {FW0}")
    def adv_w():
        a(f"s_add_u32 s73, s73, {32*3456}")
        a(f"s_sub_u32 s12, s73, {640*3456}")
        a("s_cmp_ge_u32 s73, s1")
        a("s_cselect_b32 s73, s12, s73")
        a(f"s_add_u32 s75, s75, {WSLOT}")
        a(f"s_cmp_ge_u32 s75, {FW0 + 5*WSLOT}")
        a(f"s_cselect_b32 s75, {FW0}, s75")
    def dma_w():
        a("s_add_u32 m0, s75, s70")
        a("s_nop 0")
        a("buffer_load_dwordx4 v10, s[52:55], s73 offen lds")
        a("s_add_u32 m0, s75, s71")
        a("s_nop 0")
        a("buffer_load_dwordx4 v11, s[56:59], s73 offen lds")
        l = a.uid("K1F3")
        a("s_cmp_lt_u32 s3, 4")
        a(f"s_cbranch_scc0 {l}")
        a("s_add_u32 m0, s75, s72")
        a("s_nop 0")
        a("buffer_load_dwordx4 v12, s[60:63], s73 offen lds")
        a.label(l)
        adv_w()
    dma_w()
    a("s_barrier")
    if ENV("PSTAMP"): stamp(a, 21)
    dma_w()
    if ENV("PSTAMP"): stamp(a, 22)
    a("v_and_b32 v3, 31, v2")
    a("s_lshl_b32 s10, s4, 5")
    a("v_add_u32 v4, s10, v3")
    a("v_lshlrev_b32 v13, 7, v4")
    a("v_bfe_u32 v5, v2, 1, 3")
    a("v_lshrrev_b32 v4, 5, v2")
    a("v_xor_b32 v4, v4, v5")
    a("v_lshl_add_u32 v13, v4, 4, v13")
    a("v_lshrrev_b32 v3, 5, v2")
    a("v_lshlrev_b32 v3, 3, v3")
    a("v_bfe_u32 v4, v2, 2, 2")
    a("v_add_u32 v3, v3, v4")
    a("v_mul_u32_u24 v14, 320, v3")
    a("v_and_b32 v4, 3, v2")
    a("v_lshl_add_u32 v14, v4, 3, v14")
    a("v_bfe_u32 v4, v2, 4, 1")
    a(f"v_mul_u32_u24 v4, {GU}, v4")
    a("v_add_u32 v14, v14, v4")
    a("s_mul_i32 s10, s5, 160")
    a("v_add_u32 v14, s10, v14")
    for i in range(80):
        a(f"v_mov_b32 v{128+i}, 0")
    a("s_cmp_eq_u32 s4, s5")
    a("s_cselect_b32 s68, 1, 0")
    a("s_cmp_lt_u32 s6, 10")
    a("s_cselect_b32 s68, s68, 0")
    if ENV("PSTAMP"): stamp(a, 23)
    stats_job("F", 6)
    if ENV("PSTAMP"): stamp(a, 24)
    for i in range(21, 26):
        a(f"v_mov_b32 v{i}, 0")
    a("s_cmp_lt_u32 s3, 4")
    a("s_cbranch_scc1 K1F_P1")
    a(f"s_waitcnt vmcnt(2)")
    a.label("K1F_P1")
    a(f"s_waitcnt vmcnt(3)")
    if ENV("PSTAMP"): stamp(a, 25)
    a("s_barrier")
    stamp(a, 1)
    SETS = (32, 80)
    def reads_ffn(setb):
        out = [f"ds_read_b128 v[{setb}:{setb+3}], v15", f"ds_read_b128 v[{setb+4}:{setb+7}], v16"]
        for ks in range(2):
            for j in range(5):
                b = setb + 8 + (ks * 5 + j) * 4
                off = ks * 5120 + j * 32
                out.append(f"ds_read_b64_tr_b16 v[{b}:{b+1}], v17 offset:{off}")
                out.append(f"ds_read_b64_tr_b16 v[{b+2}:{b+3}], v17 offset:{off+1280}")
        return out
    def rd_addr(uprime):
        a("v_add_u32 v15, s78, v13")
        if uprime: a("v_xor_b32 v15, 64, v15")
        a("v_xor_b32 v16, 32, v15")
        a("v_add_u32 v17, s76, v14")
        a(f"s_add_u32 s76, s76, {WSLOT}")
        a(f"s_cmp_ge_u32 s76, {FW0 + 5*WSLOT}")
        a(f"s_cselect_b32 s76, {FW0}, s76")
        if uprime:
            a(f"s_add_u32 s78, s78, {XSLOT}")
            a(f"s_cmp_ge_u32 s78, {FX0 + 3*XSLOT}")
            a(f"s_cselect_b32 s78, {FX0}, s78")
    a(f"s_mov_b32 s76, {FW0}")
    a(f"s_mov_b32 s78, {FX0}")
    rd_addr(0)
    for r in reads_ffn(SETS[0]): a(r)
    nonce_load()
    dma_w(); fx()
    mk_srd(a, 80, PWS, CS_SZ, CS_OFF)
    mk_srd(a, 84, PWS, ST_SZ, ST_OFF)
    a("v_lshlrev_b32 v29, 3, v0")
    a("v_cmp_gt_u32 vcc, 320, v0")
    a("v_mov_b32 v3, 0x7ffffff0")
    a("s_mul_i32 s88, s7, 25600")
    a("v_cndmask_b32 v29, v3, v29, vcc")
    a("s_lshl_b32 s10, s6, 7")
    a("s_lshl_b32 s11, s4, 5")
    a("s_add_u32 s10, s10, s11")
    a("v_and_b32 v3, 31, v2")
    a("v_add_u32 v3, s10, v3")
    a("v_lshlrev_b32 v30, 4, v3")
    def epi_loads():
        for kk in range(10):
            a(f"s_add_u32 s12, s88, {kk*2560}")
            a(f"buffer_load_dwordx2 v[{208+2*kk}:{209+2*kk}], v29, s[80:83], s12 offen sc1")
        a("buffer_load_dwordx4 v[228:231], v30, s[84:87], 0 offen sc1")
    NE = 11
    if STAMP:
        a("s_memtime s[92:93]"); a("s_waitcnt lgkmcnt(0)"); a("v_writelane_b32 v255, s92, 6")
    def ffn_tprep(tag):
        lchk, lok = f"K1F_CHK{tag}", f"K1F_OK{tag}"
        ensure_nonce("FE" + tag)
        a.label(lchk)
        a("s_waitcnt vmcnt(0)")
        a(f"v_not_b32 v3, v{VN}")
        a(f"v_cmp_eq_u32 s[10:11], v230, v{VN}")
        a("v_cmp_eq_u32 vcc, v231, v3")
        a("s_and_b64 s[10:11], s[10:11], vcc")
        a("v_mov_b32 v4, 0x7ffffff0")
        a("v_cmp_eq_u32 s[12:13], v4, v29")
        a("s_mov_b64 s[14:15], -1")
        for kk in range(10):
            a(f"v_cmp_eq_u32 vcc, v{209+2*kk}, v{VN}")
            a("s_and_b64 s[14:15], s[14:15], vcc")
        a("s_or_b64 s[14:15], s[14:15], s[12:13]")
        a("s_and_b64 s[10:11], s[10:11], s[14:15]")
        a("s_cmp_eq_u64 s[10:11], -1")
        a(f"s_cbranch_scc1 {lok}")
        a("s_sleep 1")
        epi_loads()
        a(f"s_branch {lchk}")
        a.label(lok)
        for kk in range(1, 10):
            a(f"v_add_f32 v208, v208, v{208+2*kk}")
        a("v_lshlrev_b32 v4, 2, v0")
        a("v_cmp_gt_u32 vcc, 320, v0")
        a("s_and_saveexec_b64 s[10:11], vcc")
        a(f"ds_write_b32 v4, v208 offset:{SPARE + 10240 - 98304}" if False else f"v_add_u32 v4, {SPARE + 10240}, v4")
        a("ds_write_b32 v4, v208")
        a("s_mov_b64 exec, s[10:11]")
    def ffn_stage(var, u, vm, wd, xd, first=False, epi=False, reads=True, tag="", tprep=False):
        nW = 3 if var == "A" else 2
        cur, nxt = SETS[u], SETS[1 - u]
        if vm is None: a("s_waitcnt lgkmcnt(0)")
        else: a(f"s_waitcnt vmcnt({vm}) lgkmcnt(0)")
        a("s_barrier")
        rd = reads_ffn(nxt) if reads else []
        if ENV("NORD"): rd = []
        mf = []
        for ks in range(2):
            for j in range(5):
                w = cur + 8 + (ks * 5 + j) * 4
                x = cur + 4 * ks
                ac = 128 + 16 * j
                mf.append(f"v_mfma_f32_32x32x16_bf16 v[{ac}:{ac+15}], v[{w}:{w+3}], v[{x}:{x+3}], v[{ac}:{ac+15}]")
        pieces = []
        if wd and not ENV("NODMA"):
            pieces += [("s75", "s70", None, 10, 52, "s73"), ("s75", "s71", None, 11, 56, "s73")]
            if var == "A": pieces.append(("s75", "s72", None, 12, 60, "s73"))
        if xd and not ENV("NODMA"):
            pieces += [("s79", "s69", None, 8, 48, "s74"), ("s79", "s69", 1024, 9, 48, "s74")]
        slots = [1, 3, 5, 6, 7][:len(pieces)]
        ri = 0
        for mi, m in enumerate(mf):
            a(m)
            if mi == 0:
                if reads: rd_addr(1 - u)
            elif mi < 8:
                for _ in range(4):
                    if ri < len(rd): a(rd[ri]); ri += 1
            if mi in slots:
                (b0, b1, add, voff, srd, soff) = pieces[slots.index(mi)]
                a(f"s_add_u32 m0, {b0}, {b1}")
                if add: a(f"s_add_u32 m0, m0, {add}")
                a("s_nop 0")
                a(f"buffer_load_dwordx4 v{voff}, s[{srd}:{srd+3}], {soff} offen lds")
            if mi == 8:
                if wd: adv_w()
                if xd: adv_x(79, XSLOT, FX0, FX0 + 3 * XSLOT)
                if epi: epi_loads()
                if tprep: ffn_tprep(tag)
                if first:
                    lc = a.uid("K1C")
                    a("s_cmp_eq_u32 s68, 0")
                    a(f"s_cbranch_scc1 {lc}")
                    for ks in range(2):
                        for i in range(4):
                            for j in range(5):
                                w = cur + 8 + (ks * 5 + j) * 4
                                a(f"v_dot2c_f32_bf16 v{21+j}, v{w+i}, v18")
                    if u == 1:
                        for j in range(5): a(f"v_mov_b32 v{208+2*j}, v{21+j}")
                        a("s_nop 1")
                        for j in range(5): a(f"v_permlane32_swap_b32 v{21+j}, v{208+2*j}")
                        for j in range(5): a(f"v_add_f32 v{208+2*j}, v{21+j}, v{208+2*j}")
                        ensure_nonce("FC" + tag)
                        for j in range(5): a(f"v_mov_b32 v{209+2*j}, v{VN}")
                        a("v_and_b32 v3, 31, v2")
                        a("s_mul_i32 s10, s5, 160")
                        a("v_add_u32 v3, s10, v3")
                        a("v_lshlrev_b32 v3, 3, v3")
                        a("s_mul_i32 s10, s0, 2560")
                        a("s_add_u32 s10, s10, s88")
                        a("s_mov_b32 exec_hi, 0")
                        for j in range(5):
                            a(f"buffer_store_dwordx2 v[{208+2*j}:{209+2*j}], v3, s[80:83], s10 offen offset:{256*j} sc1")
                        a("s_mov_b32 exec_hi, -1")
                    a.label(lc)
                    if u == 1:
                        a("s_mov_b32 s77, 1")
                        stats_publish("F" + tag)
    a("s_cmp_ge_u32 s3, 4")
    a("s_cbranch_scc1 K1F_B")
    for var in ("A", "B"):
        nW = 3 if var == "A" else 2
        if var == "B": a.label("K1F_B")
        ffn_stage(var, 0, nW + 3, True, False, first=True, tag=var)
        ffn_stage(var, 1, nW, True, True, first=True, tag=var)
        a("s_mov_b32 s77, 7")
        a.label(f"K1F_LOOP_{var}")
        ffn_stage(var, 0, nW + 2, True, False)
        ffn_stage(var, 1, nW, True, True)
        if STAMP and ENV("ITSTAMP"):
            a("s_memrealtime s[92:93]")
            a("s_sub_u32 s94, 7, s77")
            a("s_add_u32 m0, s94, 9")
            a("s_waitcnt lgkmcnt(0)")
            a("s_nop 3")
            a("v_writelane_b32 v255, s92, m0")
        a("s_sub_u32 s77, s77, 1")
        a("s_cmp_lg_u32 s77, 0")
        a(f"s_cbranch_scc1 K1F_LOOP_{var}")
        ffn_stage(var, 0, nW + 2, True, False, epi=True)
        ffn_stage(var, 1, nW + NE, False, False)
        ffn_stage(var, 0, NE, False, False, tprep=True, tag=var)
        ffn_stage(var, 1, None, False, False, reads=False)
        if var == "A": a("s_branch K1F_EPI")
    a.label("K1F_EPI")
    if STAMP:
        a("s_memtime s[92:93]"); a("s_waitcnt lgkmcnt(0)"); a("v_writelane_b32 v255, s92, 7")
    stamp(a, 2)
    a("s_waitcnt lgkmcnt(0)")
    a("s_barrier")
    a("v_lshrrev_b32 v4, 5, v2")
    a("v_lshlrev_b32 v4, 4, v4")
    a("s_mul_i32 s12, s5, 640")
    a(f"s_add_u32 s12, s12, {SPARE + 10240}")
    a("v_add_u32 v4, s12, v4")
    for j in range(5):
        for q in range(4):
            a(f"ds_read_b128 v[{48+16*j+4*q}:{51+16*j+4*q}], v4 offset:{128*j + 32*q}")
    a("v_mov_b32 v20, v228")
    a("v_mov_b32 v22, v229")
    a("v_rcp_f32 v26, v229")
    a("s_and_b32 s10, s4, 1")
    a("s_lshl_b32 s10, s10, 11")
    a("v_bfe_u32 v3, v2, 4, 1")
    a("v_lshlrev_b32 v3, 10, v3")
    a("v_and_b32 v4, 15, v2")
    a("v_lshl_add_u32 v3, v4, 4, v3")
    a("v_lshrrev_b32 v4, 5, v2")
    a("v_lshl_add_u32 v3, v4, 8, v3")
    a("v_add_u32 v3, s10, v3")
    a("s_lshl_b32 s10, s6, 1")
    a("s_lshr_b32 s11, s4, 1")
    a("s_add_u32 s10, s10, s11")
    a("s_mul_i32 s10, s10, 94")
    a("s_add_u32 s10, s10, 40")
    a("s_mul_i32 s11, s7, 10")
    a("s_mul_i32 s12, s5, 5")
    a("s_add_u32 s11, s11, s12")
    C1 = -2.0 * LOG2E * 0.7978845608028654
    C2 = C1 * 0.044715
    a(f"s_mov_b32 s52, {f32hex(C2)}")
    a(f"s_mov_b32 s53, {f32hex(C2)}")
    a(f"v_mov_b32 v24, {f32hex(C1)}")
    for j in range(5):
        ac = 128 + 16 * j
        cs = 48 + 16 * j
        l = a.uid("K1FS")
        a(f"s_waitcnt lgkmcnt({min(15, 4*(4-j))})")
        a(f"s_add_u32 s12, s11, {j}")
        a("s_cmp_ge_u32 s12, 108")
        a(f"s_cbranch_scc1 {l}")
        for r in range(0, 16, 2):
            vpk(a, "fma", ac + r, ('b', 20, 1), ('p', cs + r), ('p', ac + r))
        for r in range(0, 8, 2):
            vpk(a, "mul", ac + r, ('p', ac + r), ('b', 22))
        for r in range(0, 8, 2):
            vpk(a, "mul", 32 + r, ('p', ac + r), ('p', ac + r))
        for r in range(0, 8, 2):
            vpk(a, "fma", 32 + r, ('p', 32 + r), ('s', 52), ('b', 24))
        for r in range(0, 8, 2):
            vpk(a, "mul", 32 + r, ('p', 32 + r), ('p', ac + r))
        for r in range(8):
            a(f"v_exp_f32 v{32+r}, v{32+r}")
        for r in range(0, 8, 2):
            vpk(a, "mul", ac + 8 + r, ('p', ac + r), ('p', ac + 8 + r))
        for r in range(0, 8, 2):
            vpk(a, "fma", 32 + r, ('p', 32 + r), ('b', 26), ('b', 26))
        for r in range(8):
            a(f"v_rcp_f32 v{32+r}, v{32+r}")
        a("s_lshr_b32 s13, s12, 1")
        a("s_add_u32 s13, s13, s10")
        for r in range(0, 8, 2):
            vpk(a, "mul", ac + 8 + r, ('p', ac + 8 + r), ('p', 32 + r))
        a("s_lshl_b32 s13, s13, 12")
        a("s_and_b32 s12, s12, 1")
        for r in range(4):
            a(f"v_cvt_pk_bf16_f32 v{40+4*(j&1)+r}, v{ac+8+2*r}, v{ac+9+2*r}")
        a("s_lshl_b32 s12, s12, 9")
        a("s_add_u32 s13, s13, s12")
        a(f"buffer_store_dwordx4 v[{40+4*(j&1)}:{43+4*(j&1)}], v3, s[64:67], s13 offen sc1")
        a.label(l)
    phase1_done("F", lambda: a("s_mov_b32 s10, 32"), 256, lambda: a(f"s_mov_b32 s11, {GO_OFF}"), 32)
    stamp(a, 3); stamp_flush(a, 0)
    a("s_branch PHASE2")

    PR = lambda g, k: 208 + 8 * g + k
    def ssm_params():
        for g in range(2):
            lre, lim, ldt = 232 + 3 * g, 233 + 3 * g, 234 + 3 * g
            ar_, ai_, cr_, ci_, qr, qi, hr, hi = [PR(g, k) for k in range(8)]
            a(f"v_lshlrev_b32 v{lre}, 16, v{lre}")
            a(f"v_lshlrev_b32 v{lim}, 16, v{lim}")
            a(f"v_lshlrev_b32 v{ldt}, 16, v{ldt}")
            a(f"v_mul_f32 v240, {f32hex(LOG2E)}, v{ldt}")
            a("v_exp_f32 v240, v240")
            a("s_nop 0")
            a("v_cvt_pk_bf16_f32 v240, v240, v240")
            a("v_lshlrev_b32 v240, 16, v240")
            a(f"v_mul_f32 v241, v240, v{lre}")
            a(f"v_mul_f32 v242, v240, v{lim}")
            a(f"v_mul_f32 v241, {f32hex(LOG2E)}, v241")
            a("v_exp_f32 v241, v241")
            a(f"v_mul_f32 v242, {f32hex(0.15915494309189535)}, v242")
            a("v_fract_f32 v242, v242")
            a("v_cos_f32 v243, v242")
            a("v_sin_f32 v244, v242")
            a("s_nop 0")
            a(f"v_mul_f32 v{ar_}, v241, v243")
            a(f"v_mul_f32 v{ai_}, v241, v244")
            a(f"v_add_f32 v243, -1.0, v{ar_}")
            a(f"v_mul_f32 v244, v{lre}, v{lre}")
            a(f"v_fmac_f32 v244, v{lim}, v{lim}")
            a("v_rcp_f32 v244, v244")
            a(f"v_mul_f32 v245, v243, v{lre}")
            a(f"v_fmac_f32 v245, v{ai_}, v{lim}")
            a(f"v_mul_f32 v246, v{ai_}, v{lre}")
            a(f"v_fma_f32 v246, -v243, v{lim}, v246")
            a("v_add_f32 v244, v244, v244")
            a(f"v_mul_f32 v{cr_}, v245, v244")
            a(f"v_mul_f32 v{ci_}, v246, v244")
            def sq(dr, di, sr_, si):
                a(f"v_mul_f32 v240, v{si}, v{si}")
                a(f"v_mul_f32 v241, v{sr_}, v{si}")
                a(f"v_fma_f32 v{dr}, v{sr_}, v{sr_}, -v240")
                a(f"v_add_f32 v{di}, v241, v241")
            sq(qr, qi, ar_, ai_)
            for _ in range(3): sq(qr, qi, qr, qi)
            sq(hr, hi, qr, qi)
            for _ in range(2): sq(hr, hi, hr, hi)

    a.label("K1_SSM")
    a("s_sub_u32 s7, s7, 11")
    mk_srd(a, 52, PBRE, 640 * 1280)
    mk_srd(a, 56, PBIM, 640 * 1280)
    a("s_lshl_b32 s10, s7, 7")
    a("s_lshl_b32 s11, s3, 4")
    a("s_add_u32 s10, s10, s11")
    a("v_lshrrev_b32 v3, 3, v2")
    a("v_add_u32 v4, s10, v3")
    a("v_mul_u32_u24 v10, 1280, v4")
    a(f"v_add_u32 v11, {8*1280}, v10")
    a("v_lshl_add_u32 v10, v26, 4, v10")
    a("v_lshl_add_u32 v11, v27, 4, v11")
    a("s_mov_b32 s73, s74")
    a("s_mov_b32 s75, 0")
    a("s_mov_b32 s79, 0")
    def adv(slot, soff):
        a(f"s_add_u32 s{soff}, s{soff}, 128")
        a(f"s_cmp_ge_u32 s{soff}, 1280")
        a(f"s_cselect_b32 s{soff}, 0, s{soff}")
        a(f"s_add_u32 s{slot}, s{slot}, {SSLOT}")
        a(f"s_cmp_ge_u32 s{slot}, {3*SSLOT}")
        a(f"s_cselect_b32 s{slot}, 0, s{slot}")
    def dma1(slot, off, v, srd, soff):
        a(f"s_add_u32 s10, s{slot}, s69")
        a(f"s_add_u32 m0, s10, {off}")
        a("s_nop 0")
        a(f"buffer_load_dwordx4 v{v}, s[{srd}:{srd+3}], s{soff} offen lds")
    HA = [(75, 0, 8, 48, 74), (75, 1024, 9, 48, 74), (75, 16384, 10, 52, 74)]
    HB = [(79, 16384 + 1024, 11, 52, 73), (79, 32768, 10, 56, 73), (79, 32768 + 1024, 11, 56, 73)]
    def half_a():
        for p in HA: dma1(*p)
        adv(75, 74)
    def half_b():
        for p in HB: dma1(*p)
        adv(79, 73)
    mk_srd(a, 80, PLRE, 1280)
    mk_srd(a, 84, PLIM, 1280)
    mk_srd(a, 88, PLDT, 1280)
    a("s_lshl_b32 s10, s7, 7")
    a("s_lshl_b32 s11, s5, 6")
    a("s_add_u32 s68, s10, s11")
    a("v_and_b32 v3, 31, v2")
    a("v_add_u32 v3, s68, v3")
    a("v_lshlrev_b32 v7, 1, v3")
    for g in range(2):
        a(f"buffer_load_ushort v{232+3*g}, v7, s[80:83], 0 offen offset:{64*g}")
        a(f"buffer_load_ushort v{233+3*g}, v7, s[84:87], 0 offen offset:{64*g}")
        a(f"buffer_load_ushort v{234+3*g}, v7, s[88:91], 0 offen offset:{64*g}")
    half_a(); half_b()
    a("s_barrier")
    half_a()
    a("v_bfe_u32 v3, v2, 2, 1")
    a("v_lshlrev_b32 v3, 4, v3")
    a("v_and_b32 v4, 3, v2")
    a("v_add_u32 v3, v3, v4")
    a("v_bfe_u32 v4, v2, 3, 2")
    a("v_lshl_add_u32 v3, v4, 2, v3")
    a("v_bfe_u32 v5, v3, 1, 3")
    a("s_lshl_b32 s10, s4, 5")
    a("v_add_u32 v3, s10, v3")
    a("v_lshlrev_b32 v13, 7, v3")
    a("v_lshrrev_b32 v4, 5, v2")
    a("v_xor_b32 v5, v4, v5")
    a("v_lshl_add_u32 v13, v5, 4, v13")
    a("v_and_b32 v3, 31, v2")
    a("s_lshl_b32 s10, s5, 6")
    a("v_add_u32 v3, s10, v3")
    a("v_lshlrev_b32 v14, 7, v3")
    a("v_bfe_u32 v5, v2, 1, 3")
    a("v_xor_b32 v5, v4, v5")
    a("v_lshl_add_u32 v14, v5, 4, v14")
    a("v_add_u32 v14, 16384, v14")
    for i in range(64):
        a(f"v_mov_b32 v{128+i}, 0")
    a("s_cmp_eq_u32 s4, s5")
    a("s_cselect_b32 s1, 1, 0")
    a("s_cmp_lt_u32 s6, 10")
    a("s_cselect_b32 s1, s1, 0")
    stats_job("S", 15)
    for i in (22, 23, 24, 25):
        a(f"v_mov_b32 v{i}, 0")
    a("s_waitcnt vmcnt(9)")
    ssm_params()
    a("s_waitcnt vmcnt(3)")
    a("s_barrier")
    stamp(a, 1)
    SETS = (32, 80)
    def reads_ssm(setb):
        out = []
        for ks in range(2):
            b = setb + ks * 20
            out.append(f"ds_read_b128 v[{b}:{b+3}], v{15+ks}")
            for g in range(2):
                for part in range(2):
                    w = b + 4 + (g * 2 + part) * 4
                    out.append(f"ds_read_b128 v[{w}:{w+3}], v{(17, 21)[ks]} offset:{g*4096 + part*16384}")
        return out
    def rd_addr_s(uprime):
        a("v_add_u32 v15, s76, v13")
        a("v_add_u32 v17, s76, v14")
        if uprime:
            a("v_xor_b32 v15, 64, v15")
            a("v_xor_b32 v17, 64, v17")
        a("v_xor_b32 v16, 32, v15")
        a("v_xor_b32 v21, 32, v17")
        if uprime:
            a(f"s_add_u32 s76, s76, {SSLOT}")
            a(f"s_cmp_ge_u32 s76, {3*SSLOT}")
            a("s_cselect_b32 s76, 0, s76")
    a("s_mov_b32 s76, 0")
    rd_addr_s(0)
    for r in reads_ssm(SETS[0]): a(r)
    nonce_load()
    half_b()
    mk_srd(a, 80, PWS, CS_SZ, CS_OFF)
    mk_srd(a, 84, PWS, ST_SZ, ST_OFF)
    a("v_lshlrev_b32 v29, 3, v0")
    a("v_cmp_gt_u32 vcc, 256, v0")
    a("v_mov_b32 v3, 0x7ffffff0")
    a("s_mul_i32 s88, s7, 20480")
    a(f"s_add_u32 s88, s88, {CSF_SZ}")
    a("v_cndmask_b32 v29, v3, v29, vcc")
    a("v_subrev_u32 v4, 256, v0")
    a("v_cmp_gt_u32 vcc, 128, v4")
    a("s_lshl_b32 s10, s6, 7")
    a("v_add_u32 v4, s10, v4")
    a("v_lshlrev_b32 v30, 4, v4")
    a("v_cndmask_b32 v30, v3, v30, vcc")
    def epi_loads_s():
        for kk in range(10):
            a(f"s_add_u32 s12, s88, {kk*2048}")
            a(f"buffer_load_dwordx2 v[{224+2*kk}:{225+2*kk}], v29, s[80:83], s12 offen sc1")
        a("buffer_load_dwordx4 v[120:123], v30, s[84:87], 0 offen sc1")
    TS = 3 * SSLOT
    def ssm_tprep():
        ensure_nonce("SE")
        a.label("K1S_CHK")
        a("s_waitcnt vmcnt(0)")
        a(f"v_not_b32 v3, v{VN}")
        a(f"v_cmp_eq_u32 s[10:11], v122, v{VN}")
        a("v_cmp_eq_u32 vcc, v123, v3")
        a("s_and_b64 s[10:11], s[10:11], vcc")
        a("v_mov_b32 v4, 0x7ffffff0")
        a("v_cmp_eq_u32 s[12:13], v4, v30")
        a("s_or_b64 s[10:11], s[10:11], s[12:13]")
        a("v_cmp_eq_u32 s[12:13], v4, v29")
        a("s_mov_b64 s[14:15], -1")
        for kk in range(10):
            a(f"v_cmp_eq_u32 vcc, v{225+2*kk}, v{VN}")
            a("s_and_b64 s[14:15], s[14:15], vcc")
        a("s_or_b64 s[14:15], s[14:15], s[12:13]")
        a("s_and_b64 s[10:11], s[10:11], s[14:15]")
        a("s_cmp_eq_u64 s[10:11], -1")
        a("s_cbranch_scc1 K1S_OK")
        a("s_sleep 1")
        epi_loads_s()
        a("s_branch K1S_CHK")
        a.label("K1S_OK")
        for kk in range(1, 10):
            a(f"v_add_f32 v224, v224, v{224+2*kk}")
        a("v_mul_f32 v123, v120, v121")
        a("v_lshlrev_b32 v4, 2, v0")
        a(f"v_add_u32 v4, {TS}, v4")
        a("v_cmp_gt_u32 vcc, 256, v0")
        a("s_and_saveexec_b64 s[10:11], vcc")
        a("ds_write_b32 v4, v224")
        a("s_mov_b64 exec, s[10:11]")
        a("v_subrev_u32 v5, 256, v0")
        a("v_cmp_gt_u32 vcc, 128, v5")
        a("s_and_saveexec_b64 s[10:11], vcc")
        a("ds_write_b32 v4, v121")
        a("ds_write_b32 v4, v123 offset:512")
        a("s_mov_b64 exec, s[10:11]")
        side_jobs_issue()
    def ssm_stage(u, vm, dma, first=False, epi=False, reads=True, tprep=False):
        cur, nxt = SETS[u], SETS[1 - u]
        if vm is None: a("s_waitcnt lgkmcnt(0)")
        else: a(f"s_waitcnt vmcnt({vm}) lgkmcnt(0)")
        a("s_barrier")
        rd = reads_ssm(nxt) if reads else []
        mf = []
        for ks in range(2):
            b = cur + ks * 20
            for g in range(2):
                for part in range(2):
                    w = b + 4 + (g * 2 + part) * 4
                    ac = 128 + 32 * g + 16 * part
                    mf.append(f"v_mfma_f32_32x32x16_bf16 v[{ac}:{ac+15}], v[{b}:{b+3}], v[{w}:{w+3}], v[{ac}:{ac+15}]")
        pcs = HA if u == 0 else HB
        ri = 0
        for mi, m in enumerate(mf):
            a(m)
            if mi == 0:
                if reads: rd_addr_s(1 - u)
            elif mi < 6:
                for _ in range(3):
                    if ri < len(rd): a(rd[ri]); ri += 1
            if dma and mi in (1, 3, 5):
                dma1(*pcs[(mi - 1) // 2])
            if mi == 6:
                if dma:
                    if u == 0: adv(75, 74)
                    else: adv(79, 73)
                if epi: epi_loads_s()
                if tprep: ssm_tprep()
                if first:
                    lc = a.uid("K1C")
                    a("s_cmp_eq_u32 s1, 0")
                    a(f"s_cbranch_scc1 {lc}")
                    for ks in range(2):
                        for i in range(4):
                            for t in range(4):
                                w = cur + 20 * ks + 4 + 4 * t
                                a(f"v_dot2c_f32_bf16 v{22+t}, v{w+i}, v18")
                    if u == 1:
                        for t in range(4): a(f"v_mov_b32 v{224+2*t}, v{22+t}")
                        a("s_nop 1")
                        for t in range(4): a(f"v_permlane32_swap_b32 v{22+t}, v{224+2*t}")
                        for t in range(4): a(f"v_add_f32 v{224+2*t}, v{22+t}, v{224+2*t}")
                        ensure_nonce("SC")
                        for t in range(4): a(f"v_mov_b32 v{225+2*t}, v{VN}")
                        a("v_and_b32 v3, 31, v2")
                        a("s_lshl_b32 s10, s5, 7")
                        a("v_add_u32 v3, s10, v3")
                        a("v_lshlrev_b32 v3, 3, v3")
                        a("s_lshl_b32 s10, s0, 11")
                        a("s_add_u32 s10, s10, s88")
                        a("s_mov_b32 exec_hi, 0")
                        for t in range(4):
                            a(f"buffer_store_dwordx2 v[{224+2*t}:{225+2*t}], v3, s[80:83], s10 offen offset:{256*t} sc1")
                        a("s_mov_b32 exec_hi, -1")
                    a.label(lc)
                    if u == 1:
                        a("s_mov_b32 s77, 1")
                        stats_publish("S")
    ssm_stage(0, None, True, first=True)
    ssm_stage(1, 3, True, first=True)
    a("s_mov_b32 s77, 7")
    a.label("K1S_LOOP")
    ssm_stage(0, None, True)
    ssm_stage(1, 3, True)
    a("s_sub_u32 s77, s77, 1")
    a("s_cmp_lg_u32 s77, 0")
    a("s_cbranch_scc1 K1S_LOOP")
    ssm_stage(0, None, False, epi=True)
    ssm_stage(1, 11, False)
    ssm_stage(0, None, False, tprep=True)
    ssm_stage(1, None, False, reads=False)
    stamp(a, 2)
    a("s_waitcnt lgkmcnt(0)")
    a("s_barrier")
    if ENV("TSTAMP"): stamp(a, 20)
    a("v_and_b32 v3, 31, v2")
    a("s_lshl_b32 s10, s5, 7")
    a("v_add_u32 v3, s10, v3")
    a("v_lshlrev_b32 v3, 2, v3")
    a(f"v_add_u32 v3, {TS}, v3")
    for t in range(4):
        a(f"ds_read_b32 v{22+t}, v3 offset:{128*t}")
    a("v_lshrrev_b32 v4, 5, v2")
    a("v_lshlrev_b32 v3, 6, v4")
    a("s_lshl_b32 s10, s4, 7")
    a(f"s_add_u32 s10, s10, {TS + 1024}")
    a("v_add_u32 v3, s10, v3")
    for i in range(4):
        a(f"ds_read_b128 v[{32+4*i}:{35+4*i}], v3 offset:{16*i}")
    for i in range(4):
        a(f"ds_read_b128 v[{48+4*i}:{51+4*i}], v3 offset:{512 + 16*i}")
    a("s_waitcnt lgkmcnt(0)")
    for g in range(2):
        cr_, ci_ = PR(g, 2), PR(g, 3)
        a(f"v_mul_f32 v{240+2*g}, v{cr_}, v{22+2*g}")
        a(f"v_fma_f32 v{240+2*g}, -v{ci_}, v{23+2*g}, v{240+2*g}")
        a(f"v_mul_f32 v{241+2*g}, v{cr_}, v{23+2*g}")
        a(f"v_fma_f32 v{241+2*g}, v{ci_}, v{22+2*g}, v{241+2*g}")
    if ENV("TSTAMP"): stamp(a, 21)
    RE = lambda g, r: 128 + 32 * g + r
    IM = lambda g, r: 128 + 32 * g + 16 + r
    for r in range(0, 16, 2):
        for g in range(2):
            cr_, ci_ = PR(g, 2), PR(g, 3)
            re, im = RE(g, r), IM(g, r)
            tr_, ti_ = 64 + 4 * g, 66 + 4 * g
            vpk(a, "mul", tr_, ('p', re), ('b', cr_))
            vpk(a, "mul", ti_, ('p', im), ('b', cr_))
            vpk(a, "fma", tr_, ('p', im), ('b', ci_, 1), ('p', tr_))
            vpk(a, "fma", ti_, ('p', re), ('b', ci_), ('p', ti_))
            vpk(a, "mul", tr_, ('p', tr_), ('p', 32 + r))
            vpk(a, "mul", ti_, ('p', ti_), ('p', 32 + r))
            vpk(a, "fma", re, ('p', 48 + r), ('b', 240 + 2 * g, 1), ('p', tr_))
            vpk(a, "fma", im, ('p', 48 + r), ('b', 241 + 2 * g, 1), ('p', ti_))
        for rr in (r, r + 1):
            if rr == 0: continue
            for g in range(2):
                mr, mi = PR(g, 0), PR(g, 1)
                a(f"v_fma_f32 v{RE(g, rr)}, v{mr}, v{RE(g, rr-1)}, v{RE(g, rr)}")
                a(f"v_fma_f32 v{IM(g, rr)}, v{mr}, v{IM(g, rr-1)}, v{IM(g, rr)}")
                a(f"v_fma_f32 v{RE(g, rr)}, -v{mi}, v{IM(g, rr-1)}, v{RE(g, rr)}")
                a(f"v_fma_f32 v{IM(g, rr)}, v{mi}, v{RE(g, rr-1)}, v{IM(g, rr)}")
    if ENV("TSTAMP"): stamp(a, 22)
    EO = lambda g: 224 + 4 + 2 * g
    for g in range(2):
        a(f"v_mov_b32 v{EO(g)}, v{RE(g, 15)}")
        a(f"v_mov_b32 v{EO(g)+1}, v{IM(g, 15)}")
    a("v_lshrrev_b32 v4, 5, v2")
    a("s_lshl_b32 s10, s4, 1")
    a("v_add_u32 v21, s10, v4")
    a("v_and_b32 v3, 31, v2")
    a("s_lshl_b32 s10, s5, 6")
    a("v_add_u32 v3, s10, v3")
    a("v_lshlrev_b32 v22, 3, v3")
    a("v_lshl_add_u32 v23, v21, 10, v22")
    for g in range(2):
        a(f"ds_write_b64 v23, v[{EO(g)}:{EO(g)+1}] offset:{8192 + 256*g}")
    a("s_waitcnt lgkmcnt(0)")
    a("s_barrier")
    if ENV("TSTAMP"): stamp(a, 23)
    for g in range(2):
        for j in range(7):
            a(f"ds_read_b64 v[{32+16*g+2*j}:{33+16*g+2*j}], v22 offset:{8192 + 1024*j + 256*g}")
    for g in range(2):
        a(f"v_mov_b32 v{232+2*g}, 0")
        a(f"v_mov_b32 v{233+2*g}, 0")
    a("s_waitcnt lgkmcnt(0)")
    for j in range(7):
        if j % 2 == 0:
            a(f"s_cmp_lt_u32 s4, {j//2}")
            a("s_cbranch_scc1 K1S_HP_DONE")
            a(f"s_cmp_eq_u32 s4, {j//2}")
            a("s_cselect_b32 exec_lo, 0, -1")
        else:
            a(f"s_cmp_le_u32 s4, {j//2}")
            a("s_cbranch_scc1 K1S_HP_DONE")
        for g in range(2):
            qr, qi = PR(g, 4), PR(g, 5)
            Pr, Pi = 232 + 2 * g, 233 + 2 * g
            er, ei = 32 + 16 * g + 2 * j, 33 + 16 * g + 2 * j
            a(f"v_fma_f32 v{er}, v{qr}, v{Pr}, v{er}")
            a(f"v_fma_f32 v{ei}, v{qr}, v{Pi}, v{ei}")
            a(f"v_fma_f32 v{er}, -v{qi}, v{Pi}, v{er}")
            a(f"v_fma_f32 v{Pi}, v{qi}, v{Pr}, v{ei}")
            a(f"v_mov_b32 v{Pr}, v{er}")
    a.label("K1S_HP_DONE")
    a("s_mov_b64 exec, -1")
    mk_srd(a, 80, PWS, E_SZ, E_OFF)
    a("s_cmp_eq_u32 s4, 3")
    a("s_cbranch_scc0 K1S_NOPUB")
    for g in range(2):
        qr, qi = PR(g, 4), PR(g, 5)
        Pr, Pi = 232 + 2 * g, 233 + 2 * g
        er, ei = EO(g), EO(g) + 1
        d = 64 + 4 * g
        a(f"v_fma_f32 v{d}, v{qr}, v{Pr}, v{er}")
        a(f"v_fma_f32 v{d+1}, v{qr}, v{Pi}, v{ei}")
        a(f"v_fma_f32 v{d}, -v{qi}, v{Pi}, v{d}")
        a(f"v_fma_f32 v{d+1}, v{qi}, v{Pr}, v{d+1}")
        a(f"v_mov_b32 v{d+2}, v{VN}")
        a(f"v_not_b32 v{d+3}, v{VN}")
    a("v_lshlrev_b32 v24, 3, v7")
    a(f"s_mul_i32 s10, s6, {640*16}")
    a("s_mov_b32 exec_lo, 0")
    for g in range(2):
        a(f"buffer_store_dwordx4 v[{64+4*g}:{67+4*g}], v24, s[80:83], s10 offen offset:{512*g} sc1")
    a("s_mov_b64 exec, -1")
    a("s_nop 1")
    a.label("K1S_NOPUB")
    stamp(a, 4)
    QB = [96, 100, 104, 108, 112, 116, 120, 124, 192, 196, 200, 204, 224, 228, 8]
    def poll_loads():
        for j in range(15):
            a(f"s_cmp_le_u32 s6, {j}")
            a(f"s_cbranch_scc1 {lab_loaded}")
            a(f"s_mov_b32 s10, {j*640*16}")
            a(f"buffer_load_dwordx4 v[{QB[j]}:{QB[j]+3}], v24, s[80:83], s10 offen sc1")
    a("s_cmp_eq_u32 s4, 0")
    a("s_cbranch_scc0 K1S_NP1")
    a("v_add_u32 v24, s68, v2")
    a("v_lshlrev_b32 v24, 4, v24")
    lab_loaded = "K1S_LD0"
    poll_loads()
    a.label("K1S_LD0")
    a.label("K1S_NP1")
    PWR = lambda g, r: 32 + 32 * g + r
    PWI = lambda g, r: 48 + 32 * g + r
    for g in range(2):
        a(f"v_mov_b32 v{PWR(g,0)}, v{PR(g,0)}")
        a(f"v_mov_b32 v{PWI(g,0)}, v{PR(g,1)}")
    for r in range(1, 16):
        for g in range(2):
            mr, mi = PR(g, 0), PR(g, 1)
            a(f"v_mul_f32 v{PWR(g,r)}, v{mr}, v{PWR(g,r-1)}")
            a(f"v_mul_f32 v{PWI(g,r)}, v{mr}, v{PWI(g,r-1)}")
            a(f"v_fma_f32 v{PWR(g,r)}, -v{mi}, v{PWI(g,r-1)}, v{PWR(g,r)}")
            a(f"v_fma_f32 v{PWI(g,r)}, v{mi}, v{PWR(g,r-1)}, v{PWI(g,r)}")
    for g in range(2):
        a(f"v_mov_b32 v{236+2*g}, 1.0")
        a(f"v_mov_b32 v{237+2*g}, 0")
    for j in range(7):
        if j % 2 == 0:
            a(f"s_cmp_lt_u32 s4, {j//2}")
            a("s_cbranch_scc1 K1S_SG_DONE")
            a(f"s_cmp_eq_u32 s4, {j//2}")
            a("s_cselect_b32 exec_lo, 0, -1")
        else:
            a(f"s_cmp_le_u32 s4, {j//2}")
            a("s_cbranch_scc1 K1S_SG_DONE")
        for g in range(2):
            qr, qi = PR(g, 4), PR(g, 5)
            wr, wi = 236 + 2 * g, 237 + 2 * g
            a(f"v_mul_f32 v242, v{qr}, v{wr}")
            a(f"v_mul_f32 v243, v{qr}, v{wi}")
            a(f"v_fma_f32 v242, -v{qi}, v{wi}, v242")
            a(f"v_fma_f32 v{wi}, v{qi}, v{wr}, v243")
            a(f"v_mov_b32 v{wr}, v242")
    a.label("K1S_SG_DONE")
    a("s_mov_b64 exec, -1")
    if ENV("TSTAMP"): stamp(a, 24)
    a("s_cmp_eq_u32 s4, 0")
    a("s_cbranch_scc1 K1S_POLLER")
    side_jobs_finish("S")
    a("s_branch K1S_NOPOLL")
    a.label("K1S_POLLER")
    a("v_cmp_lt_u32 vcc, 31, v2")
    a("v_mov_b32 v244, 0")
    a("v_mov_b32 v245, 0")
    a(f"v_cndmask_b32 v246, v{PR(0,6)}, v{PR(1,6)}, vcc")
    a(f"v_cndmask_b32 v26, v{PR(0,7)}, v{PR(1,7)}, vcc")
    a(f"v_not_b32 v25, v{VN}")
    a("s_cmp_eq_u32 s6, 0")
    a("s_cbranch_scc1 K1S_HDONE")
    a("s_mov_b32 s14, 200000")
    a("s_branch K1S_LOADED")
    a.label("K1S_POLL")
    lab_loaded = "K1S_LOADED"
    poll_loads()
    a.label("K1S_LOADED")
    a("s_waitcnt vmcnt(0)")
    a("s_mov_b64 s[12:13], -1")
    for j in range(15):
        a(f"s_cmp_le_u32 s6, {j}")
        a("s_cbranch_scc1 K1S_CHK2")
        a(f"v_cmp_eq_u32 vcc, v{QB[j]+2}, v{VN}")
        a(f"v_cmp_eq_u32 s[10:11], v{QB[j]+3}, v25")
        a("s_and_b64 s[12:13], s[12:13], vcc")
        a("s_and_b64 s[12:13], s[12:13], s[10:11]")
    a.label("K1S_CHK2")
    a("s_cmp_eq_u64 s[12:13], -1")
    a("s_cbranch_scc1 K1S_VALID")
    a("s_sub_u32 s14, s14, 1")
    a("s_cmp_eq_u32 s14, 0")
    a("s_cbranch_scc1 K1S_VALID")
    a("s_branch K1S_POLL")
    a.label("K1S_VALID")
    for j in range(15):
        a(f"s_cmp_le_u32 s6, {j}")
        a("s_cbranch_scc1 K1S_HDONE")
        a(f"v_fma_f32 v240, v246, v244, v{QB[j]}")
        a(f"v_fma_f32 v241, v246, v245, v{QB[j]+1}")
        a(f"v_fma_f32 v240, -v26, v245, v240")
        a(f"v_fma_f32 v245, v26, v244, v241")
        a("v_mov_b32 v244, v240")
    a.label("K1S_HDONE")
    a("s_lshl_b32 s10, s5, 6")
    a("v_add_u32 v3, s10, v2")
    a("v_lshlrev_b32 v3, 3, v3")
    a("ds_write_b64 v3, v[244:245] offset:16384")
    a("s_waitcnt lgkmcnt(0)")
    a.label("K1S_NOPOLL")
    a("s_barrier")
    stamp(a, 5)
    arrive_issue("B", lambda: a("s_mov_b32 s10, 32"))
    for g in range(2):
        a(f"ds_read_b64 v[{240+2*g}:{241+2*g}], v22 offset:{16384 + 256*g}")
    a("s_waitcnt lgkmcnt(0)")
    for g in range(2):
        Pr, Pi, wr, wi, Hr, Hi = 232 + 2 * g, 233 + 2 * g, 236 + 2 * g, 237 + 2 * g, 240 + 2 * g, 241 + 2 * g
        a(f"v_fma_f32 v{Pr}, v{wr}, v{Hr}, v{Pr}")
        a(f"v_fma_f32 v{Pi}, v{wr}, v{Hi}, v{Pi}")
        a(f"v_fma_f32 v{Pr}, -v{wi}, v{Hi}, v{Pr}")
        a(f"v_fma_f32 v{Pi}, v{wi}, v{Hr}, v{Pi}")
    for g in range(2):
        Cr, Ci = 232 + 2 * g, 233 + 2 * g
        for r in range(0, 16, 2):
            vpk(a, "fma", RE(g, r), ('p', PWR(g, r)), ('b', Cr), ('p', RE(g, r)))
            vpk(a, "fma", IM(g, r), ('p', PWR(g, r)), ('b', Ci), ('p', IM(g, r)))
            vpk(a, "fma", RE(g, r), ('p', PWI(g, r)), ('b', Ci, 1), ('p', RE(g, r)))
            vpk(a, "fma", IM(g, r), ('p', PWI(g, r)), ('b', Cr), ('p', IM(g, r)))
    if ENV("TSTAMP"): stamp(a, 25)
    a("s_mul_i32 s10, s3, 10240")
    a("s_add_u32 s10, s10, 20480")
    a("v_and_b32 v3, 31, v2")
    a("v_mul_u32_u24 v3, 80, v3")
    a("v_lshrrev_b32 v4, 5, v2")
    a("v_lshl_add_u32 v3, v4, 5, v3")
    a("v_add_u32 v28, s10, v3")
    for g in range(2):
        for part in range(2):
            src = 128 + 32 * g + 16 * part
            neg = "-" if part else ""
            pk = 32 + 8 * (g * 2 + part)
            for i in range(8):
                a(f"v_cvt_pk_bf16_f32 v{pk+i}, {neg}v{src+2*i}, {neg}v{src+2*i+1}")
            off = (g * 2 + part) * 2560
            a(f"ds_write_b128 v28, v[{pk}:{pk+3}] offset:{off}")
            a(f"ds_write_b128 v28, v[{pk+4}:{pk+7}] offset:{off+16}")
    a("v_lshrrev_b32 v3, 4, v2")
    a("v_lshlrev_b32 v3, 3, v3")
    a("v_bfe_u32 v4, v2, 2, 2")
    a("v_add_u32 v3, v3, v4")
    a("v_mul_u32_u24 v3, 80, v3")
    a("v_and_b32 v4, 3, v2")
    a("v_lshl_add_u32 v3, v4, 3, v3")
    a("v_add_u32 v29, s10, v3")
    a("v_lshlrev_b32 v30, 4, v2")
    a("s_lshl_b32 s10, s6, 1")
    a("s_lshr_b32 s11, s4, 1")
    a("s_add_u32 s10, s10, s11")
    a("s_mul_i32 s10, s10, 94")
    a("s_lshr_b32 s11, s68, 4")
    a("s_add_u32 s10, s10, s11")
    a("s_lshl_b32 s10, s10, 12")
    a("s_and_b32 s11, s4, 1")
    a("s_lshl_b32 s11, s11, 11")
    a("s_add_u32 s10, s10, s11")
    a("s_mov_b32 s72, s10")
    arrive_check("B", 256, lambda: a(f"s_mov_b32 s11, {GO_OFF}"), 32)
    a("s_mov_b32 s10, s72")
    a("s_waitcnt lgkmcnt(0)")
    for g in range(2):
        for part in range(2):
            off = (g * 2 + part) * 2560
            for i in range(2):
                b = 64 + ((g * 2 + part) * 2 + i) * 4
                a(f"ds_read_b64_tr_b16 v[{b}:{b+1}], v29 offset:{off + 32*i}")
                a(f"ds_read_b64_tr_b16 v[{b+2}:{b+3}], v29 offset:{off + 32*i + 320}")
    a("s_waitcnt lgkmcnt(0)")
    for g in range(2):
        for part in range(2):
            for i in range(2):
                b = 64 + ((g * 2 + part) * 2 + i) * 4
                a(f"s_add_u32 s11, s10, {(2*g + part)*4096 + i*1024}")
                a(f"buffer_store_dwordx4 v[{b}:{b+3}], v30, s[64:67], s11 offen sc1")
    def ws_():
        a("s_lshl_b32 s10, s6, 2")
        a("s_add_u32 s10, s10, 64")
    def gs_():
        a("s_lshl_b32 s11, s6, 7")
        a(f"s_add_u32 s11, s11, {GO_OFF + 4096}")
    phase1_done("S", ws_, 5, gs_, 1)
    stamp(a, 3); stamp_flush(a, 0)
    a.label("PHASE2")
    import gen_p2
    gen_p2.gen_phase2(a)
    a.label("K1_END")
    a("s_endpgm")

def build(path):
    a = Asm()
    a.raw(HDR.rstrip("\n"))
    a.raw(f"; @launch grid=(256,1,1) block=(512,1,1) lds={K1_LDS}")
    a.raw('.amdgcn_target "amdgcn-amd-amdhsa--gfx950"')
    a.raw(".text")
    gen_k1(a)
    a.raw('.section .rodata,"a"')
    a.raw(descriptor(KNAME, 256, 102, 256))
    t = a.text()
    open(path, "w").write(t)
    lint(t)

if __name__ == "__main__":
    build(sys.argv[1] if len(sys.argv) > 1 else "v8.s")
```

```python
import os
from asmlib import *
from gen1 import (HDR, SRD3, P, PX, PLRE, PLIM, PBRE, PBIM, PCRE, PCIM, PLDT, PDSK, PBX, PWG, PWU, PWD, POUT, PDBG, PWS,
                  load_args, mk_srd, sdiv, vdiv, kernel_begin, descriptor, stamp, stamp_flush, STAMP)
ENV = os.environ.get
AF_OFF = 4 << 20
BF_OFF = 20 << 20
ST_OFF = 29 << 20
GO_OFF = 31 << 20
X_SZ = 2048 * 1280
AF_SZ = 32 * 94 * 4096
BF_SZ = 8 * 94 * 5120
ST_SZ = 2048 * 16
K2_TILE = 64 * 320
K2_LDS = 8 * K2_TILE

def gen_phase2(a, kidx=1):
    D = int(ENV("K2D", "4"))
    LDF = " sc1"
    PF = int(ENV("K2PF", "0"))
    a("s_and_b32 s4, s2, 7")
    a("s_lshr_b32 s5, s2, 3")
    KM = ENV("K2MAP", "8x4")
    if KM == "8x4":
        a("s_lshr_b32 s6, s4, 1")
        a("s_lshl_b32 s6, s6, 3")
        a("s_and_b32 s7, s5, 7")
        a("s_add_u32 s6, s6, s7")
        a("s_and_b32 s7, s4, 1")
        a("s_lshl_b32 s7, s7, 2")
        a("s_lshr_b32 s8, s5, 3")
        a("s_add_u32 s7, s7, s8")
    elif KM == "4x8":
        a("s_lshl_b32 s6, s4, 2")
        a("s_and_b32 s7, s5, 3")
        a("s_add_u32 s6, s6, s7")
        a("s_lshr_b32 s7, s5, 2")
    elif KM == "16x2":
        a("s_lshr_b32 s6, s4, 2")
        a("s_lshl_b32 s6, s6, 4")
        a("s_and_b32 s7, s5, 15")
        a("s_add_u32 s6, s6, s7")
        a("s_and_b32 s7, s4, 3")
        a("s_lshl_b32 s7, s7, 1")
        a("s_lshr_b32 s8, s5, 4")
        a("s_add_u32 s7, s7, s8")
    a("s_sub_u32 s9, s3, 4")
    a("s_mul_i32 s8, s9, 10")
    a("s_mov_b32 s12, 10")
    a("s_cmp_ge_u32 s3, 4")
    a("s_cbranch_scc1 K2_RNG")
    a("s_mul_i32 s8, s3, 14")
    a("s_add_u32 s8, s8, 40")
    a("s_mov_b32 s12, 14")
    a("s_cmp_lt_u32 s3, 2")
    a("s_cbranch_scc1 K2_RNG")
    a("s_mul_i32 s8, s3, 13")
    a("s_add_u32 s8, s8, 42")
    a("s_mov_b32 s12, 13")
    a.label("K2_RNG")
    a("v_lshlrev_b32 v3, 4, v2")
    a("v_add_u32 v4, 4096, v3")
    if STAMP: a("v_mov_b32 v31, 0")
    stamp(a, 4, vt=31)
    a("s_cmp_eq_u32 s3, 0")
    a("s_cbranch_scc0 P2_W1")
    a("s_lshl_b32 s15, s5, 7")
    a(f"s_add_u32 s15, s15, {GO_OFF}")
    a("v_mov_b32 v5, s15")
    a("s_lshr_b32 s15, s6, 1")
    a("s_lshl_b32 s15, s15, 7")
    a(f"s_add_u32 s15, s15, {GO_OFF + 4096}")
    a("v_mov_b32 v6, s15")
    a("s_mov_b32 s14, 300000")
    a("v_readfirstlane_b32 s73, v247")
    a.label("P2_POLL1")
    a(f"global_load_dword v8, v5, s[{PWS}:{PWS+1}] sc1")
    a(f"global_load_dword v9, v6, s[{PWS}:{PWS+1}] sc1")
    a("s_waitcnt vmcnt(0)")
    a("v_readfirstlane_b32 s15, v8")
    a("v_readfirstlane_b32 s72, v9")
    a("s_sub_u32 s14, s14, 1")
    a("s_cmp_eq_u32 s14, 0")
    a("s_cbranch_scc1 P2_W1")
    a("s_xor_b32 s15, s15, s73")
    a("s_xor_b32 s72, s72, s73")
    a("s_or_b32 s15, s15, s72")
    a("s_cmp_eq_u32 s15, 0")
    a("s_cbranch_scc1 P2_W1")
    a(f"s_sleep {int(ENV('SLP1', '4'))}")
    a("s_branch P2_POLL1")
    a.label("P2_W1")
    a("s_barrier")
    a("s_cmp_lt_u32 s3, 4")
    a("s_cbranch_scc1 P2_W2")
    a("s_lshr_b32 s15, s6, 1")
    a("s_lshl_b32 s15, s15, 7")
    a(f"s_add_u32 s15, s15, {GO_OFF + 8192}")
    a("v_mov_b32 v5, s15")
    a("s_mov_b32 s14, 300000")
    a("v_readfirstlane_b32 s73, v247")
    a.label("P2_POLL2")
    a(f"global_load_dword v8, v5, s[{PWS}:{PWS+1}] sc1")
    a("s_waitcnt vmcnt(0)")
    a("v_readfirstlane_b32 s15, v8")
    a("s_sub_u32 s14, s14, 1")
    a("s_cmp_eq_u32 s14, 0")
    a("s_cbranch_scc1 P2_W2")
    a("s_cmp_eq_u32 s15, s73")
    a("s_cbranch_scc1 P2_W2")
    a(f"s_sleep {int(ENV('SLP2', '8'))}")
    a("s_branch P2_POLL2")
    a.label("P2_W2")
    stamp(a, 0, vt=31)
    mk_srd(a, 48, PWS, AF_SZ, AF_OFF)
    mk_srd(a, 52, PWS, BF_SZ, BF_OFF)
    mk_srd(a, 76, PWS, BF_OFF + BF_SZ - AF_OFF, AF_OFF)
    a("s_mul_i32 s10, s6, 94")
    a("s_add_u32 s10, s10, s8")
    a("s_lshl_b32 s10, s10, 12")
    a("s_mul_i32 s11, s7, 94")
    a("s_add_u32 s11, s11, s8")
    a("s_mul_i32 s11, s11, 5120")
    NL = 9 + (1 if PF else 0)
    if ENV("K2TOUCH", "0") == "1":
        lt = a.uid("K2T")
        a("s_cmp_lt_u32 s3, 4")
        a(f"s_cbranch_scc1 {lt}")
        a("s_sub_u32 s14, s3, 4")
        a("s_lshl_b32 s14, s14, 6")
        a("v_add_u32 v5, s14, v2")
        a("s_lshr_b32 s15, s5, 3")
        a("s_lshl_b32 s15, s15, 10")
        a("s_mul_i32 s72, s6, 94*4096")
        a("s_add_u32 s72, s72, s15")
        a("s_and_b32 s15, s5, 7")
        a("s_mul_i32 s15, s15, 640")
        a("s_mul_i32 s73, s7, 94*5120")
        a("s_add_u32 s73, s73, s15")
        a(f"s_add_u32 s73, s73, {BF_OFF - AF_OFF - 8*128}")
        NT = int(ENV("K2NT", "5"))
        for i in range(NT):
            vdiv(a, 6, 5, 13, 15)
            a("v_mul_u32_u24 v7, 13, v6")
            a("v_sub_u32 v7, v5, v7")
            a("v_and_b32 v8, 3, v6")
            a("v_mul_u32_u24 v8, 10, v8")
            a("v_lshrrev_b32 v9, 2, v6")
            a("v_add_u32 v8, v8, v9")
            a("v_cmp_gt_u32 vcc, 40, v6")
            a("s_nop 1")
            a("v_cndmask_b32 v6, v6, v8, vcc")
            a("v_mul_u32_u24 v8, 4096, v6")
            a("v_add_u32 v8, s72, v8")
            a("v_mul_u32_u24 v9, 5120, v6")
            a("v_add_u32 v9, s73, v9")
            a("v_cmp_gt_u32 vcc, 8, v7")
            a("v_lshlrev_b32 v7, 7, v7")
            a("s_nop 0")
            a("v_cndmask_b32 v8, v9, v8, vcc")
            a("v_add_u32 v8, v8, v7")
            a("v_cmp_gt_u32 vcc, 94, v6")
            a("v_mov_b32 v9, 0x7ffffff0")
            a("s_nop 0")
            a("v_cndmask_b32 v8, v9, v8, vcc")
            a(f"buffer_load_dword v{10+i}, v8, s[76:79], 0 offen")
            a("v_add_u32 v5, 256, v5")
        a.label(lt)
    if PF:
        a("s_lshr_b32 s14, s5, 3")
        a("s_lshl_b32 s14, s14, 10")
        a(f"s_add_u32 s14, s14, {PF*4096}")
        a("s_add_u32 s14, s14, s10")
        a("s_and_b32 s15, s5, 7")
        a("s_mul_i32 s15, s15, 640")
        a(f"s_add_u32 s15, s15, {PF*5120 + BF_OFF - AF_OFF - 8*128}")
        a("s_add_u32 s15, s15, s11")
        a("v_lshlrev_b32 v5, 7, v2")
        a("v_cmp_gt_u32 vcc, 8, v2")
        a("v_mov_b32 v6, s15")
        a("v_mov_b32 v7, s14")
        a("v_cndmask_b32 v6, v6, v7, vcc")
        a("v_add_u32 v5, v5, v6")
        a("v_mov_b32 v6, 5120")
        a("v_mov_b32 v7, 4096")
        a("v_cndmask_b32 v6, v6, v7, vcc")
        a("v_cmp_gt_u32 vcc, 13, v2")
        a("v_mov_b32 v7, 0x7ffffff0")
        a("s_nop 0")
        a("v_cndmask_b32 v5, v7, v5, vcc")
        a("v_mov_b32 v7, 0")
        a("v_cndmask_b32 v6, v7, v6, vcc")
    SET0 = 32
    def setb(i): return SET0 + 36 * i
    def issue(i, pf=True):
        b = setb(i)
        for t in range(4):
            a(f"buffer_load_dwordx4 v[{b+4*t}:{b+4*t+3}], v3, s[48:51], s10 offen offset:{1024*t}" + LDF)
        for t in range(4):
            a(f"buffer_load_dwordx4 v[{b+16+4*t}:{b+16+4*t+3}], v3, s[52:55], s11 offen offset:{1024*t}" + LDF)
        a(f"buffer_load_dwordx4 v[{b+32}:{b+35}], v4, s[52:55], s11 offen" + LDF)
        a("s_add_u32 s10, s10, 4096")
        a("s_add_u32 s11, s11, 5120")
        if PF:
            a("buffer_load_dword v8, v5, s[76:79], 0 offen")
            a("v_add_u32 v5, v5, v6")
    if PF:
        pass
    IL = int(ENV("K2IL", "1"))
    def load_list(i):
        b = setb(i)
        out = []
        for t in range(4):
            out.append(f"buffer_load_dwordx4 v[{b+4*t}:{b+4*t+3}], v3, s[48:51], s10 offen offset:{1024*t}" + LDF)
        for t in range(4):
            out.append(f"buffer_load_dwordx4 v[{b+16+4*t}:{b+16+4*t+3}], v3, s[52:55], s11 offen offset:{1024*t}" + LDF)
        out.append(f"buffer_load_dwordx4 v[{b+32}:{b+35}], v4, s[52:55], s11 offen" + LDF)
        return out
    npro = D - 1 if IL else D
    for i in range(npro):
        issue(i)
    mk_srd(a, 56, PX, X_SZ)
    mk_srd(a, 60, PWS, ST_SZ, ST_OFF)
    mk_srd(a, 64, PDSK, 1280)
    mk_srd(a, 68, POUT, 2048 * 2560)
    for i in range(80):
        a(f"v_mov_b32 v{176+i}, 0")
    a(f"s_sub_u32 s13, s12, {npro}")
    a("s_mov_b32 s72, 8")
    a.label("K2_LOOP")
    for i in range(D):
        b = setb(i)
        l1 = a.uid("K2W"); l2 = a.uid("K2S")
        a("s_cmp_lg_u32 s13, 0")
        a(f"s_cbranch_scc1 {l1}")
        a("s_waitcnt vmcnt(0)")
        a.label(l1)
        a(f"s_waitcnt vmcnt({9*(npro-1)})")
        if STAMP and ENV("ITSTAMP"):
            a("s_memrealtime s[92:93]")
            a("s_mov_b32 m0, s72")
            a("s_add_u32 s72, s72, 1")
            a("s_waitcnt lgkmcnt(0)")
            a("v_writelane_b32 v31, s92, m0")
        mf = []
        for ti in range(4):
            for j in range(5):
                ac = (ti * 5 + j) * 4
                mf.append(f"v_mfma_f32_16x16x32_bf16 v[{176+ac}:{176+ac+3}], v[{b+16+4*j}:{b+16+4*j+3}], v[{b+4*ti}:{b+4*ti+3}], v[{176+ac}:{176+ac+3}]")
        if IL:
            l3 = a.uid("K2N")
            a("s_cmp_lg_u32 s13, 0")
            a(f"s_cbranch_scc0 {l2}")
            ld = load_list((i - 1) % D)
            for mi, m in enumerate(mf):
                a(m)
                if mi % 2 == 1 and ld: a(ld.pop(0))
            a("s_add_u32 s10, s10, 4096")
            a("s_add_u32 s11, s11, 5120")
            a("s_sub_u32 s13, s13, 1")
            a(f"s_branch {l3}")
            a.label(l2)
            for m in mf: a(m)
            a.label(l3)
        else:
            for m in mf: a(m)
            a("s_cmp_lg_u32 s13, 0")
            a(f"s_cbranch_scc0 {l2}")
            issue(i)
            a("s_sub_u32 s13, s13, 1")
            a.label(l2)
        a("s_sub_u32 s12, s12, 1")
        a("s_cmp_lg_u32 s12, 0")
        if i < D - 1: a("s_cbranch_scc0 K2_DONE")
        else: a("s_cbranch_scc1 K2_LOOP")
    a.label("K2_DONE")
    stamp(a, 1, vt=31)
    NCH = 3
    for i in range(NCH):
        a(f"v_add_u32 v6, {512*i}, v0")
        vdiv(a, 7, 6, 20, 14)
        a("v_mul_u32_u24 v8, 20, v7")
        a("v_sub_u32 v8, v6, v8")
        a("v_bfe_u32 v9, v7, 1, 2")
        a("v_xor_b32 v9, v9, v8")
        a(f"v_mul_u32_u24 v{16+i}, 320, v7")
        a(f"v_lshl_add_u32 v{16+i}, v9, 4, v{16+i}")
        a("s_lshl_b32 s15, s6, 6")
        a("v_add_u32 v7, s15, v7")
        a("s_mul_i32 s15, s7, 80")
        a("v_lshl_add_u32 v8, v8, 2, s15")
        a("v_mul_u32_u24 v9, 640, v7")
        a("v_add_u32 v9, v9, v8")
        a(f"v_lshlrev_b32 v{20+i}, 2, v9")
        a("v_lshlrev_b32 v9, 1, v9")
        a("v_lshlrev_b32 v8, 1, v8")
        a("v_lshlrev_b32 v7, 4, v7")
        a(f"buffer_load_dwordx2 v[{32+6*i}:{33+6*i}], v9, s[56:59], 0 offen")
        a(f"buffer_load_dwordx2 v[{34+6*i}:{35+6*i}], v7, s[60:63], 0 offen sc1")
        a(f"buffer_load_dwordx2 v[{36+6*i}:{37+6*i}], v8, s[64:67], 0 offen")
    a("v_and_b32 v5, 15, v2")
    a("v_bfe_u32 v7, v2, 1, 2")
    a("v_lshrrev_b32 v6, 4, v2")
    a("v_xor_b32 v6, v6, v7")
    a("v_mul_u32_u24 v5, 320, v5")
    a("v_lshl_add_u32 v5, v6, 4, v5")
    a(f"s_mul_i32 s14, s3, {K2_TILE}")
    a("v_add_u32 v5, s14, v5")
    a("s_nop 3")
    for ti in range(4):
        for j in range(5):
            ac = (ti * 5 + j) * 4
            a(f"ds_write_b128 v5, v[{176+ac}:{176+ac+3}] offset:{ti*16*320 + j*64}")
    a("s_waitcnt lgkmcnt(0)")
    a("s_barrier")
    stamp(a, 2, vt=31)
    for i in range(NCH):
        if i == NCH - 1:
            a("s_cmp_ge_u32 s3, 4")
            a("s_cbranch_scc1 K2_FIN")
        r = 64
        a(f"v_add_u32 v26, {3*K2_TILE}, v{16+i}")
        a(f"v_add_u32 v27, {6*K2_TILE}, v{16+i}")
        for w in range(8):
            base = (f"v{16+i}", "v26", "v27")[w // 3]
            a(f"ds_read_b128 v[{r+4*w}:{r+4*w+3}], {base} offset:{(w % 3)*K2_TILE}")
        a("s_waitcnt vmcnt(0) lgkmcnt(0)" if i == 0 else "s_waitcnt lgkmcnt(0)")
        for e in range(4):
            xw, dw = 32 + 6 * i + (e >> 1), 36 + 6 * i + (e >> 1)
            mreg, rreg = 34 + 6 * i, 35 + 6 * i
            y, f = r + 16 + e, r + e
            a(f"v_add_f32 v{f}, v{f}, v{r+4+e}")
            a(f"v_add_f32 v{r+8+e}, v{r+8+e}, v{r+12+e}")
            a(f"v_add_f32 v{y}, v{y}, v{r+20+e}")
            a(f"v_add_f32 v{r+24+e}, v{r+24+e}, v{r+28+e}")
            a(f"v_add_f32 v{f}, v{f}, v{r+8+e}")
            a(f"v_add_f32 v{y}, v{y}, v{r+24+e}")
            if e & 1:
                a(f"v_and_b32 v10, 0xffff0000, v{xw}")
                a(f"v_and_b32 v12, 0xffff0000, v{dw}")
            else:
                a(f"v_lshlrev_b32 v10, 16, v{xw}")
                a(f"v_lshlrev_b32 v12, 16, v{dw}")
            a(f"v_sub_f32 v11, v10, v{mreg}")
            a(f"v_mul_f32 v13, 0xbfb8aa3b, v{f}")
            a("v_exp_f32 v13, v13")
            a(f"v_mul_f32 v11, v11, v{rreg}")
            a("v_add_f32 v13, 1.0, v13")
            a("v_rcp_f32 v13, v13")
            a(f"v_fmac_f32 v{y}, v11, v12")
            a(f"v_mul_f32 v13, v13, v{f}")
            a(f"v_fma_f32 v{96+e}, v{y}, v13, v10")
        a(f"buffer_store_dwordx4 v[96:99], v{20+i}, s[68:71], 0 offen")
        a("s_nop 1")
    a.label("K2_FIN")
    if STAMP: a("s_waitcnt vmcnt(0)")
    stamp(a, 3, vt=31); stamp_flush(a, kidx, 31)
```

```python
import sys, os, struct
from asmlib import *
from gen1 import (HDR, SRD3, P, PX, PLRE, PLIM, PBRE, PBIM, PCRE, PCIM, PLDT, PDSK, PBX, PWG, PWU, PWD, POUT, PDBG, PWS,
                  load_args, mk_srd, sdiv, vdiv, kernel_begin, descriptor, stamp, stamp_flush, STAMP)
ENV = os.environ.get

AF_OFF = 4 << 20
BF_OFF = 20 << 20
E_OFF = 28 << 20
ST_OFF = 29 << 20
CS_OFF = 30 << 20
GO_OFF = 31 << 20
X_SZ = 2048 * 1280
AF_SZ = 32 * 94 * 4096
BF_SZ = 8 * 94 * 5120
E_SZ = 16 * 640 * 16
ST_SZ = 2048 * 16
CSF_SZ = 11 * 10 * 320 * 8
CSS_SZ = 5 * 10 * 256 * 8
CS_SZ = CSF_SZ + CSS_SZ
LOG2E = 1.4426950408889634
def f32hex(x): return "0x%08x" % struct.unpack("<I", struct.pack("<f", x))[0]

XSLOT = 16384
FX0 = 0
FW0 = 3 * XSLOT
GU = 10240 + 32
WSLOT = 20544
SSLOT = 49152
SPARE = FW0 + 5 * WSLOT
K1_LDS = 163840
NST = 20
KNAME = "recurrent_scan__ssm_conv_s5__geglu_ffn__prompt_kernel"
VN = 247

def vpk(a, op, dst, *srcs):
    ops, sel, selhi, neg = [], [], [], []
    for sx in srcs:
        k, r = sx[0], sx[1]
        n = 1 if (len(sx) > 2 and sx[2]) else 0
        if k == 'p': assert r % 2 == 0; ops.append(f"v[{r}:{r+1}]"); sel.append(0); selhi.append(1)
        elif k == 'b': e = r & ~1; ops.append(f"v[{e}:{e+1}]"); sel.append(r & 1); selhi.append(r & 1)
        elif k == 's': ops.append(f"s[{r}:{r+1}]"); sel.append(0); selhi.append(1)
        neg.append(n)
    assert dst % 2 == 0
    t = f"v_pk_{op}_f32 v[{dst}:{dst+1}], " + ", ".join(ops)
    f = lambda l: "[" + ",".join(map(str, l)) + "]"
    if any(sel): t += f" op_sel:{f(sel)}"
    if not all(selhi): t += f" op_sel_hi:{f(selhi)}"
    if any(neg): t += f" neg_lo:{f(neg)} neg_hi:{f(neg)}"
    a(t)

def gen_k1(a):
    kernel_begin(a, KNAME)
    a("s_cmp_ge_u32 s2, 256")
    a("s_cbranch_scc1 K1_END")
    load_args(a)
    a("v_lshrrev_b32 v1, 6, v0")
    a("v_and_b32 v2, 63, v0")
    a("s_and_b32 s8, s2, 7")
    a("v_readfirstlane_b32 s3, v1")
    a("s_lshr_b32 s9, s2, 3")
    if not ENV("MAP1"):
        a("s_lshr_b32 s6, s8, 1")
        a("s_lshl_b32 s6, s6, 2")
        a("s_and_b32 s10, s9, 3")
        a("s_add_u32 s6, s6, s10")
        a("s_and_b32 s7, s8, 1")
        a("s_lshl_b32 s7, s7, 3")
        a("s_lshr_b32 s10, s9, 2")
        a("s_add_u32 s7, s7, s10")
    else:
        a("s_and_b32 s6, s8, 1")
        a("s_lshl_b32 s6, s6, 3")
        a("s_and_b32 s10, s9, 7")
        a("s_add_u32 s6, s6, s10")
        a("s_lshr_b32 s7, s8, 1")
        a("s_lshl_b32 s7, s7, 2")
        a("s_lshr_b32 s10, s9, 3")
        a("s_add_u32 s7, s7, s10")
    a("s_and_b32 s4, s3, 3")
    a("s_lshr_b32 s5, s3, 2")
    a("s_add_u32 s11, s6, s7")
    for _ in range(3):
        a("s_sub_u32 s12, s11, 10")
        a("s_cmp_ge_u32 s11, 10")
        a("s_cselect_b32 s11, s12, s11")
    a("s_mov_b32 s0, s11")
    a("s_lshl_b32 s10, s6, 7")
    a("s_lshl_b32 s11, s3, 4")
    a("s_add_u32 s10, s10, s11")
    a("v_lshrrev_b32 v3, 3, v2")
    a("v_add_u32 v4, s10, v3")
    a("v_mul_u32_u24 v8, 1280, v4")
    a("v_and_b32 v5, 7, v2")
    a("v_lshrrev_b32 v6, 4, v2")
    a("v_xor_b32 v26, v5, v6")
    a("v_xor_b32 v27, 4, v26")
    a(f"v_add_u32 v9, {8*1280}, v8")
    a("v_lshl_add_u32 v8, v26, 4, v8")
    a("v_lshl_add_u32 v9, v27, 4, v9")
    a("v_mov_b32 v18, 0x3f803f80")
    a("s_lshl_b32 s69, s3, 11")
    a("s_lshl_b32 s74, s0, 7")
    a("s_waitcnt lgkmcnt(0)")
    if STAMP: a("v_mov_b32 v255, 0")
    stamp(a, 0)
    mk_srd(a, 48, PX, X_SZ)
    a("s_or_b32 s10, s2, s3")
    a("s_cmp_eq_u32 s10, 0")
    a("s_cbranch_scc0 K1_NONC")
    a("s_memrealtime s[92:93]")
    a("s_waitcnt lgkmcnt(0)")
    a("s_or_b32 s92, s92, 1")
    a("v_mov_b32 v3, s92")
    a("v_mov_b32 v4, 0")
    a(f"global_store_dword v4, v3, s[{PDBG}:{PDBG+1}] sc1")
    a.label("K1_NONC")
    a("s_cmp_lt_u32 s3, 6")
    a("s_cbranch_scc1 K1_NOSJ")
    a("s_lshl_b32 s10, s2, 3")
    a("s_sub_u32 s11, s3, 6")
    a("s_lshl_b32 s11, s11, 2")
    a("s_add_u32 s10, s10, s11")
    a("v_add_u32 v28, s10, v6")
    a("v_mul_u32_u24 v3, 1280, v28")
    a("v_and_b32 v4, 15, v2")
    a("v_lshl_add_u32 v3, v4, 4, v3")
    for i in range(5):
        a(f"buffer_load_dwordx4 v[{208+4*i}:{211+4*i}], v3, s[48:51], 0 offen offset:{256*i}")
    a.label("K1_NOSJ")
    mk_srd(a, 64, PWS, AF_SZ, AF_OFF)
    mk_srd(a, 96, PWS, BF_SZ, BF_OFF)

    def l2_touch():
        a("s_lshl_b32 s10, s2, 3")
        a("s_add_u32 s10, s10, s3")
        a("s_mul_i32 s11, s10, 15")
        a(f"s_mov_b32 s92, s{PCRE}"); a(f"s_mov_b32 s93, s{PCRE+1}")
        a("s_mov_b32 s12, 6385")
        a("s_cmp_ge_u32 s10, 427")
        a(f"s_cselect_b32 s92, s{PCIM}, s92"); a(f"s_cselect_b32 s93, s{PCIM+1}, s93")
        a(f"s_sub_u32 s13, s11, {427*15}")
        a("s_cselect_b32 s11, s13, s11")
        a("s_cmp_ge_u32 s10, 854")
        a(f"s_cselect_b32 s92, s{PWD}, s92"); a(f"s_cselect_b32 s93, s{PWD+1}, s93")
        a(f"s_sub_u32 s13, s11, {427*15}")
        a("s_cselect_b32 s11, s13, s11")
        a("s_cselect_b32 s12, 17265, s12")
        a("s_min_u32 s11, s11, s12")
        a("s_lshl_b32 s11, s11, 7")
        a("s_add_u32 s92, s92, s11")
        a("s_addc_u32 s93, s93, 0")
        for i in range(15):
            a(f"s_load_dword s94, s[92:93], {128*i:#x}")
    def side_prep(vb):
        a("s_lshl_b32 s10, s2, 3")
        a("s_add_u32 s10, s10, s3")
        sdiv(a, 11, 10, 200)
        a("s_mul_i32 s12, s11, 200")
        a("s_sub_u32 s12, s10, s12")
        sdiv(a, 13, 12, 5)
        a("s_mul_i32 s14, s13, 5")
        a("s_sub_u32 s14, s12, s14")
        a("s_and_b32 s91, s13, 1")
        a("s_mul_i32 s15, s11, 80")
        a("s_lshl_b32 s89, s14, 4")
        a("s_add_u32 s15, s15, s89")
        a("v_and_b32 v3, 15, v2")
        a("v_add_u32 v3, s15, v3")
        a("v_mul_u32_u24 v3, 1280, v3")
        a("v_lshrrev_b32 v4, 4, v2")
        a(f"v_lshl_add_u32 v{vb}, v4, 4, v3")
        a("s_lshr_b32 s89, s13, 1")
        a("s_lshl_b32 s89, s89, 6")
        a("s_mul_i32 s100, s11, 94")
        a("s_add_u32 s100, s100, s13")
        a("s_mul_i32 s100, s100, 5")
        a("s_add_u32 s100, s100, s14")
        a("s_lshl_b32 s100, s100, 10")
        a("s_lshl_b32 s11, s2, 1")
        a("s_add_u32 s11, s11, s3")
        a("s_sub_u32 s11, s11, 1")
        sdiv(a, 13, 11, 54)
        a("s_mul_i32 s12, s13, 54")
        a("s_sub_u32 s12, s11, s12")
        a(f"s_mul_i32 s90, s12, {32*1280}")
        a("s_mul_i32 s15, s13, 160")
        a("s_add_u32 s90, s90, s15")
        a("s_mul_i32 s101, s13, 94")
        a("s_add_u32 s101, s101, s12")
        a("s_add_u32 s101, s101, 40")
        a("s_mul_i32 s101, s101, 5120")
        for i in range(5):
            a(f"v_add_u32 v3, {64*i}, v2")
            vdiv(a, 4, 3, 10, 15)
            a("v_mul_u32_u24 v5, 10, v4")
            a("v_sub_u32 v5, v3, v5")
            a("v_mul_u32_u24 v4, 1280, v4")
            a(f"v_lshl_add_u32 v{vb+1+i}, v5, 4, v4")
    def side_issue(vb):
        l1, l2 = a.uid("K1_NOC"), a.uid("K1_NOW")
        a("s_cmp_ge_u32 s2, 200")
        a(f"s_cbranch_scc1 {l1}")
        a("s_cmp_lg_u32 s91, 0")
        a(f"s_cselect_b32 s92, s{PCIM}, s{PCRE}")
        a(f"s_cselect_b32 s93, s{PCIM+1}, s{PCRE+1}")
        a(f"s_mov_b32 s94, {640*1280}")
        a(f"s_mov_b32 s95, {SRD3:#x}")
        a(f"buffer_load_dwordx4 v[248:251], v{vb}, s[92:95], s89 offen")
        a.label(l1)
        a("s_cmp_ge_u32 s2, 216")
        a(f"s_cbranch_scc1 {l2}")
        a("s_sub_u32 s13, s3, 1")
        a("s_cmp_ge_u32 s13, 2")
        a(f"s_cbranch_scc1 {l2}")
        mk_srd(a, 92, PWD, 1728 * 1280)
        a("s_mul_i32 s13, s13, 5120")
        a(f"s_add_u32 s13, s13, {SPARE}")
        for i in range(5):
            a(f"s_add_u32 m0, s13, {1024*i}")
            a("s_nop 0")
            a(f"buffer_load_dwordx4 v{vb+1+i}, s[92:95], s90 offen lds")
        a.label(l2)
    def side_finish(vt):
        l1, l2 = a.uid("K1_SF1"), a.uid("K1_SF2")
        a(f"v_lshlrev_b32 v{vt+20}, 4, v2")
        a("s_cmp_ge_u32 s2, 200")
        a(f"s_cbranch_scc1 {l1}")
        a(f"buffer_store_dwordx4 v[248:251], v{vt+20}, s[96:99], s100 offen sc1")
        a.label(l1)
        a("s_cmp_ge_u32 s2, 216")
        a(f"s_cbranch_scc1 {l2}")
        a("s_sub_u32 s13, s3, 1")
        a("s_cmp_ge_u32 s13, 2")
        a(f"s_cbranch_scc1 {l2}")
        t = vt + 21
        a(f"v_lshrrev_b32 v{t}, 5, v2")
        a(f"v_lshlrev_b32 v{t}, 4, v{t}")
        a("v_bfe_u32 v4, v2, 4, 1")
        a(f"v_lshl_add_u32 v{t}, v4, 2, v{t}")
        a("v_bfe_u32 v4, v2, 2, 2")
        a(f"v_add_u32 v{t}, v{t}, v4")
        a(f"v_mul_u32_u24 v{t}, 160, v{t}")
        a("v_and_b32 v4, 3, v2")
        a(f"v_lshl_add_u32 v{t}, v4, 3, v{t}")
        a("s_mul_i32 s13, s13, 5120")
        a(f"s_add_u32 s13, s13, {SPARE}")
        a(f"v_add_u32 v{t}, s13, v{t}")
        for j in range(5):
            a(f"ds_read_b64_tr_b16 v[{vt+4*j}:{vt+1+4*j}], v{t} offset:{32*j}")
            a(f"ds_read_b64_tr_b16 v[{vt+2+4*j}:{vt+3+4*j}], v{t} offset:{32*j+8*160}")
        a("s_waitcnt lgkmcnt(0)")
        for j in range(5):
            a(f"s_add_u32 s13, s101, {1024*j}")
            a(f"buffer_store_dwordx4 v[{vt+4*j}:{vt+3+4*j}], v{vt+20}, s[96:99], s13 offen sc1")
        a.label(l2)
    HOOKS = []
    def hook(tag, vb, vt):
        for val, name, fn in ((7, "I", lambda: side_issue(vb)), (5, "F", lambda: side_finish(vt)),
                              (2, "A", lambda: arrive_issue("CB" + tag, lambda: a("s_mov_b32 s10, 32")))):
            lo, lb = f"HK_{tag}_{name}", f"HK_{tag}_{name}_B"
            a(f"s_cmp_eq_u32 s77, {val}")
            a(f"s_cbranch_scc1 {lo}")
            a.label(lb)
            HOOKS.append((lo, lb, fn))
    def flush_hooks():
        for lo, lb, fn in HOOKS:
            a.label(lo)
            fn()
            a(f"s_branch {lb}")
        HOOKS.clear()

    def arrive_issue(tag, word_off):
        l = f"K1_AI_{tag}"
        a("s_cmp_eq_u32 s3, 0")
        a(f"s_cbranch_scc0 {l}")
        word_off()
        a("v_mov_b32 v31, s10")
        a("v_mov_b32 v27, 1")
        a("s_mov_b64 s[12:13], exec")
        a("s_mov_b64 exec, 1")
        a(f"global_atomic_add v31, v31, v27, s[{PDBG}:{PDBG+1}] sc0 sc1")
        a("s_mov_b64 exec, s[12:13]")
        a.label(l)
    def arrive_check(tag, total, go_expr, nrep, wait=True):
        l = f"K1_AC_{tag}"
        a("s_cmp_eq_u32 s3, 0")
        a(f"s_cbranch_scc0 {l}")
        if wait: a("s_waitcnt vmcnt(0)")
        a("v_readfirstlane_b32 s10, v31")
        a(f"s_cmp_eq_u32 s10, {total-1}")
        a(f"s_cbranch_scc0 {l}")
        ensure_nonce("AC" + tag)
        go_expr()
        a("v_lshlrev_b32 v27, 7, v2")
        a("v_add_u32 v27, s11, v27")
        a(f"s_mov_b64 exec, {(1 << nrep) - 1:#x}" if nrep < 32 else "s_mov_b32 exec_hi, 0")
        a(f"global_store_dword v27, v{VN}, s[{PWS}:{PWS+1}] sc1")
        a("s_mov_b64 exec, -1")
        a.label(l)
    def arrive(tag, word_off, total, go_expr, nrep):
        arrive_issue(tag, word_off)
        arrive_check(tag, total, go_expr, nrep)

    def phase1_done(tag, word_off, total, go_expr, nrep):
        stamp(a, 26)
        a("s_waitcnt vmcnt(0)")
        a("s_barrier")
        arrive(tag, word_off, total, go_expr, nrep)

    def ensure_nonce(tag):
        l0, l1 = f"K1_EN0_{tag}", f"K1_EN1_{tag}"
        a(f"v_readfirstlane_b32 s10, v{VN}")
        a("s_cmp_lg_u32 s10, 0")
        a(f"s_cbranch_scc1 {l1}")
        a("v_mov_b32 v3, 0")
        a("s_mov_b32 s11, 2000000")
        a.label(l0)
        a(f"global_load_dword v{VN}, v3, s[{PDBG}:{PDBG+1}] sc1")
        a("s_waitcnt vmcnt(0)")
        a(f"v_readfirstlane_b32 s10, v{VN}")
        a("s_sub_u32 s11, s11, 1")
        a("s_cmp_eq_u32 s11, 0")
        a(f"s_cbranch_scc1 {l1}")
        a("s_cmp_eq_u32 s10, 0")
        a(f"s_cbranch_scc1 {l0}")
        a.label(l1)

    def nonce_load():
        a("v_mov_b32 v3, 0")
        a(f"global_load_dword v{VN}, v3, s[{PDBG}:{PDBG+1}] sc1")

    def stats_job(tag, younger):
        l = f"K1_SJ_{tag}"
        a("s_cmp_lt_u32 s3, 6")
        a(f"s_cbranch_scc1 {l}")
        a(f"s_waitcnt vmcnt({younger})")
        a("v_mov_b32 v19, 0"); a("v_mov_b32 v20, 0"); a("v_mov_b32 v21, 0"); a("v_mov_b32 v22, 0")
        for i in range(20):
            a(f"v_dot2c_f32_bf16 v{19 + (i & 1)}, v{208+i}, v18")
            a(f"v_dot2c_f32_bf16 v{21 + (i & 1)}, v{208+i}, v{208+i}")
        a("s_nop 2")
        a("v_add_f32 v19, v19, v20")
        a("v_add_f32 v20, v21, v22")
        for sh in (8, 4, 2, 1):
            a("s_nop 1")
            a(f"v_add_f32_dpp v19, v19, v19 row_ror:{sh} row_mask:0xf bank_mask:0xf")
            a(f"v_add_f32_dpp v20, v20, v20 row_ror:{sh} row_mask:0xf bank_mask:0xf")
        a(f"v_mul_f32 v19, {f32hex(1.0/640)}, v19")
        a(f"v_mul_f32 v20, {f32hex(1.0/640)}, v20")
        a("v_fma_f32 v20, -v19, v19, v20")
        a("v_max_f32 v20, 0, v20")
        a("v_cvt_pk_bf16_f32 v21, v19, v20")
        a("v_lshlrev_b32 v238, 16, v21")
        a("v_and_b32 v21, 0xffff0000, v21")
        a("v_add_f32 v21, 0x3727c5ac, v21")
        a("v_cvt_pk_bf16_f32 v21, v21, v21")
        a("v_and_b32 v21, 0xffff0000, v21")
        a("v_sqrt_f32 v21, v21")
        a("s_nop 0")
        a("v_cvt_pk_bf16_f32 v21, v21, v21")
        a("v_and_b32 v21, 0xffff0000, v21")
        a("v_rcp_f32 v239, v21")
        a.label(l)

    def stats_publish(tag):
        l = f"K1_SP_{tag}"
        a("s_cmp_lt_u32 s3, 6")
        a(f"s_cbranch_scc1 {l}")
        a("s_cmp_eq_u32 s77, 1")
        a(f"s_cbranch_scc0 {l}")
        ensure_nonce(tag + "P")
        a("v_mov_b32 v240, v238")
        a("v_mov_b32 v241, v239")
        a(f"v_mov_b32 v242, v{VN}")
        a(f"v_not_b32 v243, v{VN}")
        a("v_lshlrev_b32 v3, 4, v28")
        a("v_and_b32 v4, 15, v2")
        a("v_cmp_eq_u32 vcc, 0, v4")
        a("s_and_saveexec_b64 s[10:11], vcc")
        a("buffer_store_dwordx4 v[240:243], v3, s[84:87], 0 offen sc1")
        a("s_mov_b64 exec, s[10:11]")
        a.label(l)

    a("s_cmp_ge_u32 s7, 11")
    a("s_cbranch_scc1 K1_SSM")

    a(f"s_mov_b32 s79, {FX0}")
    def dma_x(slotreg, step, base, end):
        a(f"s_add_u32 m0, s{slotreg}, s69")
        a("s_nop 0")
        a("buffer_load_dwordx4 v8, s[48:51], s74 offen lds")
        a("s_add_u32 m0, m0, 1024")
        a("s_nop 0")
        a("buffer_load_dwordx4 v9, s[48:51], s74 offen lds")
        adv_x(slotreg, step, base, end)
    def adv_x(slotreg, step, base, end):
        a("s_add_u32 s74, s74, 128")
        a("s_cmp_ge_u32 s74, 1280")
        a("s_cselect_b32 s74, 0, s74")
        a(f"s_add_u32 s{slotreg}, s{slotreg}, {step}")
        a(f"s_cmp_ge_u32 s{slotreg}, {end}")
        a(f"s_cselect_b32 s{slotreg}, {base}, s{slotreg}")
    fx = lambda: dma_x(79, XSLOT, FX0, FX0 + 3 * XSLOT)
    fx()
    if ENV("PSTAMP"): stamp(a, 20)
    mk_srd(a, 52, PWG, 640 * 3456)
    a("s_cmp_lt_u32 s3, 2")
    a(f"s_cselect_b32 s56, s{PWG}, s{PWU}")
    a(f"s_cselect_b32 s57, s{PWG+1}, s{PWU+1}")
    a(f"s_mov_b32 s58, {640*3456}")
    a(f"s_mov_b32 s59, {SRD3:#x}")
    mk_srd(a, 60, PWU, 640 * 3456)
    a("s_add_u32 s10, s3, 8")
    a("s_sub_u32 s11, s3, 2")
    a("s_cmp_lt_u32 s3, 2")
    a("s_cselect_b32 s10, s10, s11")
    a(f"s_mov_b32 s12, {GU}")
    a("s_cselect_b32 s11, 0, s12")
    a("s_lshl_b32 s12, s10, 10")
    a("s_add_u32 s71, s12, s11")
    a("s_lshl_b32 s70, s3, 10")
    a(f"s_add_u32 s72, s70, {GU + 6*1024}")
    def woff(dst, sidx):
        a(f"s_lshl_b32 s12, {sidx}, 6")
        a("v_add_u32 v3, s12, v2")
        vdiv(a, 4, 3, 20, 13)
        a("v_mul_u32_u24 v5, 20, v4")
        a("v_sub_u32 v5, v3, v5")
        a("v_mul_u32_u24 v4, 3456, v4")
        a(f"v_lshl_add_u32 v{dst}, v5, 4, v4")
    woff(10, "s3")
    woff(11, "s10")
    a("s_add_u32 s11, s3, 6")
    woff(12, "s11")
    a("s_mul_i32 s1, s7, 320")
    a(f"s_mul_i32 s73, s0, {64*3456}")
    a("s_add_u32 s73, s73, s1")
    a(f"s_add_u32 s1, s1, {640*3456}")
    a(f"s_mov_b32 s75, {FW0}")
    def adv_w():
        a(f"s_add_u32 s73, s73, {32*3456}")
        a(f"s_sub_u32 s12, s73, {640*3456}")
        a("s_cmp_ge_u32 s73, s1")
        a("s_cselect_b32 s73, s12, s73")
        a(f"s_add_u32 s75, s75, {WSLOT}")
        a(f"s_cmp_ge_u32 s75, {FW0 + 5*WSLOT}")
        a(f"s_cselect_b32 s75, {FW0}, s75")
    def dma_w():
        a("s_add_u32 m0, s75, s70")
        a("s_nop 0")
        a("buffer_load_dwordx4 v10, s[52:55], s73 offen lds")
        a("s_add_u32 m0, s75, s71")
        a("s_nop 0")
        a("buffer_load_dwordx4 v11, s[56:59], s73 offen lds")
        l = a.uid("K1F3")
        a("s_cmp_lt_u32 s3, 4")
        a(f"s_cbranch_scc0 {l}")
        a("s_add_u32 m0, s75, s72")
        a("s_nop 0")
        a("buffer_load_dwordx4 v12, s[60:63], s73 offen lds")
        a.label(l)
        adv_w()
    dma_w()
    a("s_barrier")
    l2_touch()
    if ENV("PSTAMP"): stamp(a, 21)
    dma_w()
    if ENV("PSTAMP"): stamp(a, 22)
    a("v_and_b32 v3, 31, v2")
    a("s_lshl_b32 s10, s4, 5")
    a("v_add_u32 v4, s10, v3")
    a("v_lshlrev_b32 v13, 7, v4")
    a("v_bfe_u32 v5, v2, 1, 3")
    a("v_lshrrev_b32 v4, 5, v2")
    a("v_xor_b32 v4, v4, v5")
    a("v_lshl_add_u32 v13, v4, 4, v13")
    a("v_lshrrev_b32 v3, 5, v2")
    a("v_lshlrev_b32 v3, 3, v3")
    a("v_bfe_u32 v4, v2, 2, 2")
    a("v_add_u32 v3, v3, v4")
    a("v_mul_u32_u24 v14, 320, v3")
    a("v_and_b32 v4, 3, v2")
    a("v_lshl_add_u32 v14, v4, 3, v14")
    a("v_bfe_u32 v4, v2, 4, 1")
    a(f"v_mul_u32_u24 v4, {GU}, v4")
    a("v_add_u32 v14, v14, v4")
    a("s_mul_i32 s10, s5, 160")
    a("v_add_u32 v14, s10, v14")
    for i in range(80):
        a(f"v_mov_b32 v{128+i}, 0")
    a("s_cmp_eq_u32 s4, s5")
    a("s_cselect_b32 s68, 1, 0")
    a("s_cmp_lt_u32 s6, 10")
    a("s_cselect_b32 s68, s68, 0")
    if ENV("PSTAMP"): stamp(a, 23)
    side_prep(232)
    stats_job("F", 6)
    if ENV("PSTAMP"): stamp(a, 24)
    for i in range(21, 26):
        a(f"v_mov_b32 v{i}, 0")
    a("s_cmp_lt_u32 s3, 4")
    a("s_cbranch_scc1 K1F_P1")
    a(f"s_waitcnt vmcnt(2)")
    a.label("K1F_P1")
    a(f"s_waitcnt vmcnt(3)")
    if ENV("PSTAMP"): stamp(a, 25)
    a("s_barrier")
    stamp(a, 1)
    SETS = (32, 80)
    def reads_ffn(setb):
        out = [f"ds_read_b128 v[{setb}:{setb+3}], v15", f"ds_read_b128 v[{setb+4}:{setb+7}], v16"]
        for ks in range(2):
            for j in range(5):
                b = setb + 8 + (ks * 5 + j) * 4
                off = ks * 5120 + j * 32
                out.append(f"ds_read_b64_tr_b16 v[{b}:{b+1}], v17 offset:{off}")
                out.append(f"ds_read_b64_tr_b16 v[{b+2}:{b+3}], v17 offset:{off+1280}")
        return out
    def rd_addr(uprime):
        a("v_add_u32 v15, s78, v13")
        if uprime: a("v_xor_b32 v15, 64, v15")
        a("v_xor_b32 v16, 32, v15")
        a("v_add_u32 v17, s76, v14")
        a(f"s_add_u32 s76, s76, {WSLOT}")
        a(f"s_cmp_ge_u32 s76, {FW0 + 5*WSLOT}")
        a(f"s_cselect_b32 s76, {FW0}, s76")
        if uprime:
            a(f"s_add_u32 s78, s78, {XSLOT}")
            a(f"s_cmp_ge_u32 s78, {FX0 + 3*XSLOT}")
            a(f"s_cselect_b32 s78, {FX0}, s78")
    a(f"s_mov_b32 s76, {FW0}")
    a(f"s_mov_b32 s78, {FX0}")
    rd_addr(0)
    for r in reads_ffn(SETS[0]): a(r)
    nonce_load()
    dma_w(); fx()
    mk_srd(a, 80, PWS, CS_SZ, CS_OFF)
    mk_srd(a, 84, PWS, ST_SZ, ST_OFF)
    a("v_lshlrev_b32 v29, 3, v0")
    a("v_cmp_gt_u32 vcc, 320, v0")
    a("v_mov_b32 v3, 0x7ffffff0")
    a("s_mul_i32 s88, s7, 25600")
    a("v_cndmask_b32 v29, v3, v29, vcc")
    a("s_lshl_b32 s10, s6, 7")
    a("s_lshl_b32 s11, s4, 5")
    a("s_add_u32 s10, s10, s11")
    a("v_and_b32 v3, 31, v2")
    a("v_add_u32 v3, s10, v3")
    a("v_lshlrev_b32 v30, 4, v3")
    def epi_loads():
        for kk in range(10):
            a(f"s_add_u32 s12, s88, {kk*2560}")
            a(f"buffer_load_dwordx2 v[{208+2*kk}:{209+2*kk}], v29, s[80:83], s12 offen sc1")
        a("buffer_load_dwordx4 v[228:231], v30, s[84:87], 0 offen sc1")
    NE = 11
    if STAMP:
        a("s_memtime s[92:93]"); a("s_waitcnt lgkmcnt(0)"); a("v_writelane_b32 v255, s92, 6")
    def ffn_tprep(tag):
        lchk, lok = f"K1F_CHK{tag}", f"K1F_OK{tag}"
        ensure_nonce("FE" + tag)
        a.label(lchk)
        a("s_waitcnt vmcnt(0)")
        a(f"v_not_b32 v3, v{VN}")
        a(f"v_cmp_eq_u32 s[10:11], v230, v{VN}")
        a("v_cmp_eq_u32 vcc, v231, v3")
        a("s_and_b64 s[10:11], s[10:11], vcc")
        a("v_mov_b32 v4, 0x7ffffff0")
        a("v_cmp_eq_u32 s[12:13], v4, v29")
        a("s_mov_b64 s[14:15], -1")
        for kk in range(10):
            a(f"v_cmp_eq_u32 vcc, v{209+2*kk}, v{VN}")
            a("s_and_b64 s[14:15], s[14:15], vcc")
        a("s_or_b64 s[14:15], s[14:15], s[12:13]")
        a("s_and_b64 s[10:11], s[10:11], s[14:15]")
        a("s_cmp_eq_u64 s[10:11], -1")
        a(f"s_cbranch_scc1 {lok}")
        a("s_sleep 1")
        epi_loads()
        a(f"s_branch {lchk}")
        a.label(lok)
        for kk in range(1, 10):
            a(f"v_add_f32 v208, v208, v{208+2*kk}")
        a("v_lshlrev_b32 v4, 2, v0")
        a("v_cmp_gt_u32 vcc, 320, v0")
        a("s_and_saveexec_b64 s[10:11], vcc")
        a(f"ds_write_b32 v4, v208 offset:{SPARE + 10240 - 98304}" if False else f"v_add_u32 v4, {SPARE + 10240}, v4")
        a("ds_write_b32 v4, v208")
        a("s_mov_b64 exec, s[10:11]")
    def ffn_stage(var, u, vm, wd, xd, first=False, epi=False, reads=True, tag="", tprep=False, hk=False, cbchk=False):
        nW = 3 if var == "A" else 2
        cur, nxt = SETS[u], SETS[1 - u]
        if vm is None: a("s_waitcnt lgkmcnt(0)")
        else: a(f"s_waitcnt vmcnt({vm}) lgkmcnt(0)")
        a("s_barrier")
        rd = reads_ffn(nxt) if reads else []
        if ENV("NORD"): rd = []
        mf = []
        for ks in range(2):
            for j in range(5):
                w = cur + 8 + (ks * 5 + j) * 4
                x = cur + 4 * ks
                ac = 128 + 16 * j
                mf.append(f"v_mfma_f32_32x32x16_bf16 v[{ac}:{ac+15}], v[{w}:{w+3}], v[{x}:{x+3}], v[{ac}:{ac+15}]")
        pieces = []
        if wd and not ENV("NODMA"):
            pieces += [("s75", "s70", None, 10, 52, "s73"), ("s75", "s71", None, 11, 56, "s73")]
            if var == "A": pieces.append(("s75", "s72", None, 12, 60, "s73"))
        if xd and not ENV("NODMA"):
            pieces += [("s79", "s69", None, 8, 48, "s74"), ("s79", "s69", 1024, 9, 48, "s74")]
        slots = [1, 3, 5, 6, 7][:len(pieces)]
        ri = 0
        for mi, m in enumerate(mf):
            a(m)
            if mi == 0:
                if reads: rd_addr(1 - u)
            elif mi < 8:
                for _ in range(4):
                    if ri < len(rd): a(rd[ri]); ri += 1
            if mi in slots:
                (b0, b1, add, voff, srd, soff) = pieces[slots.index(mi)]
                a(f"s_add_u32 m0, {b0}, {b1}")
                if add: a(f"s_add_u32 m0, m0, {add}")
                a("s_nop 0")
                a(f"buffer_load_dwordx4 v{voff}, s[{srd}:{srd+3}], {soff} offen lds")
            if mi == 8:
                if wd: adv_w()
                if xd: adv_x(79, XSLOT, FX0, FX0 + 3 * XSLOT)
                if hk: hook("F" + var, 232, 208)
                if cbchk: arrive_check("CBF" + var, 256, lambda: a(f"s_mov_b32 s11, {GO_OFF}"), 32, wait=False)
                if epi: epi_loads()
                if tprep: ffn_tprep(tag)
                if first:
                    lc = a.uid("K1C")
                    a("s_cmp_eq_u32 s68, 0")
                    a(f"s_cbranch_scc1 {lc}")
                    for ks in range(2):
                        for i in range(4):
                            for j in range(5):
                                w = cur + 8 + (ks * 5 + j) * 4
                                a(f"v_dot2c_f32_bf16 v{21+j}, v{w+i}, v18")
                    if u == 1:
                        for j in range(5): a(f"v_mov_b32 v{208+2*j}, v{21+j}")
                        a("s_nop 1")
                        for j in range(5): a(f"v_permlane32_swap_b32 v{21+j}, v{208+2*j}")
                        for j in range(5): a(f"v_add_f32 v{208+2*j}, v{21+j}, v{208+2*j}")
                        ensure_nonce("FC" + tag)
                        for j in range(5): a(f"v_mov_b32 v{209+2*j}, v{VN}")
                        a("v_and_b32 v3, 31, v2")
                        a("s_mul_i32 s10, s5, 160")
                        a("v_add_u32 v3, s10, v3")
                        a("v_lshlrev_b32 v3, 3, v3")
                        a("s_mul_i32 s10, s0, 2560")
                        a("s_add_u32 s10, s10, s88")
                        a("s_mov_b32 exec_hi, 0")
                        for j in range(5):
                            a(f"buffer_store_dwordx2 v[{208+2*j}:{209+2*j}], v3, s[80:83], s10 offen offset:{256*j} sc1")
                        a("s_mov_b32 exec_hi, -1")
                    a.label(lc)
                    if u == 1:
                        a("s_mov_b32 s77, 1")
                        stats_publish("F" + tag)
    a("s_cmp_ge_u32 s3, 4")
    a("s_cbranch_scc1 K1F_B")
    for var in ("A", "B"):
        nW = 3 if var == "A" else 2
        if var == "B": a.label("K1F_B")
        ffn_stage(var, 0, nW + 3, True, False, first=True, tag=var)
        ffn_stage(var, 1, nW, True, True, first=True, tag=var)
        a("s_mov_b32 s77, 7")
        a.label(f"K1F_LOOP_{var}")
        ffn_stage(var, 0, nW + 2, True, False)
        ffn_stage(var, 1, nW, True, True, hk=True)
        if STAMP and ENV("ITSTAMP"):
            a("s_memrealtime s[92:93]")
            a("s_sub_u32 s94, 7, s77")
            a("s_add_u32 m0, s94, 9")
            a("s_waitcnt lgkmcnt(0)")
            a("s_nop 3")
            a("v_writelane_b32 v255, s92, m0")
        a("s_sub_u32 s77, s77, 1")
        a("s_cmp_lg_u32 s77, 0")
        a(f"s_cbranch_scc1 K1F_LOOP_{var}")
        ffn_stage(var, 0, nW + 2, True, False, epi=True, cbchk=True)
        ffn_stage(var, 1, nW + NE, False, False)
        ffn_stage(var, 0, NE, False, False, tprep=True, tag=var)
        ffn_stage(var, 1, None, False, False, reads=False)
        a("s_branch K1F_EPI")
        flush_hooks()
    a.label("K1F_EPI")
    if STAMP:
        a("s_memtime s[92:93]"); a("s_waitcnt lgkmcnt(0)"); a("v_writelane_b32 v255, s92, 7")
    stamp(a, 2)
    a("s_waitcnt lgkmcnt(0)")
    a("s_barrier")
    a("v_lshrrev_b32 v4, 5, v2")
    a("v_lshlrev_b32 v4, 4, v4")
    a("s_mul_i32 s12, s5, 640")
    a(f"s_add_u32 s12, s12, {SPARE + 10240}")
    a("v_add_u32 v4, s12, v4")
    for j in range(5):
        for q in range(4):
            a(f"ds_read_b128 v[{48+16*j+4*q}:{51+16*j+4*q}], v4 offset:{128*j + 32*q}")
    a("v_mov_b32 v20, v228")
    a("v_mov_b32 v22, v229")
    a("v_rcp_f32 v26, v229")
    a("s_and_b32 s10, s4, 1")
    a("s_lshl_b32 s10, s10, 11")
    a("v_bfe_u32 v3, v2, 4, 1")
    a("v_lshlrev_b32 v3, 10, v3")
    a("v_and_b32 v4, 15, v2")
    a("v_lshl_add_u32 v3, v4, 4, v3")
    a("v_lshrrev_b32 v4, 5, v2")
    a("v_lshl_add_u32 v3, v4, 8, v3")
    a("v_add_u32 v3, s10, v3")
    a("s_lshl_b32 s10, s6, 1")
    a("s_lshr_b32 s11, s4, 1")
    a("s_add_u32 s10, s10, s11")
    a("s_mul_i32 s10, s10, 94")
    a("s_add_u32 s10, s10, 40")
    a("s_mul_i32 s11, s7, 10")
    a("s_mul_i32 s12, s5, 5")
    a("s_add_u32 s11, s11, s12")
    C1 = -2.0 * LOG2E * 0.7978845608028654
    C2 = C1 * 0.044715
    a(f"s_mov_b32 s52, {f32hex(C2)}")
    a(f"s_mov_b32 s53, {f32hex(C2)}")
    a(f"v_mov_b32 v24, {f32hex(C1)}")
    for j in range(5):
        ac = 128 + 16 * j
        cs = 48 + 16 * j
        l = a.uid("K1FS")
        a(f"s_waitcnt lgkmcnt({min(15, 4*(4-j))})")
        a(f"s_add_u32 s12, s11, {j}")
        a("s_cmp_ge_u32 s12, 108")
        a(f"s_cbranch_scc1 {l}")
        for r in range(0, 16, 2):
            vpk(a, "fma", ac + r, ('b', 20, 1), ('p', cs + r), ('p', ac + r))
        for r in range(0, 8, 2):
            vpk(a, "mul", ac + r, ('p', ac + r), ('b', 22))
        for r in range(0, 8, 2):
            vpk(a, "mul", 32 + r, ('p', ac + r), ('p', ac + r))
        for r in range(0, 8, 2):
            vpk(a, "fma", 32 + r, ('p', 32 + r), ('s', 52), ('b', 24))
        for r in range(0, 8, 2):
            vpk(a, "mul", 32 + r, ('p', 32 + r), ('p', ac + r))
        for r in range(8):
            a(f"v_exp_f32 v{32+r}, v{32+r}")
        for r in range(0, 8, 2):
            vpk(a, "mul", ac + 8 + r, ('p', ac + r), ('p', ac + 8 + r))
        for r in range(0, 8, 2):
            vpk(a, "fma", 32 + r, ('p', 32 + r), ('b', 26), ('b', 26))
        for r in range(8):
            a(f"v_rcp_f32 v{32+r}, v{32+r}")
        a("s_lshr_b32 s13, s12, 1")
        a("s_add_u32 s13, s13, s10")
        for r in range(0, 8, 2):
            vpk(a, "mul", ac + 8 + r, ('p', ac + 8 + r), ('p', 32 + r))
        a("s_lshl_b32 s13, s13, 12")
        a("s_and_b32 s12, s12, 1")
        for r in range(4):
            a(f"v_cvt_pk_bf16_f32 v{40+4*(j&1)+r}, v{ac+8+2*r}, v{ac+9+2*r}")
        a("s_lshl_b32 s12, s12, 9")
        a("s_add_u32 s13, s13, s12")
        a(f"buffer_store_dwordx4 v[{40+4*(j&1)}:{43+4*(j&1)}], v3, s[64:67], s13 offen sc1")
        a.label(l)
    def wf_():
        a("s_lshl_b32 s10, s6, 2")
        a("s_add_u32 s10, s10, 64")
    def gf_():
        a("s_lshl_b32 s11, s6, 7")
        a(f"s_add_u32 s11, s11, {GO_OFF + 4096}")
    phase1_done("F", wf_, 11, gf_, 1)
    stamp(a, 3); stamp_flush(a, 0)
    a("s_branch PHASE2")

    PR = lambda g, k: 208 + 8 * g + k
    def ssm_params():
        for g in range(2):
            lre, lim, ldt = 232 + 3 * g, 233 + 3 * g, 234 + 3 * g
            ar_, ai_, cr_, ci_, qr, qi, hr, hi = [PR(g, k) for k in range(8)]
            a(f"v_lshlrev_b32 v{lre}, 16, v{lre}")
            a(f"v_lshlrev_b32 v{lim}, 16, v{lim}")
            a(f"v_lshlrev_b32 v{ldt}, 16, v{ldt}")
            a(f"v_mul_f32 v240, {f32hex(LOG2E)}, v{ldt}")
            a("v_exp_f32 v240, v240")
            a("s_nop 0")
            a("v_cvt_pk_bf16_f32 v240, v240, v240")
            a("v_lshlrev_b32 v240, 16, v240")
            a(f"v_mul_f32 v241, v240, v{lre}")
            a(f"v_mul_f32 v242, v240, v{lim}")
            a(f"v_mul_f32 v241, {f32hex(LOG2E)}, v241")
            a("v_exp_f32 v241, v241")
            a(f"v_mul_f32 v242, {f32hex(0.15915494309189535)}, v242")
            a("v_fract_f32 v242, v242")
            a("v_cos_f32 v243, v242")
            a("v_sin_f32 v244, v242")
            a("s_nop 0")
            a(f"v_mul_f32 v{ar_}, v241, v243")
            a(f"v_mul_f32 v{ai_}, v241, v244")
            a(f"v_add_f32 v243, -1.0, v{ar_}")
            a(f"v_mul_f32 v244, v{lre}, v{lre}")
            a(f"v_fmac_f32 v244, v{lim}, v{lim}")
            a("v_rcp_f32 v244, v244")
            a(f"v_mul_f32 v245, v243, v{lre}")
            a(f"v_fmac_f32 v245, v{ai_}, v{lim}")
            a(f"v_mul_f32 v246, v{ai_}, v{lre}")
            a(f"v_fma_f32 v246, -v243, v{lim}, v246")
            a("v_add_f32 v244, v244, v244")
            a(f"v_mul_f32 v{cr_}, v245, v244")
            a(f"v_mul_f32 v{ci_}, v246, v244")
            def sq(dr, di, sr_, si):
                a(f"v_mul_f32 v240, v{si}, v{si}")
                a(f"v_mul_f32 v241, v{sr_}, v{si}")
                a(f"v_fma_f32 v{dr}, v{sr_}, v{sr_}, -v240")
                a(f"v_add_f32 v{di}, v241, v241")
            sq(qr, qi, ar_, ai_)
            for _ in range(3): sq(qr, qi, qr, qi)
            sq(hr, hi, qr, qi)
            for _ in range(2): sq(hr, hi, hr, hi)

    a.label("K1_SSM")
    a("s_sub_u32 s7, s7, 11")
    mk_srd(a, 52, PBRE, 640 * 1280)
    mk_srd(a, 56, PBIM, 640 * 1280)
    a("s_lshl_b32 s10, s7, 7")
    a("s_lshl_b32 s11, s3, 4")
    a("s_add_u32 s10, s10, s11")
    a("v_lshrrev_b32 v3, 3, v2")
    a("v_add_u32 v4, s10, v3")
    a("v_mul_u32_u24 v10, 1280, v4")
    a(f"v_add_u32 v11, {8*1280}, v10")
    a("v_lshl_add_u32 v10, v26, 4, v10")
    a("v_lshl_add_u32 v11, v27, 4, v11")
    a("s_mov_b32 s73, s74")
    a("s_mov_b32 s75, 0")
    a("s_mov_b32 s79, 0")
    def adv(slot, soff):
        a(f"s_add_u32 s{soff}, s{soff}, 128")
        a(f"s_cmp_ge_u32 s{soff}, 1280")
        a(f"s_cselect_b32 s{soff}, 0, s{soff}")
        a(f"s_add_u32 s{slot}, s{slot}, {SSLOT}")
        a(f"s_cmp_ge_u32 s{slot}, {3*SSLOT}")
        a(f"s_cselect_b32 s{slot}, 0, s{slot}")
    def dma1(slot, off, v, srd, soff):
        a(f"s_add_u32 s10, s{slot}, s69")
        a(f"s_add_u32 m0, s10, {off}")
        a("s_nop 0")
        a(f"buffer_load_dwordx4 v{v}, s[{srd}:{srd+3}], s{soff} offen lds")
    HA = [(75, 0, 8, 48, 74), (75, 1024, 9, 48, 74), (75, 16384, 10, 52, 74)]
    HB = [(79, 16384 + 1024, 11, 52, 73), (79, 32768, 10, 56, 73), (79, 32768 + 1024, 11, 56, 73)]
    def half_a():
        for p in HA: dma1(*p)
        adv(75, 74)
    def half_b():
        for p in HB: dma1(*p)
        adv(79, 73)
    mk_srd(a, 80, PLRE, 1280)
    mk_srd(a, 84, PLIM, 1280)
    mk_srd(a, 88, PLDT, 1280)
    a("s_lshl_b32 s10, s7, 7")
    a("s_lshl_b32 s11, s5, 6")
    a("s_add_u32 s68, s10, s11")
    a("v_and_b32 v3, 31, v2")
    a("v_add_u32 v3, s68, v3")
    a("v_lshlrev_b32 v7, 1, v3")
    for g in range(2):
        a(f"buffer_load_ushort v{232+3*g}, v7, s[80:83], 0 offen offset:{64*g}")
        a(f"buffer_load_ushort v{233+3*g}, v7, s[84:87], 0 offen offset:{64*g}")
        a(f"buffer_load_ushort v{234+3*g}, v7, s[88:91], 0 offen offset:{64*g}")
    half_a(); half_b()
    a("s_barrier")
    l2_touch()
    half_a()
    a("v_bfe_u32 v3, v2, 2, 1")
    a("v_lshlrev_b32 v3, 4, v3")
    a("v_and_b32 v4, 3, v2")
    a("v_add_u32 v3, v3, v4")
    a("v_bfe_u32 v4, v2, 3, 2")
    a("v_lshl_add_u32 v3, v4, 2, v3")
    a("v_bfe_u32 v5, v3, 1, 3")
    a("s_lshl_b32 s10, s4, 5")
    a("v_add_u32 v3, s10, v3")
    a("v_lshlrev_b32 v13, 7, v3")
    a("v_lshrrev_b32 v4, 5, v2")
    a("v_xor_b32 v5, v4, v5")
    a("v_lshl_add_u32 v13, v5, 4, v13")
    a("v_and_b32 v3, 31, v2")
    a("s_lshl_b32 s10, s5, 6")
    a("v_add_u32 v3, s10, v3")
    a("v_lshlrev_b32 v14, 7, v3")
    a("v_bfe_u32 v5, v2, 1, 3")
    a("v_xor_b32 v5, v4, v5")
    a("v_lshl_add_u32 v14, v5, 4, v14")
    a("v_add_u32 v14, 16384, v14")
    for i in range(64):
        a(f"v_mov_b32 v{128+i}, 0")
    a("s_cmp_eq_u32 s4, s5")
    a("s_cselect_b32 s1, 1, 0")
    a("s_cmp_lt_u32 s6, 10")
    a("s_cselect_b32 s1, s1, 0")
    stats_job("S", 15)
    for i in (22, 23, 24, 25):
        a(f"v_mov_b32 v{i}, 0")
    a("s_waitcnt vmcnt(9)")
    ssm_params()
    side_prep(192)
    a("s_waitcnt vmcnt(3)")
    a("s_barrier")
    stamp(a, 1)
    SETS = (32, 80)
    def reads_ssm(setb):
        out = []
        for ks in range(2):
            b = setb + ks * 20
            out.append(f"ds_read_b128 v[{b}:{b+3}], v{15+ks}")
            for g in range(2):
                for part in range(2):
                    w = b + 4 + (g * 2 + part) * 4
                    out.append(f"ds_read_b128 v[{w}:{w+3}], v{(17, 21)[ks]} offset:{g*4096 + part*16384}")
        return out
    def rd_addr_s(uprime):
        a("v_add_u32 v15, s76, v13")
        a("v_add_u32 v17, s76, v14")
        if uprime:
            a("v_xor_b32 v15, 64, v15")
            a("v_xor_b32 v17, 64, v17")
        a("v_xor_b32 v16, 32, v15")
        a("v_xor_b32 v21, 32, v17")
        if uprime:
            a(f"s_add_u32 s76, s76, {SSLOT}")
            a(f"s_cmp_ge_u32 s76, {3*SSLOT}")
            a("s_cselect_b32 s76, 0, s76")
    a("s_mov_b32 s76, 0")
    rd_addr_s(0)
    for r in reads_ssm(SETS[0]): a(r)
    nonce_load()
    half_b()
    mk_srd(a, 80, PWS, CS_SZ, CS_OFF)
    mk_srd(a, 84, PWS, ST_SZ, ST_OFF)
    a("v_lshlrev_b32 v29, 3, v0")
    a("v_cmp_gt_u32 vcc, 256, v0")
    a("v_mov_b32 v3, 0x7ffffff0")
    a("s_mul_i32 s88, s7, 20480")
    a(f"s_add_u32 s88, s88, {CSF_SZ}")
    a("v_cndmask_b32 v29, v3, v29, vcc")
    a("v_subrev_u32 v4, 256, v0")
    a("v_cmp_gt_u32 vcc, 128, v4")
    a("s_lshl_b32 s10, s6, 7")
    a("v_add_u32 v4, s10, v4")
    a("v_lshlrev_b32 v30, 4, v4")
    a("v_cndmask_b32 v30, v3, v30, vcc")
    def epi_loads_s():
        for kk in range(10):
            a(f"s_add_u32 s12, s88, {kk*2048}")
            a(f"buffer_load_dwordx2 v[{224+2*kk}:{225+2*kk}], v29, s[80:83], s12 offen sc1")
        a("buffer_load_dwordx4 v[120:123], v30, s[84:87], 0 offen sc1")
    TS = 3 * SSLOT
    def ssm_tprep():
        ensure_nonce("SE")
        a.label("K1S_CHK")
        a("s_waitcnt vmcnt(0)")
        a(f"v_not_b32 v3, v{VN}")
        a(f"v_cmp_eq_u32 s[10:11], v122, v{VN}")
        a("v_cmp_eq_u32 vcc, v123, v3")
        a("s_and_b64 s[10:11], s[10:11], vcc")
        a("v_mov_b32 v4, 0x7ffffff0")
        a("v_cmp_eq_u32 s[12:13], v4, v30")
        a("s_or_b64 s[10:11], s[10:11], s[12:13]")
        a("v_cmp_eq_u32 s[12:13], v4, v29")
        a("s_mov_b64 s[14:15], -1")
        for kk in range(10):
            a(f"v_cmp_eq_u32 vcc, v{225+2*kk}, v{VN}")
            a("s_and_b64 s[14:15], s[14:15], vcc")
        a("s_or_b64 s[14:15], s[14:15], s[12:13]")
        a("s_and_b64 s[10:11], s[10:11], s[14:15]")
        a("s_cmp_eq_u64 s[10:11], -1")
        a("s_cbranch_scc1 K1S_OK")
        a("s_sleep 1")
        epi_loads_s()
        a("s_branch K1S_CHK")
        a.label("K1S_OK")
        for kk in range(1, 10):
            a(f"v_add_f32 v224, v224, v{224+2*kk}")
        a("v_mul_f32 v123, v120, v121")
        a("v_lshlrev_b32 v4, 2, v0")
        a(f"v_add_u32 v4, {TS}, v4")
        a("v_cmp_gt_u32 vcc, 256, v0")
        a("s_and_saveexec_b64 s[10:11], vcc")
        a("ds_write_b32 v4, v224")
        a("s_mov_b64 exec, s[10:11]")
        a("v_subrev_u32 v5, 256, v0")
        a("v_cmp_gt_u32 vcc, 128, v5")
        a("s_and_saveexec_b64 s[10:11], vcc")
        a("ds_write_b32 v4, v121")
        a("ds_write_b32 v4, v123 offset:512")
        a("s_mov_b64 exec, s[10:11]")
    def ssm_stage(u, vm, dma, first=False, epi=False, reads=True, tprep=False, hk=False, cbchk=False):
        cur, nxt = SETS[u], SETS[1 - u]
        if vm is None: a("s_waitcnt lgkmcnt(0)")
        else: a(f"s_waitcnt vmcnt({vm}) lgkmcnt(0)")
        a("s_barrier")
        rd = reads_ssm(nxt) if reads else []
        mf = []
        for ks in range(2):
            b = cur + ks * 20
            for g in range(2):
                for part in range(2):
                    w = b + 4 + (g * 2 + part) * 4
                    ac = 128 + 32 * g + 16 * part
                    mf.append(f"v_mfma_f32_32x32x16_bf16 v[{ac}:{ac+15}], v[{b}:{b+3}], v[{w}:{w+3}], v[{ac}:{ac+15}]")
        pcs = HA if u == 0 else HB
        ri = 0
        for mi, m in enumerate(mf):
            a(m)
            if mi == 0:
                if reads: rd_addr_s(1 - u)
            elif mi < 6:
                for _ in range(3):
                    if ri < len(rd): a(rd[ri]); ri += 1
            if dma and mi in (1, 3, 5):
                dma1(*pcs[(mi - 1) // 2])
            if mi == 6:
                if dma:
                    if u == 0: adv(75, 74)
                    else: adv(79, 73)
                if hk: hook("S", 192, 224)
                if cbchk: arrive_check("CBS", 256, lambda: a(f"s_mov_b32 s11, {GO_OFF}"), 32, wait=False)
                if epi: epi_loads_s()
                if tprep: ssm_tprep()
                if first:
                    lc = a.uid("K1C")
                    a("s_cmp_eq_u32 s1, 0")
                    a(f"s_cbranch_scc1 {lc}")
                    for ks in range(2):
                        for i in range(4):
                            for t in range(4):
                                w = cur + 20 * ks + 4 + 4 * t
                                a(f"v_dot2c_f32_bf16 v{22+t}, v{w+i}, v18")
                    if u == 1:
                        for t in range(4): a(f"v_mov_b32 v{224+2*t}, v{22+t}")
                        a("s_nop 1")
                        for t in range(4): a(f"v_permlane32_swap_b32 v{22+t}, v{224+2*t}")
                        for t in range(4): a(f"v_add_f32 v{224+2*t}, v{22+t}, v{224+2*t}")
                        ensure_nonce("SC")
                        for t in range(4): a(f"v_mov_b32 v{225+2*t}, v{VN}")
                        a("v_and_b32 v3, 31, v2")
                        a("s_lshl_b32 s10, s5, 7")
                        a("v_add_u32 v3, s10, v3")
                        a("v_lshlrev_b32 v3, 3, v3")
                        a("s_lshl_b32 s10, s0, 11")
                        a("s_add_u32 s10, s10, s88")
                        a("s_mov_b32 exec_hi, 0")
                        for t in range(4):
                            a(f"buffer_store_dwordx2 v[{224+2*t}:{225+2*t}], v3, s[80:83], s10 offen offset:{256*t} sc1")
                        a("s_mov_b32 exec_hi, -1")
                    a.label(lc)
                    if u == 1:
                        a("s_mov_b32 s77, 1")
                        stats_publish("S")
    ssm_stage(0, None, True, first=True)
    ssm_stage(1, 3, True, first=True)
    a("s_mov_b32 s77, 7")
    a.label("K1S_LOOP")
    ssm_stage(0, None, True)
    ssm_stage(1, 3, True, hk=True)
    a("s_sub_u32 s77, s77, 1")
    a("s_cmp_lg_u32 s77, 0")
    a("s_cbranch_scc1 K1S_LOOP")
    ssm_stage(0, None, False, epi=True, cbchk=True)
    ssm_stage(1, 11, False)
    ssm_stage(0, None, False, tprep=True)
    ssm_stage(1, None, False, reads=False)
    a("s_branch K1S_EPI")
    flush_hooks()
    a.label("K1S_EPI")
    stamp(a, 2)
    a("s_waitcnt lgkmcnt(0)")
    a("s_barrier")
    if ENV("TSTAMP"): stamp(a, 20)
    a("v_and_b32 v3, 31, v2")
    a("s_lshl_b32 s10, s5, 7")
    a("v_add_u32 v3, s10, v3")
    a("v_lshlrev_b32 v3, 2, v3")
    a(f"v_add_u32 v3, {TS}, v3")
    for t in range(4):
        a(f"ds_read_b32 v{22+t}, v3 offset:{128*t}")
    a("v_lshrrev_b32 v4, 5, v2")
    a("v_lshlrev_b32 v3, 6, v4")
    a("s_lshl_b32 s10, s4, 7")
    a(f"s_add_u32 s10, s10, {TS + 1024}")
    a("v_add_u32 v3, s10, v3")
    for i in range(4):
        a(f"ds_read_b128 v[{32+4*i}:{35+4*i}], v3 offset:{16*i}")
    for i in range(4):
        a(f"ds_read_b128 v[{48+4*i}:{51+4*i}], v3 offset:{512 + 16*i}")
    a("s_waitcnt lgkmcnt(0)")
    for g in range(2):
        cr_, ci_ = PR(g, 2), PR(g, 3)
        a(f"v_mul_f32 v{240+2*g}, v{cr_}, v{22+2*g}")
        a(f"v_fma_f32 v{240+2*g}, -v{ci_}, v{23+2*g}, v{240+2*g}")
        a(f"v_mul_f32 v{241+2*g}, v{cr_}, v{23+2*g}")
        a(f"v_fma_f32 v{241+2*g}, v{ci_}, v{22+2*g}, v{241+2*g}")
    if ENV("TSTAMP"): stamp(a, 21)
    RE = lambda g, r: 128 + 32 * g + r
    IM = lambda g, r: 128 + 32 * g + 16 + r
    for r in range(0, 16, 2):
        for g in range(2):
            cr_, ci_ = PR(g, 2), PR(g, 3)
            re, im = RE(g, r), IM(g, r)
            tr_, ti_ = 64 + 4 * g, 66 + 4 * g
            vpk(a, "mul", tr_, ('p', re), ('b', cr_))
            vpk(a, "mul", ti_, ('p', im), ('b', cr_))
            vpk(a, "fma", tr_, ('p', im), ('b', ci_, 1), ('p', tr_))
            vpk(a, "fma", ti_, ('p', re), ('b', ci_), ('p', ti_))
            vpk(a, "mul", tr_, ('p', tr_), ('p', 32 + r))
            vpk(a, "mul", ti_, ('p', ti_), ('p', 32 + r))
            vpk(a, "fma", re, ('p', 48 + r), ('b', 240 + 2 * g, 1), ('p', tr_))
            vpk(a, "fma", im, ('p', 48 + r), ('b', 241 + 2 * g, 1), ('p', ti_))
        for rr in (r, r + 1):
            if rr == 0: continue
            for g in range(2):
                mr, mi = PR(g, 0), PR(g, 1)
                a(f"v_fma_f32 v{RE(g, rr)}, v{mr}, v{RE(g, rr-1)}, v{RE(g, rr)}")
                a(f"v_fma_f32 v{IM(g, rr)}, v{mr}, v{IM(g, rr-1)}, v{IM(g, rr)}")
                a(f"v_fma_f32 v{RE(g, rr)}, -v{mi}, v{IM(g, rr-1)}, v{RE(g, rr)}")
                a(f"v_fma_f32 v{IM(g, rr)}, v{mi}, v{RE(g, rr-1)}, v{IM(g, rr)}")
    if ENV("TSTAMP"): stamp(a, 22)
    EO = lambda g: 224 + 4 + 2 * g
    for g in range(2):
        a(f"v_mov_b32 v{EO(g)}, v{RE(g, 15)}")
        a(f"v_mov_b32 v{EO(g)+1}, v{IM(g, 15)}")
    a("v_lshrrev_b32 v4, 5, v2")
    a("s_lshl_b32 s10, s4, 1")
    a("v_add_u32 v21, s10, v4")
    a("v_and_b32 v3, 31, v2")
    a("s_lshl_b32 s10, s5, 6")
    a("v_add_u32 v3, s10, v3")
    a("v_lshlrev_b32 v22, 3, v3")
    a("v_lshl_add_u32 v23, v21, 10, v22")
    for g in range(2):
        a(f"ds_write_b64 v23, v[{EO(g)}:{EO(g)+1}] offset:{8192 + 256*g}")
    a("s_waitcnt lgkmcnt(0)")
    a("s_barrier")
    if ENV("TSTAMP"): stamp(a, 23)
    for g in range(2):
        for j in range(7):
            a(f"ds_read_b64 v[{32+16*g+2*j}:{33+16*g+2*j}], v22 offset:{8192 + 1024*j + 256*g}")
    for g in range(2):
        a(f"v_mov_b32 v{232+2*g}, 0")
        a(f"v_mov_b32 v{233+2*g}, 0")
    a("s_waitcnt lgkmcnt(0)")
    for j in range(7):
        if j % 2 == 0:
            a(f"s_cmp_lt_u32 s4, {j//2}")
            a("s_cbranch_scc1 K1S_HP_DONE")
            a(f"s_cmp_eq_u32 s4, {j//2}")
            a("s_cselect_b32 exec_lo, 0, -1")
        else:
            a(f"s_cmp_le_u32 s4, {j//2}")
            a("s_cbranch_scc1 K1S_HP_DONE")
        for g in range(2):
            qr, qi = PR(g, 4), PR(g, 5)
            Pr, Pi = 232 + 2 * g, 233 + 2 * g
            er, ei = 32 + 16 * g + 2 * j, 33 + 16 * g + 2 * j
            a(f"v_fma_f32 v{er}, v{qr}, v{Pr}, v{er}")
            a(f"v_fma_f32 v{ei}, v{qr}, v{Pi}, v{ei}")
            a(f"v_fma_f32 v{er}, -v{qi}, v{Pi}, v{er}")
            a(f"v_fma_f32 v{Pi}, v{qi}, v{Pr}, v{ei}")
            a(f"v_mov_b32 v{Pr}, v{er}")
    a.label("K1S_HP_DONE")
    a("s_mov_b64 exec, -1")
    mk_srd(a, 80, PWS, E_SZ, E_OFF)
    a("s_cmp_eq_u32 s4, 3")
    a("s_cbranch_scc0 K1S_NOPUB")
    for g in range(2):
        qr, qi = PR(g, 4), PR(g, 5)
        Pr, Pi = 232 + 2 * g, 233 + 2 * g
        er, ei = EO(g), EO(g) + 1
        d = 64 + 4 * g
        a(f"v_fma_f32 v{d}, v{qr}, v{Pr}, v{er}")
        a(f"v_fma_f32 v{d+1}, v{qr}, v{Pi}, v{ei}")
        a(f"v_fma_f32 v{d}, -v{qi}, v{Pi}, v{d}")
        a(f"v_fma_f32 v{d+1}, v{qi}, v{Pr}, v{d+1}")
        a(f"v_mov_b32 v{d+2}, v{VN}")
        a(f"v_not_b32 v{d+3}, v{VN}")
    a("v_lshlrev_b32 v24, 3, v7")
    a(f"s_mul_i32 s10, s6, {640*16}")
    a("s_mov_b32 exec_lo, 0")
    for g in range(2):
        a(f"buffer_store_dwordx4 v[{64+4*g}:{67+4*g}], v24, s[80:83], s10 offen offset:{512*g} sc1")
    a("s_mov_b64 exec, -1")
    a("s_nop 1")
    a.label("K1S_NOPUB")
    stamp(a, 4)
    QB = [96, 100, 104, 108, 112, 116, 120, 124, 192, 196, 200, 204, 224, 228, 8]
    def poll_loads():
        for j in range(15):
            a(f"s_cmp_le_u32 s6, {j}")
            a(f"s_cbranch_scc1 {lab_loaded}")
            a(f"s_mov_b32 s10, {j*640*16}")
            a(f"buffer_load_dwordx4 v[{QB[j]}:{QB[j]+3}], v24, s[80:83], s10 offen sc1")
    a("s_cmp_eq_u32 s4, 0")
    a("s_cbranch_scc0 K1S_NP1")
    a("v_add_u32 v24, s68, v2")
    a("v_lshlrev_b32 v24, 4, v24")
    lab_loaded = "K1S_LD0"
    poll_loads()
    a.label("K1S_LD0")
    a.label("K1S_NP1")
    PWR = lambda g, r: 32 + 32 * g + r
    PWI = lambda g, r: 48 + 32 * g + r
    for g in range(2):
        a(f"v_mov_b32 v{PWR(g,0)}, v{PR(g,0)}")
        a(f"v_mov_b32 v{PWI(g,0)}, v{PR(g,1)}")
    for r in range(1, 16):
        for g in range(2):
            mr, mi = PR(g, 0), PR(g, 1)
            a(f"v_mul_f32 v{PWR(g,r)}, v{mr}, v{PWR(g,r-1)}")
            a(f"v_mul_f32 v{PWI(g,r)}, v{mr}, v{PWI(g,r-1)}")
            a(f"v_fma_f32 v{PWR(g,r)}, -v{mi}, v{PWI(g,r-1)}, v{PWR(g,r)}")
            a(f"v_fma_f32 v{PWI(g,r)}, v{mi}, v{PWR(g,r-1)}, v{PWI(g,r)}")
    for g in range(2):
        a(f"v_mov_b32 v{236+2*g}, 1.0")
        a(f"v_mov_b32 v{237+2*g}, 0")
    for j in range(7):
        if j % 2 == 0:
            a(f"s_cmp_lt_u32 s4, {j//2}")
            a("s_cbranch_scc1 K1S_SG_DONE")
            a(f"s_cmp_eq_u32 s4, {j//2}")
            a("s_cselect_b32 exec_lo, 0, -1")
        else:
            a(f"s_cmp_le_u32 s4, {j//2}")
            a("s_cbranch_scc1 K1S_SG_DONE")
        for g in range(2):
            qr, qi = PR(g, 4), PR(g, 5)
            wr, wi = 236 + 2 * g, 237 + 2 * g
            a(f"v_mul_f32 v242, v{qr}, v{wr}")
            a(f"v_mul_f32 v243, v{qr}, v{wi}")
            a(f"v_fma_f32 v242, -v{qi}, v{wi}, v242")
            a(f"v_fma_f32 v{wi}, v{qi}, v{wr}, v243")
            a(f"v_mov_b32 v{wr}, v242")
    a.label("K1S_SG_DONE")
    a("s_mov_b64 exec, -1")
    if ENV("TSTAMP"): stamp(a, 24)
    a("s_cmp_eq_u32 s4, 0")
    a("s_cbranch_scc1 K1S_POLLER")
    a("s_branch K1S_NOPOLL")
    a.label("K1S_POLLER")
    a("v_cmp_lt_u32 vcc, 31, v2")
    a("v_mov_b32 v244, 0")
    a("v_mov_b32 v245, 0")
    a(f"v_cndmask_b32 v246, v{PR(0,6)}, v{PR(1,6)}, vcc")
    a(f"v_cndmask_b32 v26, v{PR(0,7)}, v{PR(1,7)}, vcc")
    a(f"v_not_b32 v25, v{VN}")
    a("s_cmp_eq_u32 s6, 0")
    a("s_cbranch_scc1 K1S_HDONE")
    a("s_mov_b32 s14, 200000")
    a("s_branch K1S_LOADED")
    a.label("K1S_POLL")
    lab_loaded = "K1S_LOADED"
    poll_loads()
    a.label("K1S_LOADED")
    a("s_waitcnt vmcnt(0)")
    a("s_mov_b64 s[12:13], -1")
    for j in range(15):
        a(f"s_cmp_le_u32 s6, {j}")
        a("s_cbranch_scc1 K1S_CHK2")
        a(f"v_cmp_eq_u32 vcc, v{QB[j]+2}, v{VN}")
        a(f"v_cmp_eq_u32 s[10:11], v{QB[j]+3}, v25")
        a("s_and_b64 s[12:13], s[12:13], vcc")
        a("s_and_b64 s[12:13], s[12:13], s[10:11]")
    a.label("K1S_CHK2")
    a("s_cmp_eq_u64 s[12:13], -1")
    a("s_cbranch_scc1 K1S_VALID")
    a("s_sub_u32 s14, s14, 1")
    a("s_cmp_eq_u32 s14, 0")
    a("s_cbranch_scc1 K1S_VALID")
    a("s_branch K1S_POLL")
    a.label("K1S_VALID")
    for j in range(15):
        a(f"s_cmp_le_u32 s6, {j}")
        a("s_cbranch_scc1 K1S_HDONE")
        a(f"v_fma_f32 v240, v246, v244, v{QB[j]}")
        a(f"v_fma_f32 v241, v246, v245, v{QB[j]+1}")
        a(f"v_fma_f32 v240, -v26, v245, v240")
        a(f"v_fma_f32 v245, v26, v244, v241")
        a("v_mov_b32 v244, v240")
    a.label("K1S_HDONE")
    a("s_lshl_b32 s10, s5, 6")
    a("v_add_u32 v3, s10, v2")
    a("v_lshlrev_b32 v3, 3, v3")
    a("ds_write_b64 v3, v[244:245] offset:16384")
    a("s_waitcnt lgkmcnt(0)")
    a.label("K1S_NOPOLL")
    a("s_barrier")
    stamp(a, 5)

    for g in range(2):
        a(f"ds_read_b64 v[{240+2*g}:{241+2*g}], v22 offset:{16384 + 256*g}")
    a("s_waitcnt lgkmcnt(0)")
    for g in range(2):
        Pr, Pi, wr, wi, Hr, Hi = 232 + 2 * g, 233 + 2 * g, 236 + 2 * g, 237 + 2 * g, 240 + 2 * g, 241 + 2 * g
        a(f"v_fma_f32 v{Pr}, v{wr}, v{Hr}, v{Pr}")
        a(f"v_fma_f32 v{Pi}, v{wr}, v{Hi}, v{Pi}")
        a(f"v_fma_f32 v{Pr}, -v{wi}, v{Hi}, v{Pr}")
        a(f"v_fma_f32 v{Pi}, v{wi}, v{Hr}, v{Pi}")
    for g in range(2):
        Cr, Ci = 232 + 2 * g, 233 + 2 * g
        for r in range(0, 16, 2):
            vpk(a, "fma", RE(g, r), ('p', PWR(g, r)), ('b', Cr), ('p', RE(g, r)))
            vpk(a, "fma", IM(g, r), ('p', PWR(g, r)), ('b', Ci), ('p', IM(g, r)))
            vpk(a, "fma", RE(g, r), ('p', PWI(g, r)), ('b', Ci, 1), ('p', RE(g, r)))
            vpk(a, "fma", IM(g, r), ('p', PWI(g, r)), ('b', Cr), ('p', IM(g, r)))
    if ENV("TSTAMP"): stamp(a, 25)
    a("s_mul_i32 s10, s3, 10240")
    a("s_add_u32 s10, s10, 20480")
    a("v_and_b32 v3, 31, v2")
    a("v_mul_u32_u24 v3, 80, v3")
    a("v_lshrrev_b32 v4, 5, v2")
    a("v_lshl_add_u32 v3, v4, 5, v3")
    a("v_add_u32 v28, s10, v3")
    for g in range(2):
        for part in range(2):
            src = 128 + 32 * g + 16 * part
            neg = "-" if part else ""
            pk = 32 + 8 * (g * 2 + part)
            for i in range(8):
                a(f"v_cvt_pk_bf16_f32 v{pk+i}, {neg}v{src+2*i}, {neg}v{src+2*i+1}")
            off = (g * 2 + part) * 2560
            a(f"ds_write_b128 v28, v[{pk}:{pk+3}] offset:{off}")
            a(f"ds_write_b128 v28, v[{pk+4}:{pk+7}] offset:{off+16}")
    a("v_lshrrev_b32 v3, 4, v2")
    a("v_lshlrev_b32 v3, 3, v3")
    a("v_bfe_u32 v4, v2, 2, 2")
    a("v_add_u32 v3, v3, v4")
    a("v_mul_u32_u24 v3, 80, v3")
    a("v_and_b32 v4, 3, v2")
    a("v_lshl_add_u32 v3, v4, 3, v3")
    a("v_add_u32 v29, s10, v3")
    a("v_lshlrev_b32 v30, 4, v2")
    a("s_lshl_b32 s10, s6, 1")
    a("s_lshr_b32 s11, s4, 1")
    a("s_add_u32 s10, s10, s11")
    a("s_mul_i32 s10, s10, 94")
    a("s_lshr_b32 s11, s68, 4")
    a("s_add_u32 s10, s10, s11")
    a("s_lshl_b32 s10, s10, 12")
    a("s_and_b32 s11, s4, 1")
    a("s_lshl_b32 s11, s11, 11")
    a("s_add_u32 s10, s10, s11")
    a("s_waitcnt lgkmcnt(0)")
    for g in range(2):
        for part in range(2):
            off = (g * 2 + part) * 2560
            for i in range(2):
                b = 64 + ((g * 2 + part) * 2 + i) * 4
                a(f"ds_read_b64_tr_b16 v[{b}:{b+1}], v29 offset:{off + 32*i}")
                a(f"ds_read_b64_tr_b16 v[{b+2}:{b+3}], v29 offset:{off + 32*i + 320}")
    a("s_waitcnt lgkmcnt(0)")
    for g in range(2):
        for part in range(2):
            for i in range(2):
                b = 64 + ((g * 2 + part) * 2 + i) * 4
                a(f"s_add_u32 s11, s10, {(2*g + part)*4096 + i*1024}")
                a(f"buffer_store_dwordx4 v[{b}:{b+3}], v30, s[64:67], s11 offen sc1")
    def ws_():
        a("s_lshl_b32 s10, s6, 2")
        a("s_add_u32 s10, s10, 128")
    def gs_():
        a("s_lshl_b32 s11, s6, 7")
        a(f"s_add_u32 s11, s11, {GO_OFF + 8192}")
    phase1_done("S", ws_, 5, gs_, 1)
    stamp(a, 3); stamp_flush(a, 0)
    a.label("PHASE2")
    import gen_p2b
    gen_p2b.gen_phase2(a)
    a.label("K1_END")
    a("s_endpgm")

def build(path):
    a = Asm()
    a.raw(HDR.rstrip("\n"))
    a.raw(f"; @launch grid=(256,1,1) block=(512,1,1) lds={K1_LDS}")
    a.raw('.amdgcn_target "amdgcn-amd-amdhsa--gfx950"')
    a.raw(".text")
    gen_k1(a)
    a.raw('.section .rodata,"a"')
    a.raw(descriptor(KNAME, 256, 102, 256))
    t = a.text()
    open(path, "w").write(t)
    lint(t)

if __name__ == "__main__":
    build(sys.argv[1] if len(sys.argv) > 1 else "v8.s")
```
